```python
import torch

def _softmax(x, axis=-1):
    return torch.softmax(x, dim=axis)
def _gelu(x):
    return torch.nn.functional.gelu(x, approximate="tanh")
def _silu(x):
    return torch.nn.functional.silu(x)
def _sigmoid(x):
    return torch.sigmoid(x)
def _layernorm(x, axis=-1, eps=1e-5):
    m = x.mean(dim=axis, keepdim=True)
    v = x.var(dim=axis, keepdim=True, unbiased=False)
    return (x - m) / torch.sqrt(v + eps)
def _scatter_add(tgt, idx, src, axis=0):
    return tgt.clone().index_add_(axis, idx, src)
def _segment_sum(src, seg, n):
    out = torch.zeros((n,) + src.shape[1:], dtype=src.dtype)
    return out.index_add_(0, seg, src)
def _pad(x, pw):
    flat = tuple(v for pair in reversed(pw) for v in pair)
    return torch.nn.functional.pad(x, flat)

kernel_name = 'sequential_preLN__mha_block_cached__geglu_ffn__decode'

def setup_inputs():

    _w = (lambda a: (lambda t: t.to(torch.bfloat16) if t.is_floating_point() else t)(torch.as_tensor(a)))
    def _A_setup():
        B, Sq, D = 1, 1, 512
        H, Sk, Dh = 32, 4096, 128
        return {
            "x": _w((lambda *s: torch.randn(*s, dtype=torch.bfloat16) * 0.05)(B, Sq, D)),
            "k_cache": _w((lambda *s: torch.randn(*s, dtype=torch.bfloat16) * 3.2)(B, H, Sk, Dh)),
            "v_cache": _w((lambda *s: torch.randn(*s, dtype=torch.bfloat16) * 0.4)(B, H, Sk, Dh)),
            "wq": _w((lambda *s: torch.randn(*s, dtype=torch.bfloat16) * 3.2)(D, H * Dh) * (D ** -0.5)),
            "wo": _w((lambda *s: torch.randn(*s, dtype=torch.bfloat16) * 0.4)(H * Dh, D) * ((H * Dh) ** -0.5)),
        }
    _A_in = _A_setup()

    def _B_setup():
        B, S, D, F = 1, 1, 512, 1376
        return {
            "x": _w((lambda *s: torch.randn(*s, dtype=torch.bfloat16) * 0.05)(B, S, D)),
            "w_gate": _w((lambda *s: torch.randn(*s, dtype=torch.bfloat16) * 0.05)(D, F)),
            "w_up": _w((lambda *s: torch.randn(*s, dtype=torch.bfloat16) * 0.05)(D, F)),
            "w_down": _w((lambda *s: torch.randn(*s, dtype=torch.bfloat16) * 0.05)(F, D)),
        }
    _B_in = _B_setup()

    return {
        "A_x": _A_in["x"],
        "A_k_cache": _A_in["k_cache"],
        "A_v_cache": _A_in["v_cache"],
        "A_wq": _A_in["wq"],
        "A_wo": _A_in["wo"],
        "B_x": _B_in["x"],
        "B_w_gate": _B_in["w_gate"],
        "B_w_up": _B_in["w_up"],
        "B_w_down": _B_in["w_down"],
    }

def reference(A_x, A_k_cache, A_v_cache, A_wq, A_wo, B_x, B_w_gate, B_w_up, B_w_down):
    def _A_ref(x, k_cache, v_cache, wq, wo):
        B, Sq, D = x.shape
        H, Dh = 32, 128
        q = (lambda x, *d: x.permute(*d))((x @ wq).reshape(B, Sq, H, Dh), 0, 2, 1, 3)
        scores = torch.einsum("bhqd,bhkd->bhqk", q, k_cache) * (Dh ** -0.5)
        p = _softmax(scores, axis=-1)
        o = torch.einsum("bhqk,bhkd->bhqd", p, v_cache)
        return (lambda x, *d: x.permute(*d))(o, 0, 2, 1, 3).reshape(B, Sq, H * Dh) @ wo

    def _B_ref(x, w_gate, w_up, w_down):
        return (_gelu(x @ w_gate) * (x @ w_up)) @ w_down

    x = A_x
    h = x + _A_ref(_layernorm(x, axis=-1), A_k_cache, A_v_cache, A_wq, A_wo)
    h2 = h + _B_ref(_layernorm(h, axis=-1), B_w_gate, B_w_up, B_w_down)
    return h2
```

```python
import re

TRANS = ("v_exp_f32", "v_log_f32", "v_rcp_f32", "v_rsq_f32", "v_sqrt_f32", "v_sin_f32", "v_cos_f32")
REG = re.compile(r"\b([vsa])(?:(\d+)|\[(\d+):(\d+)\])")

def regs(tok):
    out = set()
    for m in REG.finditer(tok):
        k = m.group(1)
        if m.group(2) is not None: out.add((k, int(m.group(2))))
        else: out.update((k, i) for i in range(int(m.group(3)), int(m.group(4)) + 1))
    if re.search(r"\bvcc\b", tok): out.update({("s", 106), ("s", 107)})
    if re.search(r"\bm0\b", tok): out.add(("m", 0))
    return out

class I:
    def __init__(self, text):
        self.text = text
        t = text.split(";")[0].strip()
        self.label = t[:-1] if t.endswith(":") else None
        self.directive = t.startswith(".") and not self.label
        self.op = "" if (self.label or self.directive or not t) else t.split()[0]
        self.real = bool(self.op)
        self.w, self.r = set(), set()
        self.dppsrc = set(); self.srcC = set(); self.srcAB = set(); self.stdata = set()
        self.target = None
        if not self.real: return
        op = self.op
        rest = t[len(op):].strip()
        ops = [o.strip() for o in re.split(r",(?![^\[]*\])", rest)] if rest else []
        self.valu = op.startswith("v_")
        self.mfma = op.startswith("v_mfma")
        self.dot = op.startswith("v_dot")
        self.trans = op.startswith(TRANS)
        self.dpp = "_dpp" in op
        self.perml = op.startswith("v_permlane")
        self.vmem = op.startswith(("buffer_", "global_"))
        self.ds = op.startswith("ds_")
        self.salu = op.startswith("s_")
        self.lds_dma = self.vmem and (" lds" in t or "load_lds" in op)
        self.states = 1
        if op == "s_nop": self.states = int(ops[0], 0) + 1
        if op.startswith(("s_cbranch", "s_branch")): self.target = ops[0]
        if self.valu:
            d = ops[0]; srcs = ops[1:]
            if op.startswith(("v_add_co", "v_addc_co", "v_sub_co")):
                self.w = regs(ops[0]) | regs(ops[1]); srcs = ops[2:]
            else:
                self.w = regs(d)
            for s in srcs: self.r |= regs(s)
            if op.startswith(("v_fmac", "v_dot2c")) or self.dpp or "writelane" in op: self.r |= regs(d)
            if op.startswith("v_cndmask") and len(ops) == 3: self.r |= regs("vcc")
            if self.perml: self.w |= regs(ops[1]); self.r |= regs(d)
            if self.dpp: self.dppsrc = regs(ops[1])
            if self.mfma: self.srcAB = regs(ops[1]) | regs(ops[2]); self.srcC = regs(ops[3])
        elif self.vmem or self.ds:
            isload = ("load" in op or "read" in op or "bpermute" in op) and not self.lds_dma
            allr = set()
            for o in ops: allr |= regs(o)
            if isload:
                self.w = regs(ops[0])
                for o in ops[1:]: self.r |= regs(o)
            else:
                self.r = allr
                if self.vmem and "store" in op and ("x4" in op or "x3" in op):
                    self.stdata = regs(ops[0]) if op.startswith("buffer") else regs(ops[1])
            if self.lds_dma: self.r.add(("m", 0))
        elif self.salu:
            nowrite = op.startswith(("s_cmp", "s_cbranch", "s_branch", "s_waitcnt", "s_nop", "s_barrier", "s_endpgm", "s_sleep", "s_setprio", "s_bitcmp"))
            if ops and not nowrite:
                self.w = regs(ops[0])
                for o in ops[1:]: self.r |= regs(o)
            else:
                for o in ops: self.r |= regs(o)

def V(s): return {x for x in s if x[0] in "va"}
def S(s): return {x for x in s if x[0] == "s"}

def need(p, c):
    n = 0
    if p.valu and not p.mfma:
        wv = V(p.w); ws = S(p.w)
        if c.valu and c.dpp and wv & c.dppsrc: n = max(n, 2)
        if c.valu and c.perml and wv & V(c.r): n = max(n, 2)
        if c.op.startswith(("v_readlane", "v_readfirstlane")) and wv & V(c.r): n = max(n, 1)
        if c.valu and c.mfma and wv & V(c.r): n = max(n, 2)
        if p.trans and c.valu and not c.trans and wv & V(c.r): n = max(n, 1)
        if ws and c.valu and ws & S(c.r):
            n = max(n, 4 if c.op.startswith(("v_readlane", "v_writelane")) else 2)
        if ws and c.vmem and ws & S(c.r): n = max(n, 5)
        if p.dot and wv & (V(c.r) | V(c.w)):
            same = c.op.replace("_e32", "") == p.op.replace("_e32", "")
            if not same: n = max(n, 3)
            else:
                toks = [o.strip() for o in c.text.split(";")[0].strip()[len(c.op):].split(",")]
                ab = regs(toks[1]) | regs(toks[2])
                if wv & V(ab): n = max(n, 3)
    if p.valu and p.mfma:
        d = V(p.w)
        if c.valu and c.mfma:
            if d & c.srcAB: n = max(n, 8)
            if d & c.srcC and not (d == c.srcC): n = max(n, 6)
        elif c.valu or c.vmem or c.ds:
            if d & (V(c.r) | V(c.w)): n = max(n, 8)
        if c.valu and not c.mfma and p.srcC & V(c.w): n = max(n, 3)
    if p.salu and ("m", 0) in p.w and c.lds_dma: n = max(n, 1)
    if p.stdata and p.stdata & V(c.w) and (c.valu or c.vmem or c.ds): n = max(n, 2 if c.valu else 1)
    return n

def fix_hazards(lines, maxd=9):
    ins = [I(l) for l in lines]
    inserted = 0
    while True:
        labels = {x.label: k for k, x in enumerate(ins) if x.label}
        jumps = {}
        for k, x in enumerate(ins):
            if x.real and x.target: jumps.setdefault(labels[x.target], []).append(k)
        def preds(k):
            out = list(jumps.get(k, [])) if ins[k].label else []
            if k > 0:
                q = ins[k - 1]
                if not (q.real and q.op in ("s_branch", "s_endpgm")): out.append(k - 1)
            return out
        change = None
        for k, c in enumerate(ins):
            if not c.real or not (c.valu or c.vmem or c.ds): continue
            worst = 0
            stack = [(q, 0) for q in preds(k)]; seen = set()
            while stack:
                q, d = stack.pop()
                if (q, d) in seen or d >= maxd: continue
                seen.add((q, d))
                p = ins[q]
                if p.real:
                    n = need(p, c)
                    if n > d: worst = max(worst, n - d)
                    d2 = d + p.states
                else: d2 = d
                for z in preds(q): stack.append((z, d2))
            if worst:
                change = (k, worst); break
        if not change: break
        k, n = change
        ins.insert(k, I(f"    s_nop {n - 1}")); inserted += n
    return [x.text for x in ins], inserted

class Asm:
    def __init__(self): self.lines = []; self.n = 0
    def __call__(self, text):
        for l in text.strip("\n").split("\n"):
            l = l.strip()
            if not l: continue
            self.lines.append(l if l.endswith(":") else "    " + l)
    def label(self, p="L"):
        self.n += 1; return f"{p}_{self.n}"
```

```python
import sys, struct
from asmlib import Asm, fix_hazards

NAME = "sequential_preLN__mha_block_cached__geglu_ffn__decode_kernel"
def f32(x): return "0x%08x" % struct.unpack("<I", struct.pack("<f", x))[0]

WS_X, WS_Q, WS_O, WS_A, WS_F, WS_STAMP, WS_SIZE = 0x1000, 0x10000, 0x50000, 0x90000, 0xA0000, 0x100000, 0x200000
L_Q, L_FLAG, L_MODE, L_ST, L_P, L_R, L_A, L_S2, L_W, LDS_SIZE = 0, 256, 260, 288, 512, 2560, 4736, 6144, 8192, 40960
R_STRIDE = 528
TAG_STEP = 0x9E3779B1
SCALE = f32(128 ** -0.5)
LOG2E = f32(1.4426950408889634)
EPS = f32(1e-5)
GC1 = -2.0 * 0.7978845608028654 * 1.4426950408889634
GC2 = GC1 * 0.044715
DPPF = "row_mask:0xf bank_mask:0xf"
POLL_CAP = 100000

DEF = dict(kv_nt=True, wq_nt=True, stamps=False, q_sleep=24, force_safe=False, prefetch_code=True, poll_sleep=0, b0=True)

def build(**kw):
    P = dict(DEF); P.update(kw)
    a = Asm()
    KV = " nt" if P["kv_nt"] else ""
    WQ = " nt" if P["wq_nt"] else ""

    def stamp(n):
        if P["stamps"]: a(f"s_memrealtime s[{70 + 2 * n}:{71 + 2 * n}]")
    def srd(d, lo, hi, size):
        a(f"s_mov_b32 s{d}, {lo}\ns_and_b32 s{d + 1}, {hi}, 0xffff\ns_mov_b32 s{d + 2}, {size}\ns_mov_b32 s{d + 3}, 0x20000")
    def ws_srd(): srd(36, "s26", "s27", hex(WS_SIZE))
    def tag_setup():
        a(f"""s_add_u32 s44, s44, {hex(TAG_STEP)}
              s_lshr_b32 s45, s44, 8
              s_lshr_b32 s46, s44, 16
              s_lshr_b32 s47, s44, 24""")
    def perm_sel():
        for k in range(4): a(f"s_mov_b32 s{48 + k}, {hex(0x07060500 + k)}")
    def put_tags(r, vtag):
        for k in range(4): a(f"v_perm_b32 v{r + k}, v{r + k}, v{vtag}, s{48 + k}")
    def chk_tags(acc, r, first):
        for k in range(4):
            if first and k == 0: a(f"v_xor_b32 v{acc}, s44, v{r}")
            else: a(f"v_bitop3_b32 v{acc}, v{acc}, v{r + k}, s{44 + k} bitop3:0xf6")
    def setexec(mask):
        if mask == -1: a("s_mov_b64 exec, -1")
        else: a(f"s_mov_b32 exec_lo, {hex(mask & 0xffffffff)}\ns_mov_b32 exec_hi, {hex(mask >> 32)}")
    def row_allreduce(op, rs):
        for mode in ("quad_perm:[1,0,3,2]", "quad_perm:[2,3,0,1]", "row_half_mirror", "row_mirror"):
            for r in rs: a(f"{op}_dpp v{r}, v{r}, v{r} {mode} {DPPF}")
    def oct_allreduce(op, rs):
        for mode in ("quad_perm:[1,0,3,2]", "quad_perm:[2,3,0,1]", "row_half_mirror"):
            for r in rs: a(f"{op}_dpp v{r}, v{r}, v{r} {mode} {DPPF}")
    def cross_rows(op, rs, tmps):
        for sw in ("v_permlane16_swap_b32", "v_permlane32_swap_b32"):
            for r, t in zip(rs, tmps): a(f"v_mov_b32 v{t}, v{r}")
            for r, t in zip(rs, tmps): a(f"{sw} v{t}, v{r}")
            for r, t in zip(rs, tmps): a(f"{op} v{r}, v{r}, v{t}")
    def sel_masks(m, t0, t1, t2):
        a(f"""v_bfe_u32 v{t0}, v0, 1, 3
              v_and_b32 v{t1}, 1, v0
              v_lshlrev_b32 v{t1}, 4, v{t1}
              v_mov_b32 v{t2}, 0xffff
              v_lshlrev_b32 v{t1}, v{t1}, v{t2}""")
        for r in range(4):
            a(f"v_cmp_eq_u32 vcc, {r}, v{t0}\nv_cndmask_b32 v{m + r}, 0, v{t1}, vcc")
    def unpack(dst_lo, dst_hi, src):
        a(f"v_and_b32 v{dst_hi}, 0xffff0000, v{src}\nv_lshlrev_b32 v{dst_lo}, 16, v{src}")
    def stream_loads(base, flag):
        for t in range(32):
            if t % 4 == 0 and t: a(f"s_movk_i32 s52, {hex(t * 1024)}")
            so = "s52" if t >= 4 else "0"
            off = (t % 4) * 1024
            a(f"buffer_load_dwordx4 v[{base + 4 * t}:{base + 4 * t + 3}], v2, s[32:35], {so} offen{' offset:%d' % off if off else ''}{flag}")
    def stream_srd(plo, phi):
        a(f"""s_lshl_b32 s52, s30, 20
              s_lshl_b32 s53, s31, 17
              s_add_u32 s52, s52, s53
              s_and_b32 s53, s3, 3
              s_lshl_b32 s53, s53, 15
              s_add_u32 s52, s52, s53
              s_mov_b32 s34, 0x8000
              s_mov_b32 s35, 0x20000
              s_waitcnt lgkmcnt(0)
              s_add_u32 s32, {plo}, s52
              s_addc_u32 s33, {phi}, 0
              s_and_b32 s33, s33, 0xffff
              s_load_dword s44, s[26:27], 0""")
        if P["b0"]: a("s_barrier")
    def poll_tail(lbl, done):
        a(f"""s_cbranch_vccz {done}
              s_add_u32 s60, s60, 1
              s_cmp_lt_u32 s60, {POLL_CAP}""")
        if P["poll_sleep"]: a(f"s_sleep {P['poll_sleep']}")
        a(f"s_cbranch_scc1 {lbl}")
    def bad_any(acc):
        a(f"v_cmp_ne_u32_sdwa vcc, v{acc}, v{63} src0_sel:BYTE_0 src1_sel:DWORD")

    a(f"""s_cmp_ge_u32 s2, 256
          s_cbranch_scc1 L_end
          s_load_dwordx16 s[4:19], s[0:1], 0
          s_load_dwordx8 s[20:27], s[0:1], 64""")
    if P["stamps"]:
        for n in range(12): a(f"s_mov_b64 s[{70 + 2 * n}:{71 + 2 * n}], 0")
        a("s_memrealtime s[70:71]")
    a(f"""v_lshrrev_b32 v1, 6, v0
          v_and_b32 v0, 63, v0
          s_and_b32 s28, s2, 7
          v_readfirstlane_b32 s3, v1
          s_lshr_b32 s29, s2, 3
          s_lshr_b32 s30, s29, 3
          s_lshl_b32 s52, s28, 2
          s_add_u32 s30, s30, s52
          s_and_b32 s31, s29, 7
          v_lshlrev_b32 v2, 4, v0
          s_cmp_lt_u32 s3, 4
          s_cbranch_scc1 L_H
          s_cmp_ge_u32 s3, 8
          s_cbranch_scc1 L_V""")

    KB = 40
    a("L_K:\ns_setprio 2")
    stream_srd("s6", "s7")
    stamp(1)
    stream_loads(KB, KV)
    stamp(2)
    ws_srd()
    a(f"""v_and_b32 v8, 15, v0
          v_lshlrev_b32 v8, 4, v8
          v_mov_b32 v9, 0
          s_mov_b32 s54, 0xcccccccc
          s_mov_b32 s55, 0xcccccccc
          s_mov_b32 s56, 0xaaaaaaaa
          s_mov_b32 s57, 0xaaaaaaaa
          s_mov_b32 s60, 0
          s_waitcnt lgkmcnt(0)""")
    tag_setup()
    a(f"""L_K_wait:
          ds_read_b32 v3, v9 offset:{L_FLAG}
          s_waitcnt lgkmcnt(0)
          v_readfirstlane_b32 s52, v3
          s_cmp_eq_u32 s52, s44
          s_cbranch_scc1 L_K_go
          s_sleep 1
          s_add_u32 s60, s60, 1
          s_cmp_lt_u32 s60, {POLL_CAP}
          s_cbranch_scc1 L_K_wait
          L_K_go:
          ds_read_b128 v[4:7], v8 offset:{L_Q}
          s_waitcnt lgkmcnt(0)""")
    stamp(3)
    for b in range(2):
        R = lambda t, k=0: KB + 4 * (16 * b + t) + k
        for t in range(16):
            a(f"s_waitcnt vmcnt({31 - (16 * b + t)})")
            a(f"v_dot2_f32_bf16 v{R(t)}, v{R(t)}, v4, 0")
            for k in range(1, 4): a(f"v_dot2_f32_bf16 v{R(t)}, v{R(t, k)}, v{4 + k}, v{R(t)}")
        for u in range(8):
            a(f"v_add_f32_dpp v{R(u, 1)}, v{R(u)}, v{R(u)} row_ror:8 row_mask:0xf bank_mask:0x3")
        for u in range(8):
            a(f"v_add_f32_dpp v{R(u, 1)}, v{R(u + 8)}, v{R(u + 8)} row_ror:8 row_mask:0xf bank_mask:0xc")
        for u in range(4):
            a(f"v_add_f32_dpp v{R(u, 2)}, v{R(u, 1)}, v{R(u, 1)} row_shl:4 row_mask:0xf bank_mask:0x5")
        for u in range(4):
            a(f"v_add_f32_dpp v{R(u, 2)}, v{R(u + 4, 1)}, v{R(u + 4, 1)} row_shr:4 row_mask:0xf bank_mask:0xa")
        for u in range(4):
            a(f"v_add_f32_dpp v{R(u, 3)}, v{R(u, 2)}, v{R(u, 2)} quad_perm:[2,3,0,1] {DPPF}")
        for u in range(2):
            a(f"v_cndmask_b32 v{R(u + 4, 3)}, v{R(u, 3)}, v{R(u + 2, 3)}, s[54:55]")
        for u in range(2):
            a(f"v_add_f32_dpp v{R(u + 6, 3)}, v{R(u + 4, 3)}, v{R(u + 4, 3)} quad_perm:[1,0,3,2] {DPPF}")
        a(f"v_cndmask_b32 v{10 + b}, v{R(6, 3)}, v{R(7, 3)}, s[56:57]")
    stamp(4)
    a(f"v_cvt_pk_bf16_f32 v12, v10, v11")
    unpack(10, 11, 12)
    a(f"""v_mul_f32 v10, {SCALE}, v10
          v_mul_f32 v11, {SCALE}, v11
          v_cvt_pk_bf16_f32 v12, v10, v11""")
    unpack(10, 11, 12)
    a("v_max_f32 v13, v10, v11")
    row_allreduce("v_max_f32", [13]); cross_rows("v_max_f32", [13], [14])
    a(f"""v_sub_f32 v10, v10, v13
          v_sub_f32 v11, v11, v13
          v_mul_f32 v10, {LOG2E}, v10
          v_mul_f32 v11, {LOG2E}, v11
          v_exp_f32 v10, v10
          v_exp_f32 v11, v11
          s_and_b32 s52, s3, 3
          s_lshl_b32 s53, s52, 9
          v_lshl_add_u32 v8, v0, 3, s53
          v_add_f32 v14, v10, v11
          v_cvt_pk_bf16_f32 v16, v10, v10
          v_cvt_pk_bf16_f32 v17, v11, v11
          ds_write_b64 v8, v[16:17] offset:{L_P}""")
    row_allreduce("v_add_f32", [14]); cross_rows("v_add_f32", [14], [15])
    a(f"""s_lshl_b32 s53, s52, 3
          v_mov_b32 v9, s53
          v_mov_b32 v18, v13
          v_mov_b32 v19, v14
          s_mov_b64 exec, 1
          ds_write_b64 v9, v[18:19] offset:{L_ST}
          s_mov_b64 exec, -1
          s_setprio 0
          s_waitcnt lgkmcnt(0)""")
    stamp(5)
    a("s_branch L_T")

    a("L_V:")
    stream_srd("s8", "s9")
    stamp(1)
    stream_loads(KB, KV)
    stamp(2)
    ws_srd(); perm_sel()
    sel_masks(36, 3, 4, 5)
    a(f"""s_and_b32 s61, s3, 3
          s_sub_u32 s52, s29, 16
          s_mul_i32 s53, s28, 11
          s_add_u32 s62, s53, s52
          s_cmp_lt_u32 s52, 11
          s_cselect_b32 s53, 1, 0
          s_cmp_lt_u32 s62, 86
          s_cselect_b32 s63, s53, 0
          s_cmp_eq_u32 s63, 1
          s_cselect_b32 s42, {hex(1376 * 1024)}, 0
          s_mov_b32 s40, s20
          s_and_b32 s41, s21, 0xffff
          s_mov_b32 s43, 0x20000
          s_lshl_b32 s64, s62, 14
          s_lshl_b32 s52, s61, 8
          s_add_u32 s64, s64, s52
          v_lshrrev_b32 v3, 4, v0
          v_and_b32 v4, 15, v0
          v_lshlrev_b32 v1, 10, v3
          v_lshl_add_u32 v1, v4, 4, v1
          v_lshrrev_b32 v5, 3, v4
          v_lshl_add_u32 v5, v5, 1, v3
          v_lshlrev_b32 v5, 7, v5
          v_and_b32 v4, 7, v0
          v_lshl_add_u32 v19, v4, 4, v5
          s_mul_i32 s52, s61, {R_STRIDE}
          v_add_u32 v19, s52, v19
          s_lshl_b32 s53, s61, 9
          v_lshl_add_u32 v6, v0, 3, s53
          s_lshl_b32 s53, s61, 3
          v_mov_b32 v7, s53
          v_mov_b32 v3, 0
          s_waitcnt lgkmcnt(0)""")
    tag_setup()
    a("s_barrier")
    stamp(3)
    a(f"""s_setprio 3
          ds_read_b64 v[4:5], v6 offset:{L_P}
          ds_read_b128 v[8:11], v3 offset:{L_ST}
          ds_read_b128 v[12:15], v3 offset:{L_ST + 16}
          ds_read_b64 v[16:17], v7 offset:{L_ST}
          ds_read_b32 v18, v3 offset:{L_MODE}
          s_waitcnt lgkmcnt(0)
          v_readfirstlane_b32 s65, v18
          v_max3_f32 v8, v8, v10, v12
          v_max_f32 v8, v8, v14
          v_sub_f32 v18, v16, v8
          v_mul_f32 v18, {LOG2E}, v18
          v_exp_f32 v18, v18
          s_cmp_eq_u32 s61, 0
          s_cselect_b64 vcc, -1, 0
          v_cndmask_b32 v20, 0, v8, vcc
          v_mul_f32 v21, v18, v17
          v_mov_b32 v22, 0
          v_mov_b32 v23, 0
          v_mov_b32 v7, s52
          s_mov_b64 exec, 1
          ds_write_b128 v7, v[20:23] offset:{L_R + 512}
          s_mov_b64 exec, -1""")
    for t in range(32):
        A = 28 + 4 * (t & 1)
        for r in range(4):
            a(f"v_and_b32_dpp v{A + r}, v{4 + (t >> 4)}, v{36 + r} row_newbcast:{t & 15} {DPPF}")
        a(f"s_waitcnt vmcnt({31 - t + (4 if t > 5 else 0)})")
        a(f"v_mfma_f32_16x16x32_bf16 v[24:27], v[{A}:{A + 3}], v[{KB + 4 * t}:{KB + 4 * t + 3}], {'0' if t == 0 else 'v[24:27]'}")
        if t == 5:
            for u in range(4):
                a(f"s_add_u32 s52, s64, {u * 4096}")
                a(f"buffer_load_dwordx4 v[{KB + 4 * u}:{KB + 4 * u + 3}], v1, s[40:43], s52 offen")
    stamp(4)
    a(f"""v_mul_f32 v24, v18, v24
          v_mul_f32 v25, v18, v25
          v_mul_f32 v26, v18, v26
          v_mul_f32 v27, v18, v27""")
    setexec(0xffffffff)
    a(f"""ds_write_b128 v19, v[24:27] offset:{L_R}
          s_mov_b64 exec, -1
          s_waitcnt lgkmcnt(0)
          s_barrier""")
    stamp(5)
    a(f"""s_cmp_lg_u32 s61, 0
          s_cbranch_scc1 L_V_nopub""")
    setexec((1 << 33) - 1)
    for k in range(4): a(f"ds_read_b128 v[{56 + 4 * k}:{59 + 4 * k}], v2 offset:{L_R + k * R_STRIDE}")
    a(f"""s_lshl_b32 s52, s28, 5
          s_add_u32 s52, s52, s29
          s_lshl_b32 s52, s52, 10
          s_add_u32 s52, s52, {hex(WS_O)}
          v_mov_b32 v3, s44
          s_waitcnt lgkmcnt(0)""")
    for r in range(4): a(f"v_add_f32 v{56 + r}, v{56 + r}, v{60 + r}")
    for r in range(4): a(f"v_add_f32 v{64 + r}, v{64 + r}, v{68 + r}")
    for r in range(4): a(f"v_add_f32 v{56 + r}, v{56 + r}, v{64 + r}")
    put_tags(56, 3)
    a(f"""s_cmp_eq_u32 s65, s44
          s_cbranch_scc1 L_V_fast
          buffer_store_dwordx4 v[56:59], v2, s[36:39], s52 offen sc1
          s_branch L_V_pubd
          L_V_fast:
          buffer_store_dwordx4 v[56:59], v2, s[36:39], s52 offen
          L_V_pubd:
          s_mov_b64 exec, -1""")
    stamp(6)
    a(f"""L_V_nopub:
          s_cmp_eq_u32 s63, 1
          s_cbranch_scc1 L_V_ffn
          s_cmp_lg_u32 s61, 0
          s_cbranch_scc1 L_exit
          s_cmp_ge_u32 s29, 16
          s_cbranch_scc1 L_exit""")
    a(f"""v_and_b32 v4, 7, v0
          v_lshrrev_b32 v5, 3, v0
          v_mul_u32_u24 v4, 144, v4
          v_lshl_add_u32 v4, v5, 4, v4
          v_lshlrev_b32 v5, 4, v5
          s_lshl_b32 s52, s28, 11
          s_lshl_b32 s53, s29, 7
          s_add_u32 s52, s52, s53
          s_add_u32 s52, s52, {hex(WS_A)}
          v_mov_b32 v3, s44
          s_barrier
          ds_read_b128 v[56:59], v4 offset:{L_A}
          s_waitcnt lgkmcnt(0)""")
    stamp(7)
    oct_allreduce("v_add_f32", [56, 57, 58, 59])
    put_tags(56, 3)
    setexec(0x0101010101010101)
    a("buffer_store_dwordx4 v[56:59], v5, s[36:39], s52 offen sc1")
    stamp(8)
    a("s_branch L_exit")
    a(f"""L_V_ffn:
          v_lshrrev_b32 v4, 4, v0
          v_and_b32 v5, 3, v0
          v_lshl_add_u32 v4, v5, 2, v4
          v_mul_u32_u24 v4, 40, v4
          v_bfe_u32 v5, v0, 2, 2
          v_lshl_add_u32 v4, v5, 3, v4
          v_and_b32 v5, 15, v0
          v_lshlrev_b32 v5, 5, v5
          v_lshrrev_b32 v6, 4, v0
          v_lshl_add_u32 v5, v6, 4, v5
          s_lshl_b32 s52, s62, 11
          s_lshl_b32 s53, s61, 9
          s_add_u32 s52, s52, s53
          s_add_u32 s52, s52, {hex(WS_F)}
          v_mov_b32 v3, s44
          v_mov_b32 v20, {f32(GC2)}
          v_mov_b32 v21, {f32(GC1)}
          s_barrier
          s_barrier
          ds_read_b64 v[8:9], v4 offset:{L_A}
          ds_read_b64 v[10:11], v4 offset:{L_A + 640}
          s_waitcnt lgkmcnt(0)""")
    stamp(7)
    a(f"""v_add_f32 v8, v8, v9
          v_add_f32 v10, v10, v11
          v_add_f32_dpp v8, v8, v8 row_ror:4 {DPPF}
          v_add_f32_dpp v10, v10, v10 row_ror:4 {DPPF}
          v_add_f32_dpp v8, v8, v8 row_ror:8 {DPPF}
          v_add_f32_dpp v10, v10, v10 row_ror:8 {DPPF}
          v_cvt_pk_bf16_f32 v12, v8, v10""")
    unpack(8, 10, 12)
    a(f"""v_mul_f32 v9, v8, v8
          v_fma_f32 v9, v9, v20, v21
          v_mul_f32 v9, v9, v8
          v_exp_f32 v9, v9
          v_add_f32 v9, 1.0, v9
          v_rcp_f32 v9, v9
          v_mul_f32 v9, v9, v8
          v_cvt_pk_bf16_f32 v9, v9, v9
          v_and_b32 v9, 0xffff0000, v9
          v_mul_f32 v9, v9, v10
          v_cvt_pk_bf16_f32 v4, v9, v9
          s_waitcnt vmcnt(0)""")
    for t in range(4):
        A = 28 + 4 * (t & 1)
        for r in range(4):
            a(f"v_and_b32_dpp v{A + r}, v4, v{36 + r} row_newbcast:{t} {DPPF}")
        a(f"v_mfma_f32_16x16x32_bf16 v[24:27], v[{A}:{A + 3}], v[{KB + 4 * t}:{KB + 4 * t + 3}], {'0' if t == 0 else 'v[24:27]'}")
    setexec(0xffffffff)
    put_tags(24, 3)
    a("buffer_store_dwordx4 v[24:27], v5, s[36:39], s52 offen sc1")
    stamp(8)
    a("s_branch L_exit")

    a(f"""L_H:
          s_setprio 3
          s_cmp_eq_u32 s3, 0
          s_cbranch_scc0 L_H123
          v_lshrrev_b32 v3, 4, v0
          v_and_b32 v4, 15, v0
          v_lshl_add_u32 v5, v4, 2, v3
          s_lshl_b32 s52, s31, 6
          v_add_u32 v5, s52, v5
          v_lshlrev_b32 v5, 1, v5
          v_lshlrev_b32 v6, 13, v3
          v_lshl_add_u32 v6, v4, 4, v6
          s_lshl_b32 s52, s31, 19
          s_lshl_b32 s53, s30, 8
          s_add_u32 s52, s52, s53
          s_mov_b32 s34, 0x400000
          s_mov_b32 s35, 0x20000
          s_mov_b32 s42, 1024
          s_mov_b32 s43, 0x20000
          s_waitcnt lgkmcnt(0)
          s_mov_b32 s40, s4
          s_and_b32 s41, s5, 0xffff
          s_mov_b32 s32, s10
          s_and_b32 s33, s11, 0xffff
          s_load_dword s44, s[26:27], 0""")
    stamp(1)
    a(f"""buffer_load_dwordx4 v[8:11], v2, s[40:43], 0 offen
          buffer_load_ushort v12, v5, s[40:43], 0 offen""")
    for t in range(16):
        a(f"buffer_load_dwordx4 v[{16 + 4 * t}:{19 + 4 * t}], v6, s[32:35], s52 offen{WQ}")
        if t < 15: a("s_add_u32 s52, s52, 0x8000")
    if P["b0"]: a("s_barrier")
    ws_srd()
    sel_masks(88, 13, 14, 15)
    a("s_waitcnt vmcnt(16)")
    for k in range(4): unpack(80 + 2 * k, 81 + 2 * k, 8 + k)
    a("""v_add_f32 v8, v80, v81
         v_add_f32 v9, v82, v83
         v_add_f32 v10, v84, v85
         v_add_f32 v11, v86, v87
         v_add_f32 v8, v8, v9
         v_add_f32 v10, v10, v11
         v_add_f32 v8, v8, v10""")
    row_allreduce("v_add_f32", [8]); cross_rows("v_add_f32", [8], [9])
    a(f"v_mul_f32 v8, {f32(1 / 512)}, v8")
    for k in range(8): a(f"v_sub_f32 v{80 + k}, v{80 + k}, v8")
    a("v_mul_f32 v9, v80, v80")
    for k in range(1, 8): a(f"v_fmac_f32 v9, v{80 + k}, v{80 + k}")
    row_allreduce("v_add_f32", [9]); cross_rows("v_add_f32", [9], [10])
    a(f"""v_mul_f32 v9, {f32(1 / 512)}, v9
          v_cvt_pk_bf16_f32 v10, v8, v9""")
    unpack(8, 9, 10)
    a(f"""v_add_f32 v9, {EPS}, v9
          v_cvt_pk_bf16_f32 v9, v9, v9
          v_and_b32 v9, 0xffff0000, v9
          v_sqrt_f32 v9, v9
          v_lshlrev_b32 v12, 16, v12
          v_sub_f32 v12, v12, v8
          v_cvt_pk_bf16_f32 v9, v9, v9
          v_cvt_pk_bf16_f32 v12, v12, v12
          v_and_b32 v9, 0xffff0000, v9
          v_and_b32 v12, 0xffff0000, v12
          v_rcp_f32 v10, v9
          v_mul_f32 v11, v12, v10
          v_fma_f32 v13, -v11, v9, v12
          v_fma_f32 v11, v13, v10, v11
          v_cvt_pk_bf16_f32 v12, v11, v11""")
    stamp(2)
    for t in range(16):
        A = 96 + 4 * (t & 1)
        for r in range(4):
            a(f"v_and_b32_dpp v{A + r}, v12, v{88 + r} row_newbcast:{t} {DPPF}")
        a(f"s_waitcnt vmcnt({15 - t})")
        a(f"v_mfma_f32_16x16x32_bf16 v[92:95], v[{A}:{A + 3}], v[{16 + 4 * t}:{19 + 4 * t}], {'0' if t == 0 else 'v[92:95]'}")
    a(f"""v_lshlrev_b32 v4, 6, v4
          v_lshl_add_u32 v4, v3, 5, v4
          s_lshl_b32 s53, s30, 13
          s_add_u32 s53, s53, {hex(WS_Q)}
          s_lshl_b32 s52, s31, 10
          s_add_u32 s52, s52, s53
          s_waitcnt lgkmcnt(0)""")
    tag_setup()
    a(f"""v_mov_b32 v9, s44
          v_mov_b32 v11, s44
          v_mov_b32 v13, s44
          v_mov_b32 v15, s44
          v_mov_b32 v8, v92
          v_mov_b32 v10, v93
          v_mov_b32 v12, v94
          v_mov_b32 v14, v95""")
    setexec(0xffffffff)
    a(f"""buffer_store_dwordx4 v[8:11], v4, s[36:39], s52 offen sc1
          buffer_store_dwordx4 v[12:15], v4, s[36:39], s52 offen offset:16 sc1
          s_mov_b64 exec, -1""")
    stamp(3)
    a(f"""s_add_u32 s52, s53, 4096
          s_mov_b32 s60, 0""")
    if P["q_sleep"]: a(f"s_sleep {P['q_sleep']}")
    a("L_H0_poll:")
    for p in range(8):
        a(f"buffer_load_dwordx4 v[{16 + 4 * p}:{19 + 4 * p}], v2, s[36:39], {'s53' if p < 4 else 's52'} offen offset:{(p & 3) * 1024} sc1")
    for p in range(8):
        a(f"s_waitcnt vmcnt({7 - p})")
        if p == 0: a(f"v_xor_b32 v8, s44, v17")
        else: a(f"v_bitop3_b32 v8, v8, v{17 + 4 * p}, s44 bitop3:0xf6")
        a(f"v_bitop3_b32 v8, v8, v{19 + 4 * p}, s44 bitop3:0xf6")
    a("v_cmp_ne_u32 vcc, 0, v8")
    poll_tail("L_H0_poll", "L_H0_got")
    a("L_H0_got:")
    for p in range(1, 8):
        a(f"v_add_f32 v16, v16, v{16 + 4 * p}\nv_add_f32 v18, v18, v{18 + 4 * p}")
    a(f"""v_cvt_pk_bf16_f32 v16, v16, v18
          v_lshlrev_b32 v3, 2, v0
          v_mov_b32 v4, 0
          v_mov_b32 v5, s44
          ds_write_b32 v3, v16 offset:{L_Q}
          s_waitcnt lgkmcnt(0)
          s_mov_b64 exec, 1
          ds_write_b32 v4, v5 offset:{L_FLAG}
          s_mov_b64 exec, -1
          s_waitcnt lgkmcnt(0)""")
    stamp(4)
    a("s_branch L_T")

    a(f"""L_H123:
          s_waitcnt lgkmcnt(0)
          s_load_dword s44, s[26:27], 0""")
    ws_srd()
    if P["prefetch_code"]:
        a(f"""s_cmp_eq_u32 s3, 2
              s_cbranch_scc0 L_H_nopf
              s_getpc_b64 s[52:53]
              L_pc:
              s_sub_u32 s52, s52, L_pc-{NAME}
              s_subb_u32 s53, s53, 0
              v_lshlrev_b32 v3, 6, v0
              v_min_u32 v4, L_end-{NAME}, v3
              global_load_dword v100, v4, s[52:53]
              v_add_u32 v3, 4096, v3
              v_min_u32 v4, L_end-{NAME}, v3
              global_load_dword v101, v4, s[52:53]
              v_add_u32 v3, 4096, v3
              v_min_u32 v4, L_end-{NAME}, v3
              global_load_dword v102, v4, s[52:53]
              v_add_u32 v3, 4096, v3
              v_min_u32 v4, L_end-{NAME}, v3
              global_load_dword v103, v4, s[52:53]
              L_H_nopf:""")
    if P["b0"]: a("s_barrier")
    a("s_waitcnt lgkmcnt(0)")
    tag_setup()
    a(f"""s_cmp_eq_u32 s3, 1
          s_cbranch_scc0 L_T
          s_getreg_b32 s54, hwreg(HW_REG_XCC_ID, 0, 4)
          s_lshl_b32 s55, s54, 8
          s_lshl_b32 s53, s28, 11
          s_add_u32 s53, s53, {hex(WS_X)}
          s_cmp_ge_u32 s29, 16
          s_cbranch_scc1 L_H1_nopub""")
    perm_sel()
    a(f"""v_mov_b32 v3, s44
          v_mov_b32 v4, s55
          v_mov_b32 v5, s55
          v_mov_b32 v6, s55
          v_mov_b32 v7, s55""")
    put_tags(4, 3)
    a(f"""s_lshl_b32 s52, s29, 7
          s_add_u32 s52, s52, s53
          v_mov_b32 v3, 0
          s_mov_b64 exec, 1
          buffer_store_dwordx4 v[4:7], v3, s[36:39], s52 offen sc1
          s_mov_b64 exec, -1
          L_H1_nopub:
          v_mov_b32 v9, 0
          v_mov_b32 v63, 0
          s_mov_b32 s60, 0
          L_H1_wait:
          ds_read_b32 v3, v9 offset:{L_FLAG}
          s_waitcnt lgkmcnt(0)
          v_readfirstlane_b32 s52, v3
          s_cmp_eq_u32 s52, s44
          s_cbranch_scc1 L_H1_go
          s_sleep 4
          s_add_u32 s60, s60, 1
          s_cmp_lt_u32 s60, {POLL_CAP}
          s_cbranch_scc1 L_H1_wait
          L_H1_go:
          v_and_b32 v3, 15, v0
          v_lshlrev_b32 v3, 7, v3
          s_mov_b32 s60, 0
          L_H1_poll:
          buffer_load_dwordx4 v[4:7], v3, s[36:39], s53 offen sc1
          s_waitcnt vmcnt(0)""")
    chk_tags(8, 4, True)
    bad_any(8)
    poll_tail("L_H1_poll", "L_H1_got")
    a(f"""s_mov_b32 s55, -1
          L_H1_got:
          v_and_b32 v4, 0xffffff00, v4
          v_cmp_ne_u32 vcc, s55, v4
          s_cmp_eq_u64 vcc, 0
          s_cselect_b32 s52, s44, 0""")
    if P["force_safe"]: a("s_mov_b32 s52, 0")
    a(f"""v_mov_b32 v4, s52
          s_mov_b64 exec, 1
          ds_write_b32 v9, v4 offset:{L_MODE}
          s_mov_b64 exec, -1
          s_waitcnt lgkmcnt(0)""")

    a(f"""L_T:
          s_setprio 0
          s_sub_u32 s52, s29, 16
          s_mul_i32 s53, s28, 11
          s_add_u32 s62, s53, s52
          v_lshrrev_b32 v3, 4, v0
          v_bfe_u32 v4, v0, 3, 1
          v_and_b32 v5, 7, v0
          v_lshl_add_u32 v6, v4, 2, v3
          v_bfe_u32 v7, v0, 2, 2
          v_lshl_add_u32 v7, v3, 3, v7
          v_lshlrev_b32 v7, 6, v7
          v_and_b32 v8, 3, v0
          v_lshl_add_u32 v7, v8, 3, v7
          s_lshl_b32 s61, s3, 12
          s_add_u32 s61, s61, {L_W}
          v_add_u32 v7, s61, v7
          v_lshrrev_b32 v9, 2, v0
          v_mov_b32 v63, 0
          s_mov_b32 s60, 0
          s_cmp_lt_u32 s29, 16
          s_cbranch_scc1 L_T_wo
          s_cmp_lt_u32 s52, 11
          s_cbranch_scc0 L_T_other
          s_cmp_lt_u32 s62, 86
          s_cbranch_scc1 L_T_ffn
          L_T_other:
          s_sub_u32 s52, s29, 27
          s_cmp_lt_u32 s52, 4
          s_cselect_b32 s53, 1, 0
          s_cmp_lt_u32 s3, 2
          s_cselect_b32 s53, s53, 0
          s_cmp_eq_u32 s53, 1
          s_cbranch_scc1 L_T_fin
          s_barrier
          s_barrier
          s_branch L_exit""")

    def tr_reads():
        for s in range(2):
            for nt in range(2):
                for hf in range(2):
                    r = 16 + 8 * s + 4 * nt + 2 * hf
                    a(f"ds_read_b64_tr_b16 v[{r}:{r + 1}], v7 offset:{s * 2048 + nt * 32 + hf * 256}")
    def gemv_tile(A):
        for r in range(4): a(f"v_mov_b32_dpp v{A + 4 + r}, v{A + r} row_ror:8 {DPPF}")
        a(f"""v_mfma_f32_16x16x32_bf16 v[56:59], v[{A}:{A + 3}], v[16:19], 0
              v_mfma_f32_16x16x32_bf16 v[64:67], v[{A}:{A + 3}], v[20:23], 0
              v_mfma_f32_16x16x32_bf16 v[56:59], v[{A + 4}:{A + 7}], v[24:27], v[56:59]
              v_mfma_f32_16x16x32_bf16 v[64:67], v[{A + 4}:{A + 7}], v[28:31], v[64:67]
              s_mov_b32 s54, 0xffff0000
              s_mov_b32 s55, 0
              v_cndmask_b32 v56, v56, v64, s[54:55]""")

    a(f"""L_T_wo:
          v_lshlrev_b32 v10, 10, v9
          v_lshl_add_u32 v10, v8, 4, v10
          s_lshl_b32 s52, s28, 9
          s_lshl_b32 s53, s3, 6
          s_add_u32 s52, s52, s53
          s_lshl_b32 s52, s52, 10
          s_lshl_b32 s53, s29, 6
          s_add_u32 s52, s52, s53""")
    srd(40, "s12", "s13", "0x400000")
    a("s_barrier")
    stamp(6)
    for t in range(4):
        a(f"""s_add_u32 m0, s61, {t * 1024}
              s_add_u32 s53, s52, {t * 16384}
              buffer_load_dwordx4 v10, s[40:43], s53 offen lds""")
    a(f"""v_lshlrev_b32 v11, 10, v5
          v_lshl_add_u32 v12, v6, 4, v11
          s_lshl_b32 s52, s28, 5
          s_lshr_b32 s53, s3, 1
          s_lshl_b32 s53, s53, 3
          s_add_u32 s52, s52, s53
          s_lshl_b32 s52, s52, 10
          s_add_u32 s52, s52, {hex(WS_O)}
          s_and_b32 s53, s3, 1
          s_lshl_b32 s53, s53, 8
          s_add_u32 s53, s53, s52
          v_and_b32 v13, 31, v0
          v_lshlrev_b32 v13, 2, v13
          s_mul_i32 s54, s3, 144
          v_add_u32 v13, s54, v13
          s_barrier""")
    stamp(7)
    a("s_waitcnt vmcnt(0)")
    tr_reads()
    stamp(8)
    a(f"""L_wo_poll:
          buffer_load_dwordx4 v[32:35], v11, s[36:39], s52 offen offset:512 sc1
          buffer_load_dwordx4 v[36:39], v12, s[36:39], s53 offen sc1
          buffer_load_dwordx4 v[40:43], v12, s[36:39], s53 offen offset:128 sc1
          s_waitcnt vmcnt(2)""")
    chk_tags(14, 32, True)
    a("s_waitcnt vmcnt(1)"); chk_tags(14, 36, False)
    a("s_waitcnt vmcnt(0)"); chk_tags(14, 40, False)
    bad_any(14)
    poll_tail("L_wo_poll", "L_wo_got")
    a("L_wo_got:")
    stamp(9)
    a(f"""v_and_b32 v32, 0xffffff00, v32
          v_mov_b32 v34, v32""")
    oct_allreduce("v_max_f32", [34])
    a(f"""v_sub_f32 v32, v32, v34
          v_mul_f32 v32, {LOG2E}, v32
          v_exp_f32 v32, v32
          v_mul_f32 v33, v32, v33""")
    oct_allreduce("v_add_f32", [33])
    a(f"""v_rcp_f32 v33, v33
          v_mul_f32 v32, v32, v33""")
    for r in range(8): a(f"v_mul_f32 v{36 + r}, v32, v{36 + r}")
    oct_allreduce("v_add_f32", list(range(36, 44)))
    for r in range(4): a(f"v_cvt_pk_bf16_f32 v{44 + r}, v{36 + 2 * r}, v{37 + 2 * r}")
    a("s_waitcnt lgkmcnt(0)")
    gemv_tile(44)
    setexec(0xffffffff)
    a(f"""ds_write_b32 v13, v56 offset:{L_A}
          s_waitcnt lgkmcnt(0)
          s_barrier""")
    stamp(10)
    a("s_branch L_exit")

    a(f"""L_T_ffn:
          s_lshl_b32 s52, s3, 6
          v_add_u32 v10, s52, v9
          v_mul_u32_u24 v10, 2752, v10
          v_and_b32 v11, 1, v0
          v_lshl_add_u32 v10, v11, 4, v10
          s_lshl_b32 s52, s62, 5
          v_add_u32 v10, s52, v10
          v_mov_b32 v14, s16
          v_mov_b32 v15, s17
          v_mov_b32 v12, s18
          v_mov_b32 v13, s19
          s_mov_b32 s54, 0xcccccccc
          s_mov_b32 s55, 0xcccccccc
          v_cndmask_b32 v14, v14, v12, s[54:55]
          v_cndmask_b32 v15, v15, v13, s[54:55]
          v_add_co_u32 v14, vcc, v14, v10
          v_addc_co_u32 v15, vcc, 0, v15, vcc
          v_lshlrev_b32 v12, 4, v6
          s_lshl_b32 s52, s3, 7
          v_add_u32 v12, s52, v12""")
    srd(40, "s4", "s5", "1024")
    a(f"""buffer_load_dwordx4 v[48:51], v12, s[40:43], 0 offen
          s_barrier""")
    stamp(6)
    for t in range(4):
        a(f"s_add_u32 m0, s61, {t * 1024}\nglobal_load_lds_dwordx4 v[14:15], off")
        if t < 3: a("v_add_co_u32 v14, vcc, 44032, v14\nv_addc_co_u32 v15, vcc, 0, v15, vcc")
    a(f"""v_lshlrev_b32 v11, 11, v5
          v_lshl_add_u32 v12, v12, 1, v11
          s_mov_b32 s52, {hex(WS_A)}
          v_and_b32 v13, 31, v0
          v_mul_u32_u24 v13, 40, v13
          s_lshl_b32 s54, s3, 2
          v_add_u32 v13, s54, v13
          s_lshl_b32 s54, s3, 4
          v_mov_b32 v10, s54
          v_lshlrev_b32 v9, 4, v5
          s_barrier""")
    stamp(7)
    a("s_waitcnt vmcnt(0)")
    tr_reads()
    for k in range(4): unpack(68 + 2 * k, 69 + 2 * k, 48 + k)
    stamp(8)
    a(f"""L_ffn_poll:
          buffer_load_dwordx4 v[36:39], v12, s[36:39], s52 offen sc1
          buffer_load_dwordx4 v[40:43], v12, s[36:39], s52 offen offset:16 sc1
          s_waitcnt vmcnt(1)""")
    chk_tags(14, 36, True)
    a("s_waitcnt vmcnt(0)"); chk_tags(14, 40, False)
    bad_any(14)
    poll_tail("L_ffn_poll", "L_ffn_got")
    a("L_ffn_got:")
    stamp(9)
    oct_allreduce("v_add_f32", list(range(36, 44)))
    for r in range(4): a(f"v_cvt_pk_bf16_f32 v{44 + r}, v{36 + 2 * r}, v{37 + 2 * r}")
    for r in range(4): unpack(36 + 2 * r, 37 + 2 * r, 44 + r)
    for r in range(4): a(f"v_pk_add_f32 v[{36 + 2 * r}:{37 + 2 * r}], v[{36 + 2 * r}:{37 + 2 * r}], v[{68 + 2 * r}:{69 + 2 * r}]")
    for r in range(4): a(f"v_cvt_pk_bf16_f32 v{44 + r}, v{36 + 2 * r}, v{37 + 2 * r}")
    for r in range(4): unpack(36 + 2 * r, 37 + 2 * r, 44 + r)
    a("v_readfirstlane_b32 s56, v36")
    for r in range(8): a(f"v_subrev_f32 v{44 + r}, s56, v{36 + r}")
    a(f"""v_pk_add_f32 v[52:53], v[44:45], v[46:47]
          v_pk_add_f32 v[54:55], v[48:49], v[50:51]
          v_pk_mul_f32 v[56:57], v[44:45], v[44:45]
          v_pk_add_f32 v[52:53], v[52:53], v[54:55]
          v_pk_fma_f32 v[56:57], v[46:47], v[46:47], v[56:57]
          v_add_f32 v53, v52, v53
          v_pk_fma_f32 v[56:57], v[48:49], v[48:49], v[56:57]
          v_pk_fma_f32 v[56:57], v[50:51], v[50:51], v[56:57]
          v_add_f32 v54, v56, v57
          v_add_f32_dpp v53, v53, v53 row_ror:8 {DPPF}
          v_mov_b32 v52, s56
          v_add_f32_dpp v54, v54, v54 row_ror:8 {DPPF}""")
    cross_rows("v_add_f32", [53, 54], [56, 57])
    a(f"""s_mov_b64 exec, 1
          v_mov_b32 v55, 0
          ds_write_b128 v10, v[52:55] offset:{L_S2}
          s_mov_b64 exec, -1
          s_waitcnt lgkmcnt(0)
          s_barrier
          ds_read_b128 v[52:55], v9 offset:{L_S2}
          s_waitcnt lgkmcnt(0)""")
    stamp(10)
    a(f"""v_mul_f32 v56, 0x42800000, v52
          v_add_f32 v56, v56, v53""")
    oct_allreduce("v_add_f32", [56])
    a(f"""v_mul_f32 v56, {f32(1 / 512)}, v56
          v_sub_f32 v57, v56, v52
          v_mul_f32 v58, 0x42800000, v57
          v_fmac_f32 v58, -2.0, v53
          v_fma_f32 v57, v58, v57, v54""")
    oct_allreduce("v_add_f32", [57])
    a(f"""v_mul_f32 v57, {f32(1 / 512)}, v57
          v_cvt_pk_bf16_f32 v58, v56, v57""")
    unpack(56, 57, 58)
    a(f"""v_add_f32 v57, {EPS}, v57
          v_cvt_pk_bf16_f32 v57, v57, v57
          v_and_b32 v57, 0xffff0000, v57
          v_sqrt_f32 v57, v57""")
    for r in range(4): a(f"v_pk_add_f32 v[{36 + 2 * r}:{37 + 2 * r}], v[{36 + 2 * r}:{37 + 2 * r}], v[56:57] op_sel_hi:[1,0] neg_lo:[0,1] neg_hi:[0,1]")
    a(f"""v_cvt_pk_bf16_f32 v58, v57, v57
          v_and_b32 v58, 0xffff0000, v58
          v_rcp_f32 v58, v58""")
    for r in range(4): a(f"v_cvt_pk_bf16_f32 v{44 + r}, v{36 + 2 * r}, v{37 + 2 * r}")
    for r in range(4): unpack(36 + 2 * r, 37 + 2 * r, 44 + r)
    for r in range(4): a(f"v_pk_mul_f32 v[{36 + 2 * r}:{37 + 2 * r}], v[{36 + 2 * r}:{37 + 2 * r}], v[58:59] op_sel_hi:[1,0]")
    for r in range(4): a(f"v_cvt_pk_bf16_f32 v{44 + r}, v{36 + 2 * r}, v{37 + 2 * r}")
    gemv_tile(44)
    setexec(0xffffffff)
    a(f"""ds_write_b32 v13, v56 offset:{L_A}
          s_waitcnt lgkmcnt(0)
          s_barrier""")
    stamp(11)
    a("s_branch L_exit")

    a(f"""L_T_fin:
          s_lshl_b32 s53, s28, 2
          s_add_u32 s52, s52, s53
          s_lshl_b32 s52, s52, 1
          s_add_u32 s61, s52, s3
          v_and_b32 v4, 1, v0
          v_lshlrev_b32 v5, 3, v4
          s_lshl_b32 s52, s61, 4
          v_add_u32 v5, s52, v5""")
    srd(40, "s4", "s5", "1024")
    a(f"""buffer_load_dwordx2 v[8:9], v5, s[40:43], 0 offen
          v_lshlrev_b32 v6, 1, v5
          v_bfe_u32 v7, v0, 1, 3
          v_lshl_add_u32 v10, v7, 11, v6
          v_lshrrev_b32 v7, 1, v0
          v_lshl_add_u32 v11, v7, 11, v6
          v_lshl_add_u32 v5, v3, 1, v5
          s_mov_b32 s52, {hex(WS_A)}
          v_mov_b32 v44, 0
          v_mov_b32 v45, 0
          v_mov_b32 v46, 0
          v_mov_b32 v47, 0
          s_barrier
          s_barrier
          s_waitcnt vmcnt(0)""")
    unpack(16, 17, 8); unpack(18, 19, 9)
    srd(40, "s22", "s23", "1024")
    stamp(7)
    a(f"""L_fin_poll1:
          buffer_load_dwordx4 v[20:23], v10, s[36:39], s52 offen sc1
          s_waitcnt vmcnt(0)""")
    chk_tags(14, 20, True)
    bad_any(14)
    poll_tail("L_fin_poll1", "L_fin_got1")
    a("L_fin_got1:")
    stamp(8)
    def fin_dpp(rs):
        for mode in ("quad_perm:[2,3,0,1]", "row_ror:4", "row_ror:8"):
            for r in rs: a(f"v_add_f32_dpp v{r}, v{r}, v{r} {mode} {DPPF}")
    fin_dpp([20, 21, 22, 23])
    a("v_cvt_pk_bf16_f32 v24, v20, v21\nv_cvt_pk_bf16_f32 v25, v22, v23")
    unpack(20, 21, 24); unpack(22, 23, 25)
    for r in range(4): a(f"v_add_f32 v{20 + r}, v{20 + r}, v{16 + r}")
    a(f"""v_cmp_eq_u32 vcc, 1, v3
          v_cndmask_b32 v20, v20, v21, vcc
          v_cmp_eq_u32 vcc, 2, v3
          v_cndmask_b32 v20, v20, v22, vcc
          v_cmp_eq_u32 vcc, 3, v3
          v_cndmask_b32 v20, v20, v23, vcc
          v_cvt_pk_bf16_f32 v20, v20, v20
          v_and_b32 v20, 0xffff0000, v20
          s_mov_b32 s52, {hex(WS_F)}
          s_mov_b32 s53, {hex(WS_F + 0x10000)}
          s_mov_b32 s54, {hex(WS_F + 0x20000)}
          s_mov_b32 s60, 0
          L_fin_poll2:
          buffer_load_dwordx4 v[36:39], v11, s[36:39], s52 offen sc1
          buffer_load_dwordx4 v[40:43], v11, s[36:39], s53 offen sc1""")
    setexec((1 << 44) - 1)
    a(f"""buffer_load_dwordx4 v[44:47], v11, s[36:39], s54 offen sc1
          s_mov_b64 exec, -1
          s_waitcnt vmcnt(2)""")
    chk_tags(14, 36, True)
    a("s_waitcnt vmcnt(1)"); chk_tags(14, 40, False)
    a("s_waitcnt vmcnt(0)")
    setexec((1 << 44) - 1)
    chk_tags(14, 44, False)
    a("s_mov_b64 exec, -1")
    bad_any(14)
    poll_tail("L_fin_poll2", "L_fin_got2")
    a("L_fin_got2:")
    stamp(9)
    for r in range(4): a(f"v_add_f32 v{36 + r}, v{36 + r}, v{40 + r}")
    for r in range(4): a(f"v_add_f32 v{36 + r}, v{36 + r}, v{44 + r}")
    fin_dpp([36, 37, 38, 39])
    a(f"""v_permlane16_swap_b32 v36, v37
          v_permlane16_swap_b32 v38, v39
          v_add_f32 v36, v36, v37
          v_add_f32 v38, v38, v39
          v_permlane32_swap_b32 v36, v38
          v_add_f32 v36, v36, v38
          v_cvt_pk_bf16_f32 v36, v36, v36
          v_and_b32 v36, 0xffff0000, v36
          v_add_f32 v36, v36, v20
          v_cvt_pk_bf16_f32 v36, v36, v36""")
    setexec(0x0003000300030003)
    a(f"""buffer_store_short v36, v5, s[40:43], 0 offen
          s_cmp_lg_u32 s61, 0
          s_cbranch_scc1 L_fin_done
          s_mov_b64 exec, 1
          v_mov_b32 v4, s44
          v_mov_b32 v6, 0
          buffer_store_dword v4, v6, s[36:39], 0 offen
          L_fin_done:""")
    stamp(10)

    a("L_exit:")
    if P["stamps"]:
        a(f"""s_mov_b64 exec, 1
              s_mul_i32 s52, s2, 12
              s_add_u32 s52, s52, s3
              s_lshl_b32 s52, s52, 6
              s_add_u32 s52, s52, {hex(WS_STAMP)}
              v_mov_b32 v3, 0
              s_waitcnt lgkmcnt(0)""")
        for q in range(3):
            for k in range(4): a(f"v_mov_b32 v{4 + 4 * q + k}, s{70 + 2 * (4 * q + k)}")
            a(f"buffer_store_dwordx4 v[{4 + 4 * q}:{7 + 4 * q}], v3, s[36:39], s52 offen offset:{16 * q}")
    a("L_end:\ns_endpgm")

    lines, nops = fix_hazards(a.lines)
    hdr = f"""; Fused pre-LN attention (cached K/V) + GeGLU FFN decode step for gfx950, one launch.
; @launch grid=(256,1,1) block=(768,1,1) lds={LDS_SIZE}
.amdgcn_target "amdgcn-amd-amdhsa--gfx950"
.text
.globl {NAME}
.p2align 8
.type {NAME},@function
{NAME}:
"""
    ftr = f"""
    .fill 32, 4, 0xbf800000
.section .rodata,"a"
.p2align 6
.amdhsa_kernel {NAME}
  .amdhsa_next_free_vgpr 168
  .amdhsa_next_free_sgpr 96
  .amdhsa_accum_offset 168
  .amdhsa_group_segment_fixed_size 0
  .amdhsa_kernarg_size 96
  .amdhsa_user_sgpr_count 2
  .amdhsa_user_sgpr_kernarg_segment_ptr 1
  .amdhsa_system_sgpr_workgroup_id_x 1
  .amdhsa_float_denorm_mode_32 3
.end_amdhsa_kernel
"""
    return hdr + "\n".join(lines) + ftr, nops

if __name__ == "__main__":
    out = sys.argv[1]
    kw = {}
    for x in sys.argv[2:]:
        k, v = x.split("="); kw[k] = int(v)
    s, n = build(**kw)
    open(out, "w").write(s)
    print("wrote", out, "lines", s.count("\n"), "nop states inserted", n)
```

```python
import sys, struct
from asmlib import Asm, fix_hazards

NAME = "sequential_preLN__mha_block_cached__geglu_ffn__decode_kernel"
def f32(x): return "0x%08x" % struct.unpack("<I", struct.pack("<f", x))[0]

WS_X, WS_Q, WS_O, WS_A, WS_F, WS_STAMP, WS_SIZE = 0x1000, 0x10000, 0x50000, 0x90000, 0xA0000, 0x100000, 0x200000
L_Q, L_FLAG, L_MODE, L_ST, L_P, L_R, L_A, L_S2, L_W, LDS_SIZE = 0, 256, 260, 288, 512, 2560, 4736, 6144, 8192, 40960
R_STRIDE = 528
TAG_STEP = 0x9E3779B1
SCALE = f32(128 ** -0.5)
LOG2E = f32(1.4426950408889634)
EPS = f32(1e-5)
GC1 = -2.0 * 0.7978845608028654 * 1.4426950408889634
GC2 = GC1 * 0.044715
DPPF = "row_mask:0xf bank_mask:0xf"
POLL_CAP = 100000

DEF = dict(kv_nt=True, wq_nt=True, stamps=False, q_sleep=24, force_safe=False, prefetch_code=True, poll_sleep=0, b0=True, pad_to=0, lds=LDS_SIZE, out_sc1=False, sgprs=96)

def build(**kw):
    P = dict(DEF); P.update(kw)
    a = Asm()
    KV = " nt" if P["kv_nt"] else ""
    WQ = " nt" if P["wq_nt"] else ""

    def stamp(n):
        if P["stamps"]: a(f"s_memrealtime s[{70 + 2 * n}:{71 + 2 * n}]")
    def srd(d, lo, hi, size):
        a(f"s_mov_b32 s{d}, {lo}\ns_and_b32 s{d + 1}, {hi}, 0xffff\ns_mov_b32 s{d + 2}, {size}\ns_mov_b32 s{d + 3}, 0x20000")
    def ws_srd(): srd(36, "s26", "s27", hex(WS_SIZE))
    def tag_setup():
        a(f"""s_add_u32 s44, s44, {hex(TAG_STEP)}
              s_lshr_b32 s45, s44, 8
              s_lshr_b32 s46, s44, 16
              s_lshr_b32 s47, s44, 24""")
    def perm_sel():
        for k in range(4): a(f"s_mov_b32 s{48 + k}, {hex(0x07060500 + k)}")
    def put_tags(r, vtag):
        for k in range(4): a(f"v_perm_b32 v{r + k}, v{r + k}, v{vtag}, s{48 + k}")
    def chk_tags(acc, r, first):
        for k in range(4):
            if first and k == 0: a(f"v_xor_b32 v{acc}, s44, v{r}")
            else: a(f"v_bitop3_b32 v{acc}, v{acc}, v{r + k}, s{44 + k} bitop3:0xf6")
    def setexec(mask):
        if mask == -1: a("s_mov_b64 exec, -1")
        else: a(f"s_mov_b32 exec_lo, {hex(mask & 0xffffffff)}\ns_mov_b32 exec_hi, {hex(mask >> 32)}")
    def row_allreduce(op, rs):
        for mode in ("quad_perm:[1,0,3,2]", "quad_perm:[2,3,0,1]", "row_half_mirror", "row_mirror"):
            for r in rs: a(f"{op}_dpp v{r}, v{r}, v{r} {mode} {DPPF}")
    def oct_allreduce(op, rs):
        for mode in ("quad_perm:[1,0,3,2]", "quad_perm:[2,3,0,1]", "row_half_mirror"):
            for r in rs: a(f"{op}_dpp v{r}, v{r}, v{r} {mode} {DPPF}")
    def cross_rows(op, rs, tmps):
        for sw in ("v_permlane16_swap_b32", "v_permlane32_swap_b32"):
            for r, t in zip(rs, tmps): a(f"v_mov_b32 v{t}, v{r}")
            for r, t in zip(rs, tmps): a(f"{sw} v{t}, v{r}")
            for r, t in zip(rs, tmps): a(f"{op} v{r}, v{r}, v{t}")
    def sel_masks(m, t0, t1, t2):
        a(f"""v_bfe_u32 v{t0}, v0, 1, 3
              v_and_b32 v{t1}, 1, v0
              v_lshlrev_b32 v{t1}, 4, v{t1}
              v_mov_b32 v{t2}, 0xffff
              v_lshlrev_b32 v{t1}, v{t1}, v{t2}""")
        for r in range(4):
            a(f"v_cmp_eq_u32 vcc, {r}, v{t0}\nv_cndmask_b32 v{m + r}, 0, v{t1}, vcc")
    def unpack(dst_lo, dst_hi, src):
        a(f"v_and_b32 v{dst_hi}, 0xffff0000, v{src}\nv_lshlrev_b32 v{dst_lo}, 16, v{src}")
    def stream_loads(base, flag):
        for t in range(32):
            if t % 4 == 0 and t: a(f"s_movk_i32 s52, {hex(t * 1024)}")
            so = "s52" if t >= 4 else "0"
            off = (t % 4) * 1024
            a(f"buffer_load_dwordx4 v[{base + 4 * t}:{base + 4 * t + 3}], v2, s[32:35], {so} offen{' offset:%d' % off if off else ''}{flag}")
    def stream_srd(plo, phi):
        a(f"""s_lshl_b32 s52, s30, 20
              s_lshl_b32 s53, s31, 17
              s_add_u32 s52, s52, s53
              s_and_b32 s53, s3, 3
              s_lshl_b32 s53, s53, 15
              s_add_u32 s52, s52, s53
              s_mov_b32 s34, 0x8000
              s_mov_b32 s35, 0x20000
              s_waitcnt lgkmcnt(0)
              s_add_u32 s32, {plo}, s52
              s_addc_u32 s33, {phi}, 0
              s_and_b32 s33, s33, 0xffff
              s_load_dword s44, s[26:27], 0""")
        if P["b0"]: a("s_barrier")
    def poll_tail(lbl, done):
        a(f"""s_cbranch_vccz {done}
              s_add_u32 s60, s60, 1
              s_cmp_lt_u32 s60, {POLL_CAP}""")
        if P["poll_sleep"]: a(f"s_sleep {P['poll_sleep']}")
        a(f"s_cbranch_scc1 {lbl}")
    def bad_any(acc):
        a(f"v_cmp_ne_u32_sdwa vcc, v{acc}, v{63} src0_sel:BYTE_0 src1_sel:DWORD")

    a(f"""s_cmp_ge_u32 s2, 256
          s_cbranch_scc1 L_end
          s_load_dwordx16 s[4:19], s[0:1], 0
          s_load_dwordx8 s[20:27], s[0:1], 64""")
    if P["stamps"]:
        for n in range(12): a(f"s_mov_b64 s[{70 + 2 * n}:{71 + 2 * n}], 0")
        a("s_memrealtime s[70:71]")
    if P["pad_to"]: a("s_memrealtime s[68:69]")
    a(f"""v_lshrrev_b32 v1, 6, v0
          v_and_b32 v0, 63, v0
          s_and_b32 s28, s2, 7
          v_readfirstlane_b32 s3, v1
          s_lshr_b32 s29, s2, 3
          s_lshr_b32 s30, s29, 3
          s_lshl_b32 s52, s28, 2
          s_add_u32 s30, s30, s52
          s_and_b32 s31, s29, 7
          v_lshlrev_b32 v2, 4, v0
          s_cmp_lt_u32 s3, 4
          s_cbranch_scc1 L_H
          s_cmp_ge_u32 s3, 8
          s_cbranch_scc1 L_V""")

    KB = 40
    a("L_K:\ns_setprio 2")
    stream_srd("s6", "s7")
    stamp(1)
    stream_loads(KB, KV)
    stamp(2)
    ws_srd()
    a(f"""v_and_b32 v8, 15, v0
          v_lshlrev_b32 v8, 4, v8
          v_mov_b32 v9, 0
          s_mov_b32 s54, 0xcccccccc
          s_mov_b32 s55, 0xcccccccc
          s_mov_b32 s56, 0xaaaaaaaa
          s_mov_b32 s57, 0xaaaaaaaa
          s_mov_b32 s60, 0
          s_waitcnt lgkmcnt(0)""")
    tag_setup()
    a(f"""L_K_wait:
          ds_read_b32 v3, v9 offset:{L_FLAG}
          s_waitcnt lgkmcnt(0)
          v_readfirstlane_b32 s52, v3
          s_cmp_eq_u32 s52, s44
          s_cbranch_scc1 L_K_go
          s_sleep 1
          s_add_u32 s60, s60, 1
          s_cmp_lt_u32 s60, {POLL_CAP}
          s_cbranch_scc1 L_K_wait
          L_K_go:
          ds_read_b128 v[4:7], v8 offset:{L_Q}
          s_waitcnt lgkmcnt(0)""")
    stamp(3)
    for b in range(2):
        R = lambda t, k=0: KB + 4 * (16 * b + t) + k
        for t in range(16):
            a(f"s_waitcnt vmcnt({31 - (16 * b + t)})")
            a(f"v_dot2_f32_bf16 v{R(t)}, v{R(t)}, v4, 0")
            for k in range(1, 4): a(f"v_dot2_f32_bf16 v{R(t)}, v{R(t, k)}, v{4 + k}, v{R(t)}")
        for u in range(8):
            a(f"v_add_f32_dpp v{R(u, 1)}, v{R(u)}, v{R(u)} row_ror:8 row_mask:0xf bank_mask:0x3")
        for u in range(8):
            a(f"v_add_f32_dpp v{R(u, 1)}, v{R(u + 8)}, v{R(u + 8)} row_ror:8 row_mask:0xf bank_mask:0xc")
        for u in range(4):
            a(f"v_add_f32_dpp v{R(u, 2)}, v{R(u, 1)}, v{R(u, 1)} row_shl:4 row_mask:0xf bank_mask:0x5")
        for u in range(4):
            a(f"v_add_f32_dpp v{R(u, 2)}, v{R(u + 4, 1)}, v{R(u + 4, 1)} row_shr:4 row_mask:0xf bank_mask:0xa")
        for u in range(4):
            a(f"v_add_f32_dpp v{R(u, 3)}, v{R(u, 2)}, v{R(u, 2)} quad_perm:[2,3,0,1] {DPPF}")
        for u in range(2):
            a(f"v_cndmask_b32 v{R(u + 4, 3)}, v{R(u, 3)}, v{R(u + 2, 3)}, s[54:55]")
        for u in range(2):
            a(f"v_add_f32_dpp v{R(u + 6, 3)}, v{R(u + 4, 3)}, v{R(u + 4, 3)} quad_perm:[1,0,3,2] {DPPF}")
        a(f"v_cndmask_b32 v{10 + b}, v{R(6, 3)}, v{R(7, 3)}, s[56:57]")
    stamp(4)
    a(f"v_cvt_pk_bf16_f32 v12, v10, v11")
    unpack(10, 11, 12)
    a(f"""v_mul_f32 v10, {SCALE}, v10
          v_mul_f32 v11, {SCALE}, v11
          v_cvt_pk_bf16_f32 v12, v10, v11""")
    unpack(10, 11, 12)
    a("v_max_f32 v13, v10, v11")
    row_allreduce("v_max_f32", [13]); cross_rows("v_max_f32", [13], [14])
    a(f"""v_sub_f32 v10, v10, v13
          v_sub_f32 v11, v11, v13
          v_mul_f32 v10, {LOG2E}, v10
          v_mul_f32 v11, {LOG2E}, v11
          v_exp_f32 v10, v10
          v_exp_f32 v11, v11
          s_and_b32 s52, s3, 3
          s_lshl_b32 s53, s52, 9
          v_lshl_add_u32 v8, v0, 3, s53
          v_add_f32 v14, v10, v11
          v_cvt_pk_bf16_f32 v16, v10, v10
          v_cvt_pk_bf16_f32 v17, v11, v11
          ds_write_b64 v8, v[16:17] offset:{L_P}""")
    row_allreduce("v_add_f32", [14]); cross_rows("v_add_f32", [14], [15])
    a(f"""s_lshl_b32 s53, s52, 3
          v_mov_b32 v9, s53
          v_mov_b32 v18, v13
          v_mov_b32 v19, v14
          s_mov_b64 exec, 1
          ds_write_b64 v9, v[18:19] offset:{L_ST}
          s_mov_b64 exec, -1
          s_setprio 0
          s_waitcnt lgkmcnt(0)""")
    stamp(5)
    a("s_branch L_T")

    a("L_V:")
    stream_srd("s8", "s9")
    stamp(1)
    stream_loads(KB, KV)
    stamp(2)
    ws_srd(); perm_sel()
    sel_masks(36, 3, 4, 5)
    a(f"""s_and_b32 s61, s3, 3
          s_sub_u32 s52, s29, 16
          s_mul_i32 s53, s28, 11
          s_add_u32 s62, s53, s52
          s_cmp_lt_u32 s52, 11
          s_cselect_b32 s53, 1, 0
          s_cmp_lt_u32 s62, 86
          s_cselect_b32 s63, s53, 0
          s_cmp_eq_u32 s63, 1
          s_cselect_b32 s42, {hex(1376 * 1024)}, 0
          s_mov_b32 s40, s20
          s_and_b32 s41, s21, 0xffff
          s_mov_b32 s43, 0x20000
          s_lshl_b32 s64, s62, 14
          s_lshl_b32 s52, s61, 8
          s_add_u32 s64, s64, s52
          v_lshrrev_b32 v3, 4, v0
          v_and_b32 v4, 15, v0
          v_lshlrev_b32 v1, 10, v3
          v_lshl_add_u32 v1, v4, 4, v1
          v_lshrrev_b32 v5, 3, v4
          v_lshl_add_u32 v5, v5, 1, v3
          v_lshlrev_b32 v5, 7, v5
          v_and_b32 v4, 7, v0
          v_lshl_add_u32 v19, v4, 4, v5
          s_mul_i32 s52, s61, {R_STRIDE}
          v_add_u32 v19, s52, v19
          s_lshl_b32 s53, s61, 9
          v_lshl_add_u32 v6, v0, 3, s53
          s_lshl_b32 s53, s61, 3
          v_mov_b32 v7, s53
          v_mov_b32 v3, 0
          s_waitcnt lgkmcnt(0)""")
    tag_setup()
    a("s_barrier")
    stamp(3)
    a(f"""s_setprio 3
          ds_read_b64 v[4:5], v6 offset:{L_P}
          ds_read_b128 v[8:11], v3 offset:{L_ST}
          ds_read_b128 v[12:15], v3 offset:{L_ST + 16}
          ds_read_b64 v[16:17], v7 offset:{L_ST}
          ds_read_b32 v18, v3 offset:{L_MODE}
          s_waitcnt lgkmcnt(0)
          v_readfirstlane_b32 s65, v18
          v_max3_f32 v8, v8, v10, v12
          v_max_f32 v8, v8, v14
          v_sub_f32 v18, v16, v8
          v_mul_f32 v18, {LOG2E}, v18
          v_exp_f32 v18, v18
          s_cmp_eq_u32 s61, 0
          s_cselect_b64 vcc, -1, 0
          v_cndmask_b32 v20, 0, v8, vcc
          v_mul_f32 v21, v18, v17
          v_mov_b32 v22, 0
          v_mov_b32 v23, 0
          v_mov_b32 v7, s52
          s_mov_b64 exec, 1
          ds_write_b128 v7, v[20:23] offset:{L_R + 512}
          s_mov_b64 exec, -1""")
    for t in range(32):
        A = 28 + 4 * (t & 1)
        for r in range(4):
            a(f"v_and_b32_dpp v{A + r}, v{4 + (t >> 4)}, v{36 + r} row_newbcast:{t & 15} {DPPF}")
        a(f"s_waitcnt vmcnt({31 - t + (4 if t > 5 else 0)})")
        a(f"v_mfma_f32_16x16x32_bf16 v[24:27], v[{A}:{A + 3}], v[{KB + 4 * t}:{KB + 4 * t + 3}], {'0' if t == 0 else 'v[24:27]'}")
        if t == 5:
            for u in range(4):
                a(f"s_add_u32 s52, s64, {u * 4096}")
                a(f"buffer_load_dwordx4 v[{KB + 4 * u}:{KB + 4 * u + 3}], v1, s[40:43], s52 offen")
    stamp(4)
    a(f"""v_mul_f32 v24, v18, v24
          v_mul_f32 v25, v18, v25
          v_mul_f32 v26, v18, v26
          v_mul_f32 v27, v18, v27""")
    setexec(0xffffffff)
    a(f"""ds_write_b128 v19, v[24:27] offset:{L_R}
          s_mov_b64 exec, -1
          s_waitcnt lgkmcnt(0)
          s_barrier""")
    stamp(5)
    a(f"""s_cmp_lg_u32 s61, 0
          s_cbranch_scc1 L_V_nopub""")
    setexec((1 << 33) - 1)
    for k in range(4): a(f"ds_read_b128 v[{56 + 4 * k}:{59 + 4 * k}], v2 offset:{L_R + k * R_STRIDE}")
    a(f"""s_lshl_b32 s52, s28, 5
          s_add_u32 s52, s52, s29
          s_lshl_b32 s52, s52, 10
          s_add_u32 s52, s52, {hex(WS_O)}
          v_mov_b32 v3, s44
          s_waitcnt lgkmcnt(0)""")
    for r in range(4): a(f"v_add_f32 v{56 + r}, v{56 + r}, v{60 + r}")
    for r in range(4): a(f"v_add_f32 v{64 + r}, v{64 + r}, v{68 + r}")
    for r in range(4): a(f"v_add_f32 v{56 + r}, v{56 + r}, v{64 + r}")
    put_tags(56, 3)
    a(f"""s_cmp_eq_u32 s65, s44
          s_cbranch_scc1 L_V_fast
          buffer_store_dwordx4 v[56:59], v2, s[36:39], s52 offen sc1
          s_branch L_V_pubd
          L_V_fast:
          buffer_store_dwordx4 v[56:59], v2, s[36:39], s52 offen
          L_V_pubd:
          s_mov_b64 exec, -1""")
    stamp(6)
    a(f"""L_V_nopub:
          s_cmp_eq_u32 s63, 1
          s_cbranch_scc1 L_V_ffn
          s_cmp_lg_u32 s61, 0
          s_cbranch_scc1 L_exit
          s_cmp_ge_u32 s29, 16
          s_cbranch_scc1 L_exit""")
    a(f"""v_and_b32 v4, 7, v0
          v_lshrrev_b32 v5, 3, v0
          v_mul_u32_u24 v4, 144, v4
          v_lshl_add_u32 v4, v5, 4, v4
          v_lshlrev_b32 v5, 4, v5
          s_lshl_b32 s52, s28, 11
          s_lshl_b32 s53, s29, 7
          s_add_u32 s52, s52, s53
          s_add_u32 s52, s52, {hex(WS_A)}
          v_mov_b32 v3, s44
          s_barrier
          ds_read_b128 v[56:59], v4 offset:{L_A}
          s_waitcnt lgkmcnt(0)""")
    stamp(7)
    oct_allreduce("v_add_f32", [56, 57, 58, 59])
    put_tags(56, 3)
    setexec(0x0101010101010101)
    a("buffer_store_dwordx4 v[56:59], v5, s[36:39], s52 offen sc1")
    stamp(8)
    a("s_branch L_exit")
    a(f"""L_V_ffn:
          v_lshrrev_b32 v4, 4, v0
          v_and_b32 v5, 3, v0
          v_lshl_add_u32 v4, v5, 2, v4
          v_mul_u32_u24 v4, 40, v4
          v_bfe_u32 v5, v0, 2, 2
          v_lshl_add_u32 v4, v5, 3, v4
          v_and_b32 v5, 15, v0
          v_lshlrev_b32 v5, 5, v5
          v_lshrrev_b32 v6, 4, v0
          v_lshl_add_u32 v5, v6, 4, v5
          s_lshl_b32 s52, s62, 11
          s_lshl_b32 s53, s61, 9
          s_add_u32 s52, s52, s53
          s_add_u32 s52, s52, {hex(WS_F)}
          v_mov_b32 v3, s44
          v_mov_b32 v20, {f32(GC2)}
          v_mov_b32 v21, {f32(GC1)}
          s_barrier
          s_barrier
          ds_read_b64 v[8:9], v4 offset:{L_A}
          ds_read_b64 v[10:11], v4 offset:{L_A + 640}
          s_waitcnt lgkmcnt(0)""")
    stamp(7)
    a(f"""v_add_f32 v8, v8, v9
          v_add_f32 v10, v10, v11
          v_add_f32_dpp v8, v8, v8 row_ror:4 {DPPF}
          v_add_f32_dpp v10, v10, v10 row_ror:4 {DPPF}
          v_add_f32_dpp v8, v8, v8 row_ror:8 {DPPF}
          v_add_f32_dpp v10, v10, v10 row_ror:8 {DPPF}
          v_cvt_pk_bf16_f32 v12, v8, v10""")
    unpack(8, 10, 12)
    a(f"""v_mul_f32 v9, v8, v8
          v_fma_f32 v9, v9, v20, v21
          v_mul_f32 v9, v9, v8
          v_exp_f32 v9, v9
          v_add_f32 v9, 1.0, v9
          v_rcp_f32 v9, v9
          v_mul_f32 v9, v9, v8
          v_cvt_pk_bf16_f32 v9, v9, v9
          v_and_b32 v9, 0xffff0000, v9
          v_mul_f32 v9, v9, v10
          v_cvt_pk_bf16_f32 v4, v9, v9
          s_waitcnt vmcnt(0)""")
    for t in range(4):
        A = 28 + 4 * (t & 1)
        for r in range(4):
            a(f"v_and_b32_dpp v{A + r}, v4, v{36 + r} row_newbcast:{t} {DPPF}")
        a(f"v_mfma_f32_16x16x32_bf16 v[24:27], v[{A}:{A + 3}], v[{KB + 4 * t}:{KB + 4 * t + 3}], {'0' if t == 0 else 'v[24:27]'}")
    setexec(0xffffffff)
    put_tags(24, 3)
    a("buffer_store_dwordx4 v[24:27], v5, s[36:39], s52 offen sc1")
    stamp(8)
    a("s_branch L_exit")

    a(f"""L_H:
          s_setprio 3
          s_cmp_eq_u32 s3, 0
          s_cbranch_scc0 L_H123
          v_lshrrev_b32 v3, 4, v0
          v_and_b32 v4, 15, v0
          v_lshl_add_u32 v5, v4, 2, v3
          s_lshl_b32 s52, s31, 6
          v_add_u32 v5, s52, v5
          v_lshlrev_b32 v5, 1, v5
          v_lshlrev_b32 v6, 13, v3
          v_lshl_add_u32 v6, v4, 4, v6
          s_lshl_b32 s52, s31, 19
          s_lshl_b32 s53, s30, 8
          s_add_u32 s52, s52, s53
          s_mov_b32 s34, 0x400000
          s_mov_b32 s35, 0x20000
          s_mov_b32 s42, 1024
          s_mov_b32 s43, 0x20000
          s_waitcnt lgkmcnt(0)
          s_mov_b32 s40, s4
          s_and_b32 s41, s5, 0xffff
          s_mov_b32 s32, s10
          s_and_b32 s33, s11, 0xffff
          s_load_dword s44, s[26:27], 0""")
    stamp(1)
    a(f"""buffer_load_dwordx4 v[8:11], v2, s[40:43], 0 offen
          buffer_load_ushort v12, v5, s[40:43], 0 offen""")
    for t in range(16):
        a(f"buffer_load_dwordx4 v[{16 + 4 * t}:{19 + 4 * t}], v6, s[32:35], s52 offen{WQ}")
        if t < 15: a("s_add_u32 s52, s52, 0x8000")
    if P["b0"]: a("s_barrier")
    ws_srd()
    sel_masks(88, 13, 14, 15)
    a("s_waitcnt vmcnt(16)")
    for k in range(4): unpack(80 + 2 * k, 81 + 2 * k, 8 + k)
    a("""v_add_f32 v8, v80, v81
         v_add_f32 v9, v82, v83
         v_add_f32 v10, v84, v85
         v_add_f32 v11, v86, v87
         v_add_f32 v8, v8, v9
         v_add_f32 v10, v10, v11
         v_add_f32 v8, v8, v10""")
    row_allreduce("v_add_f32", [8]); cross_rows("v_add_f32", [8], [9])
    a(f"v_mul_f32 v8, {f32(1 / 512)}, v8")
    for k in range(8): a(f"v_sub_f32 v{80 + k}, v{80 + k}, v8")
    a("v_mul_f32 v9, v80, v80")
    for k in range(1, 8): a(f"v_fmac_f32 v9, v{80 + k}, v{80 + k}")
    row_allreduce("v_add_f32", [9]); cross_rows("v_add_f32", [9], [10])
    a(f"""v_mul_f32 v9, {f32(1 / 512)}, v9
          v_cvt_pk_bf16_f32 v10, v8, v9""")
    unpack(8, 9, 10)
    a(f"""v_add_f32 v9, {EPS}, v9
          v_cvt_pk_bf16_f32 v9, v9, v9
          v_and_b32 v9, 0xffff0000, v9
          v_sqrt_f32 v9, v9
          v_lshlrev_b32 v12, 16, v12
          v_sub_f32 v12, v12, v8
          v_cvt_pk_bf16_f32 v9, v9, v9
          v_cvt_pk_bf16_f32 v12, v12, v12
          v_and_b32 v9, 0xffff0000, v9
          v_and_b32 v12, 0xffff0000, v12
          v_rcp_f32 v10, v9
          v_mul_f32 v11, v12, v10
          v_fma_f32 v13, -v11, v9, v12
          v_fma_f32 v11, v13, v10, v11
          v_cvt_pk_bf16_f32 v12, v11, v11""")
    stamp(2)
    for t in range(16):
        A = 96 + 4 * (t & 1)
        for r in range(4):
            a(f"v_and_b32_dpp v{A + r}, v12, v{88 + r} row_newbcast:{t} {DPPF}")
        a(f"s_waitcnt vmcnt({15 - t})")
        a(f"v_mfma_f32_16x16x32_bf16 v[92:95], v[{A}:{A + 3}], v[{16 + 4 * t}:{19 + 4 * t}], {'0' if t == 0 else 'v[92:95]'}")
    a(f"""v_lshlrev_b32 v4, 6, v4
          v_lshl_add_u32 v4, v3, 5, v4
          s_lshl_b32 s53, s30, 13
          s_add_u32 s53, s53, {hex(WS_Q)}
          s_lshl_b32 s52, s31, 10
          s_add_u32 s52, s52, s53
          s_waitcnt lgkmcnt(0)""")
    tag_setup()
    a(f"""v_mov_b32 v9, s44
          v_mov_b32 v11, s44
          v_mov_b32 v13, s44
          v_mov_b32 v15, s44
          v_mov_b32 v8, v92
          v_mov_b32 v10, v93
          v_mov_b32 v12, v94
          v_mov_b32 v14, v95""")
    setexec(0xffffffff)
    a(f"""buffer_store_dwordx4 v[8:11], v4, s[36:39], s52 offen sc1
          buffer_store_dwordx4 v[12:15], v4, s[36:39], s52 offen offset:16 sc1
          s_mov_b64 exec, -1""")
    stamp(3)
    a(f"""s_add_u32 s52, s53, 4096
          s_mov_b32 s60, 0""")
    if P["q_sleep"]: a(f"s_sleep {P['q_sleep']}")
    a("L_H0_poll:")
    for p in range(8):
        a(f"buffer_load_dwordx4 v[{16 + 4 * p}:{19 + 4 * p}], v2, s[36:39], {'s53' if p < 4 else 's52'} offen offset:{(p & 3) * 1024} sc1")
    for p in range(8):
        a(f"s_waitcnt vmcnt({7 - p})")
        if p == 0: a(f"v_xor_b32 v8, s44, v17")
        else: a(f"v_bitop3_b32 v8, v8, v{17 + 4 * p}, s44 bitop3:0xf6")
        a(f"v_bitop3_b32 v8, v8, v{19 + 4 * p}, s44 bitop3:0xf6")
    a("v_cmp_ne_u32 vcc, 0, v8")
    poll_tail("L_H0_poll", "L_H0_got")
    a("L_H0_got:")
    for p in range(1, 8):
        a(f"v_add_f32 v16, v16, v{16 + 4 * p}\nv_add_f32 v18, v18, v{18 + 4 * p}")
    a(f"""v_cvt_pk_bf16_f32 v16, v16, v18
          v_lshlrev_b32 v3, 2, v0
          v_mov_b32 v4, 0
          v_mov_b32 v5, s44
          ds_write_b32 v3, v16 offset:{L_Q}
          s_waitcnt lgkmcnt(0)
          s_mov_b64 exec, 1
          ds_write_b32 v4, v5 offset:{L_FLAG}
          s_mov_b64 exec, -1
          s_waitcnt lgkmcnt(0)""")
    stamp(4)
    a("s_branch L_T")

    a(f"""L_H123:
          s_waitcnt lgkmcnt(0)
          s_load_dword s44, s[26:27], 0""")
    ws_srd()
    if P["prefetch_code"]:
        a(f"""s_cmp_eq_u32 s3, 2
              s_cbranch_scc0 L_H_nopf
              s_getpc_b64 s[52:53]
              L_pc:
              s_sub_u32 s52, s52, L_pc-{NAME}
              s_subb_u32 s53, s53, 0
              v_lshlrev_b32 v3, 6, v0
              v_min_u32 v4, L_end-{NAME}, v3
              global_load_dword v100, v4, s[52:53]
              v_add_u32 v3, 4096, v3
              v_min_u32 v4, L_end-{NAME}, v3
              global_load_dword v101, v4, s[52:53]
              v_add_u32 v3, 4096, v3
              v_min_u32 v4, L_end-{NAME}, v3
              global_load_dword v102, v4, s[52:53]
              v_add_u32 v3, 4096, v3
              v_min_u32 v4, L_end-{NAME}, v3
              global_load_dword v103, v4, s[52:53]
              L_H_nopf:""")
    if P["b0"]: a("s_barrier")
    a("s_waitcnt lgkmcnt(0)")
    tag_setup()
    a(f"""s_cmp_eq_u32 s3, 1
          s_cbranch_scc0 L_T
          s_getreg_b32 s54, hwreg(HW_REG_XCC_ID, 0, 4)
          s_lshl_b32 s55, s54, 8
          s_lshl_b32 s53, s28, 11
          s_add_u32 s53, s53, {hex(WS_X)}
          s_cmp_ge_u32 s29, 16
          s_cbranch_scc1 L_H1_nopub""")
    perm_sel()
    a(f"""v_mov_b32 v3, s44
          v_mov_b32 v4, s55
          v_mov_b32 v5, s55
          v_mov_b32 v6, s55
          v_mov_b32 v7, s55""")
    put_tags(4, 3)
    a(f"""s_lshl_b32 s52, s29, 7
          s_add_u32 s52, s52, s53
          v_mov_b32 v3, 0
          s_mov_b64 exec, 1
          buffer_store_dwordx4 v[4:7], v3, s[36:39], s52 offen sc1
          s_mov_b64 exec, -1
          L_H1_nopub:
          v_mov_b32 v9, 0
          v_mov_b32 v63, 0
          s_mov_b32 s60, 0
          L_H1_wait:
          ds_read_b32 v3, v9 offset:{L_FLAG}
          s_waitcnt lgkmcnt(0)
          v_readfirstlane_b32 s52, v3
          s_cmp_eq_u32 s52, s44
          s_cbranch_scc1 L_H1_go
          s_sleep 4
          s_add_u32 s60, s60, 1
          s_cmp_lt_u32 s60, {POLL_CAP}
          s_cbranch_scc1 L_H1_wait
          L_H1_go:
          v_and_b32 v3, 15, v0
          v_lshlrev_b32 v3, 7, v3
          s_mov_b32 s60, 0
          L_H1_poll:
          buffer_load_dwordx4 v[4:7], v3, s[36:39], s53 offen sc1
          s_waitcnt vmcnt(0)""")
    chk_tags(8, 4, True)
    bad_any(8)
    poll_tail("L_H1_poll", "L_H1_got")
    a(f"""s_mov_b32 s55, -1
          L_H1_got:
          v_and_b32 v4, 0xffffff00, v4
          v_cmp_ne_u32 vcc, s55, v4
          s_cmp_eq_u64 vcc, 0
          s_cselect_b32 s52, s44, 0""")
    if P["force_safe"]: a("s_mov_b32 s52, 0")
    a(f"""v_mov_b32 v4, s52
          s_mov_b64 exec, 1
          ds_write_b32 v9, v4 offset:{L_MODE}
          s_mov_b64 exec, -1
          s_waitcnt lgkmcnt(0)""")

    a(f"""L_T:
          s_setprio 0
          s_sub_u32 s52, s29, 16
          s_mul_i32 s53, s28, 11
          s_add_u32 s62, s53, s52
          v_lshrrev_b32 v3, 4, v0
          v_bfe_u32 v4, v0, 3, 1
          v_and_b32 v5, 7, v0
          v_lshl_add_u32 v6, v4, 2, v3
          v_bfe_u32 v7, v0, 2, 2
          v_lshl_add_u32 v7, v3, 3, v7
          v_lshlrev_b32 v7, 6, v7
          v_and_b32 v8, 3, v0
          v_lshl_add_u32 v7, v8, 3, v7
          s_lshl_b32 s61, s3, 12
          s_add_u32 s61, s61, {L_W}
          v_add_u32 v7, s61, v7
          v_lshrrev_b32 v9, 2, v0
          v_mov_b32 v63, 0
          s_mov_b32 s60, 0
          s_cmp_lt_u32 s29, 16
          s_cbranch_scc1 L_T_wo
          s_cmp_lt_u32 s52, 11
          s_cbranch_scc0 L_T_other
          s_cmp_lt_u32 s62, 86
          s_cbranch_scc1 L_T_ffn
          L_T_other:
          s_sub_u32 s52, s29, 27
          s_cmp_lt_u32 s52, 4
          s_cselect_b32 s53, 1, 0
          s_cmp_lt_u32 s3, 2
          s_cselect_b32 s53, s53, 0
          s_cmp_eq_u32 s53, 1
          s_cbranch_scc1 L_T_fin
          s_barrier
          s_barrier
          s_branch L_exit""")

    def tr_reads():
        for s in range(2):
            for nt in range(2):
                for hf in range(2):
                    r = 16 + 8 * s + 4 * nt + 2 * hf
                    a(f"ds_read_b64_tr_b16 v[{r}:{r + 1}], v7 offset:{s * 2048 + nt * 32 + hf * 256}")
    def gemv_tile(A):
        for r in range(4): a(f"v_mov_b32_dpp v{A + 4 + r}, v{A + r} row_ror:8 {DPPF}")
        a(f"""v_mfma_f32_16x16x32_bf16 v[56:59], v[{A}:{A + 3}], v[16:19], 0
              v_mfma_f32_16x16x32_bf16 v[64:67], v[{A}:{A + 3}], v[20:23], 0
              v_mfma_f32_16x16x32_bf16 v[56:59], v[{A + 4}:{A + 7}], v[24:27], v[56:59]
              v_mfma_f32_16x16x32_bf16 v[64:67], v[{A + 4}:{A + 7}], v[28:31], v[64:67]
              s_mov_b32 s54, 0xffff0000
              s_mov_b32 s55, 0
              v_cndmask_b32 v56, v56, v64, s[54:55]""")

    a(f"""L_T_wo:
          v_lshlrev_b32 v10, 10, v9
          v_lshl_add_u32 v10, v8, 4, v10
          s_lshl_b32 s52, s28, 9
          s_lshl_b32 s53, s3, 6
          s_add_u32 s52, s52, s53
          s_lshl_b32 s52, s52, 10
          s_lshl_b32 s53, s29, 6
          s_add_u32 s52, s52, s53""")
    srd(40, "s12", "s13", "0x400000")
    a("s_barrier")
    stamp(6)
    for t in range(4):
        a(f"""s_add_u32 m0, s61, {t * 1024}
              s_add_u32 s53, s52, {t * 16384}
              buffer_load_dwordx4 v10, s[40:43], s53 offen lds""")
    a(f"""v_lshlrev_b32 v11, 10, v5
          v_lshl_add_u32 v12, v6, 4, v11
          s_lshl_b32 s52, s28, 5
          s_lshr_b32 s53, s3, 1
          s_lshl_b32 s53, s53, 3
          s_add_u32 s52, s52, s53
          s_lshl_b32 s52, s52, 10
          s_add_u32 s52, s52, {hex(WS_O)}
          s_and_b32 s53, s3, 1
          s_lshl_b32 s53, s53, 8
          s_add_u32 s53, s53, s52
          v_and_b32 v13, 31, v0
          v_lshlrev_b32 v13, 2, v13
          s_mul_i32 s54, s3, 144
          v_add_u32 v13, s54, v13
          s_barrier""")
    stamp(7)
    a("s_waitcnt vmcnt(0)")
    tr_reads()
    stamp(8)
    a(f"""L_wo_poll:
          buffer_load_dwordx4 v[32:35], v11, s[36:39], s52 offen offset:512 sc1
          buffer_load_dwordx4 v[36:39], v12, s[36:39], s53 offen sc1
          buffer_load_dwordx4 v[40:43], v12, s[36:39], s53 offen offset:128 sc1
          s_waitcnt vmcnt(2)""")
    chk_tags(14, 32, True)
    a("s_waitcnt vmcnt(1)"); chk_tags(14, 36, False)
    a("s_waitcnt vmcnt(0)"); chk_tags(14, 40, False)
    bad_any(14)
    poll_tail("L_wo_poll", "L_wo_got")
    a("L_wo_got:")
    stamp(9)
    a(f"""v_and_b32 v32, 0xffffff00, v32
          v_mov_b32 v34, v32""")
    oct_allreduce("v_max_f32", [34])
    a(f"""v_sub_f32 v32, v32, v34
          v_mul_f32 v32, {LOG2E}, v32
          v_exp_f32 v32, v32
          v_mul_f32 v33, v32, v33""")
    oct_allreduce("v_add_f32", [33])
    a(f"""v_rcp_f32 v33, v33
          v_mul_f32 v32, v32, v33""")
    for r in range(8): a(f"v_mul_f32 v{36 + r}, v32, v{36 + r}")
    oct_allreduce("v_add_f32", list(range(36, 44)))
    for r in range(4): a(f"v_cvt_pk_bf16_f32 v{44 + r}, v{36 + 2 * r}, v{37 + 2 * r}")
    a("s_waitcnt lgkmcnt(0)")
    gemv_tile(44)
    setexec(0xffffffff)
    a(f"""ds_write_b32 v13, v56 offset:{L_A}
          s_waitcnt lgkmcnt(0)
          s_barrier""")
    stamp(10)
    a("s_branch L_exit")

    a(f"""L_T_ffn:
          s_lshl_b32 s52, s3, 6
          v_add_u32 v10, s52, v9
          v_mul_u32_u24 v10, 2752, v10
          v_and_b32 v11, 1, v0
          v_lshl_add_u32 v10, v11, 4, v10
          s_lshl_b32 s52, s62, 5
          v_add_u32 v10, s52, v10
          v_mov_b32 v14, s16
          v_mov_b32 v15, s17
          v_mov_b32 v12, s18
          v_mov_b32 v13, s19
          s_mov_b32 s54, 0xcccccccc
          s_mov_b32 s55, 0xcccccccc
          v_cndmask_b32 v14, v14, v12, s[54:55]
          v_cndmask_b32 v15, v15, v13, s[54:55]
          v_add_co_u32 v14, vcc, v14, v10
          v_addc_co_u32 v15, vcc, 0, v15, vcc
          v_lshlrev_b32 v12, 4, v6
          s_lshl_b32 s52, s3, 7
          v_add_u32 v12, s52, v12""")
    srd(40, "s4", "s5", "1024")
    a(f"""buffer_load_dwordx4 v[48:51], v12, s[40:43], 0 offen
          s_barrier""")
    stamp(6)
    for t in range(4):
        a(f"s_add_u32 m0, s61, {t * 1024}\nglobal_load_lds_dwordx4 v[14:15], off")
        if t < 3: a("v_add_co_u32 v14, vcc, 44032, v14\nv_addc_co_u32 v15, vcc, 0, v15, vcc")
    a(f"""v_lshlrev_b32 v11, 11, v5
          v_lshl_add_u32 v12, v12, 1, v11
          s_mov_b32 s52, {hex(WS_A)}
          v_and_b32 v13, 31, v0
          v_mul_u32_u24 v13, 40, v13
          s_lshl_b32 s54, s3, 2
          v_add_u32 v13, s54, v13
          s_lshl_b32 s54, s3, 4
          v_mov_b32 v10, s54
          v_lshlrev_b32 v9, 4, v5
          s_barrier""")
    stamp(7)
    a("s_waitcnt vmcnt(0)")
    tr_reads()
    for k in range(4): unpack(68 + 2 * k, 69 + 2 * k, 48 + k)
    stamp(8)
    a(f"""L_ffn_poll:
          buffer_load_dwordx4 v[36:39], v12, s[36:39], s52 offen sc1
          buffer_load_dwordx4 v[40:43], v12, s[36:39], s52 offen offset:16 sc1
          s_waitcnt vmcnt(1)""")
    chk_tags(14, 36, True)
    a("s_waitcnt vmcnt(0)"); chk_tags(14, 40, False)
    bad_any(14)
    poll_tail("L_ffn_poll", "L_ffn_got")
    a("L_ffn_got:")
    stamp(9)
    oct_allreduce("v_add_f32", list(range(36, 44)))
    for r in range(4): a(f"v_cvt_pk_bf16_f32 v{44 + r}, v{36 + 2 * r}, v{37 + 2 * r}")
    for r in range(4): unpack(36 + 2 * r, 37 + 2 * r, 44 + r)
    for r in range(4): a(f"v_pk_add_f32 v[{36 + 2 * r}:{37 + 2 * r}], v[{36 + 2 * r}:{37 + 2 * r}], v[{68 + 2 * r}:{69 + 2 * r}]")
    for r in range(4): a(f"v_cvt_pk_bf16_f32 v{44 + r}, v{36 + 2 * r}, v{37 + 2 * r}")
    for r in range(4): unpack(36 + 2 * r, 37 + 2 * r, 44 + r)
    a("v_readfirstlane_b32 s56, v36")
    for r in range(8): a(f"v_subrev_f32 v{44 + r}, s56, v{36 + r}")
    a(f"""v_pk_add_f32 v[52:53], v[44:45], v[46:47]
          v_pk_add_f32 v[54:55], v[48:49], v[50:51]
          v_pk_mul_f32 v[56:57], v[44:45], v[44:45]
          v_pk_add_f32 v[52:53], v[52:53], v[54:55]
          v_pk_fma_f32 v[56:57], v[46:47], v[46:47], v[56:57]
          v_add_f32 v53, v52, v53
          v_pk_fma_f32 v[56:57], v[48:49], v[48:49], v[56:57]
          v_pk_fma_f32 v[56:57], v[50:51], v[50:51], v[56:57]
          v_add_f32 v54, v56, v57
          v_add_f32_dpp v53, v53, v53 row_ror:8 {DPPF}
          v_mov_b32 v52, s56
          v_add_f32_dpp v54, v54, v54 row_ror:8 {DPPF}""")
    cross_rows("v_add_f32", [53, 54], [56, 57])
    a(f"""s_mov_b64 exec, 1
          v_mov_b32 v55, 0
          ds_write_b128 v10, v[52:55] offset:{L_S2}
          s_mov_b64 exec, -1
          s_waitcnt lgkmcnt(0)
          s_barrier
          ds_read_b128 v[52:55], v9 offset:{L_S2}
          s_waitcnt lgkmcnt(0)""")
    stamp(10)
    a(f"""v_mul_f32 v56, 0x42800000, v52
          v_add_f32 v56, v56, v53""")
    oct_allreduce("v_add_f32", [56])
    a(f"""v_mul_f32 v56, {f32(1 / 512)}, v56
          v_sub_f32 v57, v56, v52
          v_mul_f32 v58, 0x42800000, v57
          v_fmac_f32 v58, -2.0, v53
          v_fma_f32 v57, v58, v57, v54""")
    oct_allreduce("v_add_f32", [57])
    a(f"""v_mul_f32 v57, {f32(1 / 512)}, v57
          v_cvt_pk_bf16_f32 v58, v56, v57""")
    unpack(56, 57, 58)
    a(f"""v_add_f32 v57, {EPS}, v57
          v_cvt_pk_bf16_f32 v57, v57, v57
          v_and_b32 v57, 0xffff0000, v57
          v_sqrt_f32 v57, v57""")
    for r in range(4): a(f"v_pk_add_f32 v[{36 + 2 * r}:{37 + 2 * r}], v[{36 + 2 * r}:{37 + 2 * r}], v[56:57] op_sel_hi:[1,0] neg_lo:[0,1] neg_hi:[0,1]")
    a(f"""v_cvt_pk_bf16_f32 v58, v57, v57
          v_and_b32 v58, 0xffff0000, v58
          v_rcp_f32 v58, v58""")
    for r in range(4): a(f"v_cvt_pk_bf16_f32 v{44 + r}, v{36 + 2 * r}, v{37 + 2 * r}")
    for r in range(4): unpack(36 + 2 * r, 37 + 2 * r, 44 + r)
    for r in range(4): a(f"v_pk_mul_f32 v[{36 + 2 * r}:{37 + 2 * r}], v[{36 + 2 * r}:{37 + 2 * r}], v[58:59] op_sel_hi:[1,0]")
    for r in range(4): a(f"v_cvt_pk_bf16_f32 v{44 + r}, v{36 + 2 * r}, v{37 + 2 * r}")
    gemv_tile(44)
    setexec(0xffffffff)
    a(f"""ds_write_b32 v13, v56 offset:{L_A}
          s_waitcnt lgkmcnt(0)
          s_barrier""")
    stamp(11)
    a("s_branch L_exit")

    a(f"""L_T_fin:
          s_lshl_b32 s53, s28, 2
          s_add_u32 s52, s52, s53
          s_lshl_b32 s52, s52, 1
          s_add_u32 s61, s52, s3
          v_and_b32 v4, 1, v0
          v_lshlrev_b32 v5, 3, v4
          s_lshl_b32 s52, s61, 4
          v_add_u32 v5, s52, v5""")
    srd(40, "s4", "s5", "1024")
    a(f"""buffer_load_dwordx2 v[8:9], v5, s[40:43], 0 offen
          v_lshlrev_b32 v6, 1, v5
          v_bfe_u32 v7, v0, 1, 3
          v_lshl_add_u32 v10, v7, 11, v6
          v_lshrrev_b32 v7, 1, v0
          v_lshl_add_u32 v11, v7, 11, v6
          v_lshl_add_u32 v5, v3, 1, v5
          s_mov_b32 s52, {hex(WS_A)}
          v_mov_b32 v44, 0
          v_mov_b32 v45, 0
          v_mov_b32 v46, 0
          v_mov_b32 v47, 0
          s_barrier
          s_barrier
          s_waitcnt vmcnt(0)""")
    unpack(16, 17, 8); unpack(18, 19, 9)
    srd(40, "s22", "s23", "1024")
    stamp(7)
    a(f"""L_fin_poll1:
          buffer_load_dwordx4 v[20:23], v10, s[36:39], s52 offen sc1
          s_waitcnt vmcnt(0)""")
    chk_tags(14, 20, True)
    bad_any(14)
    poll_tail("L_fin_poll1", "L_fin_got1")
    a("L_fin_got1:")
    stamp(8)
    def fin_dpp(rs):
        for mode in ("quad_perm:[2,3,0,1]", "row_ror:4", "row_ror:8"):
            for r in rs: a(f"v_add_f32_dpp v{r}, v{r}, v{r} {mode} {DPPF}")
    fin_dpp([20, 21, 22, 23])
    a("v_cvt_pk_bf16_f32 v24, v20, v21\nv_cvt_pk_bf16_f32 v25, v22, v23")
    unpack(20, 21, 24); unpack(22, 23, 25)
    for r in range(4): a(f"v_add_f32 v{20 + r}, v{20 + r}, v{16 + r}")
    a(f"""v_cmp_eq_u32 vcc, 1, v3
          v_cndmask_b32 v20, v20, v21, vcc
          v_cmp_eq_u32 vcc, 2, v3
          v_cndmask_b32 v20, v20, v22, vcc
          v_cmp_eq_u32 vcc, 3, v3
          v_cndmask_b32 v20, v20, v23, vcc
          v_cvt_pk_bf16_f32 v20, v20, v20
          v_and_b32 v20, 0xffff0000, v20
          s_mov_b32 s52, {hex(WS_F)}
          s_mov_b32 s53, {hex(WS_F + 0x10000)}
          s_mov_b32 s54, {hex(WS_F + 0x20000)}
          s_mov_b32 s60, 0
          L_fin_poll2:
          buffer_load_dwordx4 v[36:39], v11, s[36:39], s52 offen sc1
          buffer_load_dwordx4 v[40:43], v11, s[36:39], s53 offen sc1""")
    setexec((1 << 44) - 1)
    a(f"""buffer_load_dwordx4 v[44:47], v11, s[36:39], s54 offen sc1
          s_mov_b64 exec, -1
          s_waitcnt vmcnt(2)""")
    chk_tags(14, 36, True)
    a("s_waitcnt vmcnt(1)"); chk_tags(14, 40, False)
    a("s_waitcnt vmcnt(0)")
    setexec((1 << 44) - 1)
    chk_tags(14, 44, False)
    a("s_mov_b64 exec, -1")
    bad_any(14)
    poll_tail("L_fin_poll2", "L_fin_got2")
    a("L_fin_got2:")
    stamp(9)
    for r in range(4): a(f"v_add_f32 v{36 + r}, v{36 + r}, v{40 + r}")
    for r in range(4): a(f"v_add_f32 v{36 + r}, v{36 + r}, v{44 + r}")
    fin_dpp([36, 37, 38, 39])
    a(f"""v_permlane16_swap_b32 v36, v37
          v_permlane16_swap_b32 v38, v39
          v_add_f32 v36, v36, v37
          v_add_f32 v38, v38, v39
          v_permlane32_swap_b32 v36, v38
          v_add_f32 v36, v36, v38
          v_cvt_pk_bf16_f32 v36, v36, v36
          v_and_b32 v36, 0xffff0000, v36
          v_add_f32 v36, v36, v20
          v_cvt_pk_bf16_f32 v36, v36, v36""")
    setexec(0x0003000300030003)
    a(f"""buffer_store_short v36, v5, s[40:43], 0 offen{' sc0 sc1' if P['out_sc1'] else ''}
          s_cmp_lg_u32 s61, 0
          s_cbranch_scc1 L_fin_done
          s_mov_b64 exec, 1
          v_mov_b32 v4, s44
          v_mov_b32 v6, 0
          buffer_store_dword v4, v6, s[36:39], 0 offen{' sc0 sc1' if P['out_sc1'] else ''}
          L_fin_done:""")
    if P["pad_to"]:
        a(f"""s_mov_b32 s60, 0
              L_pad:
              s_memrealtime s[66:67]
              s_waitcnt lgkmcnt(0)
              s_sub_u32 s66, s66, s68
              s_add_u32 s60, s60, 1
              s_cmp_gt_u32 s60, 100000
              s_cbranch_scc1 L_padd
              s_cmp_lt_u32 s66, {P['pad_to']}
              s_cbranch_scc1 L_pad
              L_padd:""")
    stamp(10)

    a("L_exit:")
    if P["stamps"]:
        a(f"""s_mov_b64 exec, 1
              s_mul_i32 s52, s2, 12
              s_add_u32 s52, s52, s3
              s_lshl_b32 s52, s52, 6
              s_add_u32 s52, s52, {hex(WS_STAMP)}
              v_mov_b32 v3, 0
              s_waitcnt lgkmcnt(0)""")
        for q in range(3):
            for k in range(4): a(f"v_mov_b32 v{4 + 4 * q + k}, s{70 + 2 * (4 * q + k)}")
            a(f"buffer_store_dwordx4 v[{4 + 4 * q}:{7 + 4 * q}], v3, s[36:39], s52 offen offset:{16 * q}")
    a("L_end:\ns_endpgm")

    lines, nops = fix_hazards(a.lines)
    hdr = f"""; Fused pre-LN attention (cached K/V) + GeGLU FFN decode step for gfx950, one launch.
; @launch grid=(256,1,1) block=(768,1,1) lds={P['lds']}
.amdgcn_target "amdgcn-amd-amdhsa--gfx950"
.text
.globl {NAME}
.p2align 8
.type {NAME},@function
{NAME}:
"""
    ftr = f"""
    .fill 32, 4, 0xbf800000
.section .rodata,"a"
.p2align 6
.amdhsa_kernel {NAME}
  .amdhsa_next_free_vgpr 168
  .amdhsa_next_free_sgpr {P['sgprs']}
  .amdhsa_accum_offset 168
  .amdhsa_group_segment_fixed_size 0
  .amdhsa_kernarg_size 96
  .amdhsa_user_sgpr_count 2
  .amdhsa_user_sgpr_kernarg_segment_ptr 1
  .amdhsa_system_sgpr_workgroup_id_x 1
  .amdhsa_float_denorm_mode_32 3
.end_amdhsa_kernel
"""
    return hdr + "\n".join(lines) + ftr, nops

if __name__ == "__main__":
    out = sys.argv[1]
    kw = {}
    for x in sys.argv[2:]:
        k, v = x.split("="); kw[k] = int(v)
    s, n = build(**kw)
    open(out, "w").write(s)
    print("wrote", out, "lines", s.count("\n"), "nop states inserted", n)
```

```python
import sys, struct
from asmlib import Asm, fix_hazards

NAME = "sequential_preLN__mha_block_cached__geglu_ffn__decode_kernel"
def f32(x): return "0x%08x" % struct.unpack("<I", struct.pack("<f", x))[0]

WS_X, WS_Q, WS_O, WS_A, WS_F, WS_STAMP, WS_SIZE = 0x1000, 0x10000, 0x50000, 0x90000, 0xA0000, 0x100000, 0x200000
O_STRIDE, A_STRIDE, F_STRIDE = 640, 2176, 2176
L_Q, L_FLAG, L_MODE, L_MFLAG, L_ST, L_P, L_R, L_A, L_S2, L_FG, L_HF, L_HQ, L_W, LDS_SIZE = \
    0, 256, 264, 268, 288, 512, 2560, 4736, 5888, 4736, 6272, 6400, 8192, 40960
R_STRIDE = 528
TAG_STEP = 0x9E3779B1
SCALE = f32(128 ** -0.5)
LOG2E = f32(1.4426950408889634)
EPS = f32(1e-5)
GC1 = -2.0 * 0.7978845608028654 * 1.4426950408889634
GC2 = GC1 * 0.044715
DPPF = "row_mask:0xf bank_mask:0xf"
POLL_CAP = 100000
L_S2 = 6016

DEF = dict(kv_nt=True, wq_nt=True, stamps=False, q_sleep=10, x_sleep=30, force_safe=False, prefetch_code=True, pad_to=0,
           lds=LDS_SIZE, pf_stride=128, pf_wo=2, pf_ffn=2, ffn_trig=1, no_pf=0, depth=0, wo_at=1, down_at=0, skip_ffn=0, warm=0, poll_sleep=0)

def build(**kw):
    P = dict(DEF); P.update(kw)
    a = Asm()
    KV = " nt" if P["kv_nt"] else ""
    WQ = " nt" if P["wq_nt"] else ""
    KB = 40

    def stamp(n):
        if P["stamps"]: a(f"s_memrealtime s[{70 + 2 * n}:{71 + 2 * n}]")
    def note(n, sreg):
        if P["stamps"]: a(f"s_mov_b32 s{70 + 2 * n}, {sreg}")
    def srd(d, lo, hi, size):
        a(f"s_mov_b32 s{d}, {lo}\ns_and_b32 s{d + 1}, {hi}, 0xffff\ns_mov_b32 s{d + 2}, {size}\ns_mov_b32 s{d + 3}, 0x20000")
    def ws_srd(): srd(36, "s26", "s27", hex(WS_SIZE))
    def tag_setup():
        a(f"""s_add_u32 s44, s44, {hex(TAG_STEP)}
              s_lshr_b32 s45, s44, 8
              s_lshr_b32 s46, s44, 16
              s_lshr_b32 s47, s44, 24""")
    def perm_sel():
        for k in range(4): a(f"s_mov_b32 s{48 + k}, {hex(0x07060500 + k)}")
    def put_tags(r, vtag):
        for k in range(4): a(f"v_perm_b32 v{r + k}, v{r + k}, v{vtag}, s{48 + k}")
    def chk_tags(acc, r, first):
        for k in range(4):
            if first and k == 0: a(f"v_xor_b32 v{acc}, s44, v{r}")
            else: a(f"v_bitop3_b32 v{acc}, v{acc}, v{r + k}, s{44 + k} bitop3:0xf6")
    def setexec(mask):
        if mask == -1: a("s_mov_b64 exec, -1")
        elif mask < 64: a(f"s_mov_b64 exec, {mask}")
        else: a(f"s_mov_b32 exec_lo, {hex(mask & 0xffffffff)}\ns_mov_b32 exec_hi, {hex(mask >> 32)}")
    def poll(name, loads, cap=POLL_CAP, sleep=None, first=None):
        sleep = P["poll_sleep"] if sleep is None else sleep
        a("s_mov_b32 s60, 0\nv_mov_b32 v63, 0")
        if first:
            for txt, _ in loads: a(txt)
            first(len(loads))
            a(f"s_branch {name}_chk")
        a(f"{name}:")
        for txt, _ in loads: a(txt)
        if first: a(f"{name}_chk:")
        for k, (_, r) in enumerate(loads):
            a(f"s_waitcnt vmcnt({len(loads) - 1 - k})"); chk_tags(62, r, k == 0)
        a(f"""v_cmp_ne_u32_sdwa vcc, v62, v63 src0_sel:BYTE_0 src1_sel:DWORD
              s_add_u32 s60, s60, 1
              s_and_b64 exec, vcc, vcc
              s_cbranch_scc0 {name}_ok
              s_cmp_lt_u32 s60, {cap}""")
        if sleep: a(f"s_sleep {sleep}")
        a(f"s_cbranch_scc1 {name}\n{name}_ok:")
    def lds_wait(name, off, vz, vt, sleep):
        a(f"""s_mov_b32 s60, 0
              {name}:
              ds_read_b32 v{vt}, v{vz} offset:{off}
              s_waitcnt lgkmcnt(0)
              v_readfirstlane_b32 s52, v{vt}
              s_cmp_eq_u32 s52, s44
              s_cbranch_scc1 {name}_ok
              s_sleep {sleep}
              s_add_u32 s60, s60, 1
              s_cmp_lt_u32 s60, {POLL_CAP}
              s_cbranch_scc1 {name}
              {name}_ok:""")
    def row_allreduce(op, rs):
        for mode in ("quad_perm:[1,0,3,2]", "quad_perm:[2,3,0,1]", "row_half_mirror", "row_mirror"):
            for r in rs: a(f"{op}_dpp v{r}, v{r}, v{r} {mode} {DPPF}")
    def oct_allreduce(op, rs):
        for mode in ("quad_perm:[1,0,3,2]", "quad_perm:[2,3,0,1]", "row_half_mirror"):
            for r in rs: a(f"{op}_dpp v{r}, v{r}, v{r} {mode} {DPPF}")
    def cross_rows(op, rs, tmps):
        for sw in ("v_permlane16_swap_b32", "v_permlane32_swap_b32"):
            for r, t in zip(rs, tmps): a(f"v_mov_b32 v{t}, v{r}")
            for r, t in zip(rs, tmps): a(f"{sw} v{t}, v{r}")
            for r, t in zip(rs, tmps): a(f"{op} v{r}, v{r}, v{t}")
    def sel_masks(m, t0, t1, t2):
        a(f"""v_bfe_u32 v{t0}, v0, 1, 3
              v_and_b32 v{t1}, 1, v0
              v_lshlrev_b32 v{t1}, 4, v{t1}
              v_mov_b32 v{t2}, 0xffff
              v_lshlrev_b32 v{t1}, v{t1}, v{t2}""")
        for r in range(4):
            a(f"v_cmp_eq_u32 vcc, {r}, v{t0}\nv_cndmask_b32 v{m + r}, 0, v{t1}, vcc")
    def unpack(dst_lo, dst_hi, src):
        a(f"v_and_b32 v{dst_hi}, 0xffff0000, v{src}\nv_lshlrev_b32 v{dst_lo}, 16, v{src}")
    def rbf(r): a(f"v_cvt_pk_bf16_f32 v{r}, v{r}, v{r}\nv_and_b32 v{r}, 0xffff0000, v{r}")
    def bitmasks():
        a("""s_mov_b32 s54, 0xcccccccc
             s_mov_b32 s55, 0xcccccccc
             s_mov_b32 s56, 0xaaaaaaaa
             s_mov_b32 s57, 0xaaaaaaaa""")
    def ffn_role():
        a("""s_sub_u32 s52, s29, 16
             s_mul_i32 s53, s28, 11
             s_add_u32 s62, s53, s52
             s_cmp_lt_u32 s52, 11
             s_cselect_b32 s53, 1, 0
             s_cmp_lt_u32 s62, 86
             s_cselect_b32 s63, s53, 0""")
    def treduce(v, o, extra=None):
        for u in range(4): a(f"v_add_f32_dpp v{o + u}, v{v + u}, v{v + u} row_ror:8 row_mask:0xf bank_mask:0x3")
        if extra: a(f"v_add_f32_dpp v{extra[0]}, v{extra[0]}, v{extra[0]} row_ror:8 {DPPF}")
        for u in range(4): a(f"v_add_f32_dpp v{o + u}, v{v + 4 + u}, v{v + 4 + u} row_ror:8 row_mask:0xf bank_mask:0xc")
        if extra: a(f"v_mov_b32 v{extra[1]}, v{extra[0]}")
        a(f"v_permlane16_swap_b32 v{o}, v{o + 1}\nv_permlane16_swap_b32 v{o + 2}, v{o + 3}")
        if extra: a(f"v_permlane16_swap_b32 v{extra[1]}, v{extra[0]}")
        a(f"v_add_f32 v{o}, v{o}, v{o + 1}\nv_add_f32 v{o + 2}, v{o + 2}, v{o + 3}")
        if extra: a(f"v_add_f32 v{extra[0]}, v{extra[0]}, v{extra[1]}\nv_mov_b32 v{extra[1]}, v{extra[0]}")
        a(f"v_permlane32_swap_b32 v{o}, v{o + 2}")
        if extra: a(f"v_permlane32_swap_b32 v{extra[1]}, v{extra[0]}")
        a(f"v_add_f32 v{o}, v{o}, v{o + 2}")
        if extra: a(f"v_add_f32 v{extra[0]}, v{extra[0]}, v{extra[1]}\nv_rcp_f32 v{extra[0]}, v{extra[0]}")
    def to_a(val, tmp, A):
        a(f"v_mov_b32_dpp v{tmp}, v{val} quad_perm:[1,0,3,2] {DPPF}\nv_cvt_pk_bf16_f32 v{tmp}, v{val}, v{tmp}")
        for s_ in range(2):
            for r in range(4): a(f"v_mov_b32_dpp v{A + 4 * s_ + r}, v{tmp} row_newbcast:{8 * s_ + 2 * r} {DPPF}")
    def tr_reads():
        for s_ in range(2):
            for nt in range(2):
                for hf in range(2):
                    r = 16 + 8 * s_ + 4 * nt + 2 * hf
                    a(f"ds_read_b64_tr_b16 v[{r}:{r + 1}], v7 offset:{s_ * 2048 + nt * 32 + hf * 1024}")
    def gemv2():
        a(f"""v_mfma_f32_16x16x32_bf16 v[56:59], v[48:51], v[16:19], 0
              v_mfma_f32_16x16x32_bf16 v[64:67], v[48:51], v[20:23], 0
              v_mfma_f32_16x16x32_bf16 v[56:59], v[52:55], v[24:27], v[56:59]
              v_mfma_f32_16x16x32_bf16 v[64:67], v[52:55], v[28:31], v[64:67]
              s_mov_b32 s54, 0xffff0000
              s_mov_b32 s55, 0
              v_cndmask_b32 v56, v56, v64, s[54:55]""")
        setexec(0xffffffff)
    S = P["pf_stride"]
    def prefetch_wo():
        if P["no_pf"] & 1: return
        srd(40, "s12", "s13", "0x400000")
        a(f"""v_mul_u32_u24 v100, {S}, v0
              s_lshl_b32 s52, s28, 5
              s_add_u32 s52, s52, s29
              s_lshl_b32 s52, s52, 14""")
        for u in range(16384 // (64 * S)):
            a(f"buffer_load_dword v101, v100, s[40:43], s52 offen")
            a(f"s_add_u32 s52, s52, {64 * S}")
    def prefetch_ffn(rows=16):
        if P["no_pf"] & 2 or P["skip_ffn"]: return
        lpr = {128: 4, 64: 8, 32: 16}[S]; sh = lpr.bit_length() - 1
        a(f"""v_and_b32 v100, {lpr - 1}, v0
              v_mul_u32_u24 v100, {S}, v100
              v_min_u32 v100, 348, v100
              v_lshrrev_b32 v102, {sh}, v0
              v_mul_u32_u24 v102, 2752, v102
              v_add_u32 v100, v100, v102
              s_and_b32 s52, s29, {512 // rows - 1}
              s_mul_i32 s52, s52, {rows * 2752}
              s_mul_i32 s53, s28, 352
              s_add_u32 s53, s53, s52""")
        for lo, hi in (("s16", "s17"), ("s18", "s19")):
            srd(40, lo, hi, str(512 * 2752))
            for u in range(rows * lpr // 64):
                a(f"s_add_u32 s52, s53, {u * (64 // lpr) * 2752}\nbuffer_load_dword v101, v100, s[40:43], s52 offen")

    a(f"""s_cmp_ge_u32 s2, 256
          s_cbranch_scc1 L_end
          s_load_dwordx16 s[4:19], s[0:1], 0
          s_load_dwordx8 s[20:27], s[0:1], 64""")
    if P["stamps"]:
        a("s_memrealtime s[70:71]")
        for n in range(1, 12): a(f"s_mov_b64 s[{70 + 2 * n}:{71 + 2 * n}], 0")
    if P["pad_to"]: a("s_memrealtime s[68:69]")
    a(f"""v_lshrrev_b32 v1, 6, v0
          v_and_b32 v0, 63, v0
          s_and_b32 s28, s2, 7
          v_readfirstlane_b32 s3, v1
          s_lshr_b32 s29, s2, 3
          s_lshr_b32 s30, s29, 3
          s_lshl_b32 s52, s28, 2
          s_add_u32 s30, s30, s52
          s_and_b32 s31, s29, 7
          v_lshlrev_b32 v2, 4, v0
          s_and_b32 s61, s3, 3
          s_mov_b32 s35, 0x20000
          s_cmp_lt_u32 s3, 4
          s_cbranch_scc0 L_KV
          s_setprio 3
          v_lshrrev_b32 v3, 4, v0
          v_and_b32 v4, 15, v0
          v_and_b32 v5, 3, v0
          v_lshl_add_u32 v5, v5, 2, v3
          s_lshl_b32 s52, s31, 2
          s_add_u32 s52, s52, s61
          s_lshl_b32 s53, s52, 4
          v_add_u32 v5, s53, v5
          v_lshlrev_b32 v5, 1, v5
          v_lshlrev_b32 v6, 13, v3
          v_lshl_add_u32 v6, v4, 4, v6
          s_lshl_b32 s52, s52, 17
          s_lshl_b32 s53, s30, 8
          s_add_u32 s52, s52, s53
          s_mov_b32 s34, 0x400000
          s_mov_b32 s42, 1024
          s_mov_b32 s43, 0x20000
          s_waitcnt lgkmcnt(0)
          s_load_dword s44, s[26:27], 0
          s_mov_b32 s40, s4
          s_and_b32 s41, s5, 0xffff
          s_mov_b32 s32, s10
          s_and_b32 s33, s11, 0xffff
          buffer_load_dwordx4 v[8:11], v2, s[40:43], 0 offen
          buffer_load_ushort v12, v5, s[40:43], 0 offen""")
    for t in range(4):
        a(f"buffer_load_dwordx4 v[{16 + 4 * t}:{19 + 4 * t}], v6, s[32:35], s52 offen{WQ}")
        if t < 3: a("s_add_u32 s52, s52, 0x8000")
    stamp(1)
    a(f"""s_branch L_H
          L_KV:
          s_lshl_b32 s54, s30, 20
          s_lshl_b32 s53, s31, 17
          s_add_u32 s54, s54, s53
          s_lshl_b32 s52, s61, 10
          s_mov_b32 s34, 0x20000
          s_cmp_lt_u32 s3, 8
          s_cbranch_scc0 L_KV_v
          s_setprio 2
          L_KV_v:
          s_waitcnt lgkmcnt(0)
          s_cselect_b32 s32, s6, s8
          s_cselect_b32 s33, s7, s9
          s_add_u32 s32, s32, s54
          s_addc_u32 s33, s33, 0
          s_and_b32 s33, s33, 0xffff""")
    stamp(1)
    for t in range(32):
        if t: a("s_add_u32 s52, s52, 4096")
        if P["depth"] and t >= P["depth"]: a(f"s_waitcnt vmcnt({P['depth'] - 1})")
        a(f"buffer_load_dwordx4 v[{KB + 4 * t}:{KB + 4 * t + 3}], v2, s[32:35], s52 offen{KV}")
    a("s_load_dword s44, s[26:27], 0")
    stamp(2)
    a("""s_cmp_ge_u32 s3, 8
         s_cbranch_scc1 L_V""")

    ws_srd(); bitmasks()
    a(f"""v_and_b32 v8, 15, v0
          v_lshlrev_b32 v8, 4, v8
          v_mov_b32 v9, 0
          s_waitcnt lgkmcnt(0)""")
    tag_setup()
    lds_wait("L_K_wait", L_FLAG, 9, 3, 1)
    a(f"""ds_read_b128 v[4:7], v8 offset:{L_Q}
          s_waitcnt lgkmcnt(0)""")
    stamp(3)
    for b in range(2):
        R = lambda t, k=0: KB + 4 * (16 * b + t) + k
        for t in range(16):
            a(f"s_waitcnt vmcnt({31 - (16 * b + t)})")
            a(f"v_dot2_f32_bf16 v{R(t)}, v{R(t)}, v4, 0")
            for k in range(1, 4): a(f"v_dot2_f32_bf16 v{R(t)}, v{R(t, k)}, v{4 + k}, v{R(t)}")
        for u in range(8):
            a(f"v_add_f32_dpp v{R(u, 1)}, v{R(u)}, v{R(u)} row_ror:8 row_mask:0xf bank_mask:0x3")
        for u in range(8):
            a(f"v_add_f32_dpp v{R(u, 1)}, v{R(u + 8)}, v{R(u + 8)} row_ror:8 row_mask:0xf bank_mask:0xc")
        for u in range(4):
            a(f"v_add_f32_dpp v{R(u, 2)}, v{R(u, 1)}, v{R(u, 1)} row_shl:4 row_mask:0xf bank_mask:0x5")
        for u in range(4):
            a(f"v_add_f32_dpp v{R(u, 2)}, v{R(u + 4, 1)}, v{R(u + 4, 1)} row_shr:4 row_mask:0xf bank_mask:0xa")
        for u in range(4):
            a(f"v_add_f32_dpp v{R(u, 3)}, v{R(u, 2)}, v{R(u, 2)} quad_perm:[2,3,0,1] {DPPF}")
        for u in range(2):
            a(f"v_cndmask_b32 v{R(u + 4, 3)}, v{R(u, 3)}, v{R(u + 2, 3)}, s[54:55]")
        for u in range(2):
            a(f"v_add_f32_dpp v{R(u + 6, 3)}, v{R(u + 4, 3)}, v{R(u + 4, 3)} quad_perm:[1,0,3,2] {DPPF}")
        a(f"v_cndmask_b32 v{10 + b}, v{R(6, 3)}, v{R(7, 3)}, s[56:57]")
    stamp(4)
    a(f"v_cvt_pk_bf16_f32 v12, v10, v11")
    unpack(10, 11, 12)
    a(f"""v_mul_f32 v10, {SCALE}, v10
          v_mul_f32 v11, {SCALE}, v11
          v_cvt_pk_bf16_f32 v12, v10, v11""")
    unpack(10, 11, 12)
    a("v_max_f32 v13, v10, v11")
    row_allreduce("v_max_f32", [13]); cross_rows("v_max_f32", [13], [14])
    a(f"""v_sub_f32 v10, v10, v13
          v_sub_f32 v11, v11, v13
          v_mul_f32 v10, {LOG2E}, v10
          v_mul_f32 v11, {LOG2E}, v11
          v_exp_f32 v10, v10
          v_exp_f32 v11, v11
          s_lshl_b32 s53, s61, 9
          v_lshl_add_u32 v8, v0, 3, s53
          v_add_f32 v14, v10, v11
          v_cvt_pk_bf16_f32 v16, v10, v10
          v_cvt_pk_bf16_f32 v17, v11, v11
          ds_write_b64 v8, v[16:17] offset:{L_P}""")
    row_allreduce("v_add_f32", [14]); cross_rows("v_add_f32", [14], [15])
    a(f"""s_lshl_b32 s53, s61, 3
          v_mov_b32 v9, s53
          v_mov_b32 v18, v13
          v_mov_b32 v19, v14
          s_mov_b64 exec, 1
          ds_write_b64 v9, v[18:19] offset:{L_ST}
          s_mov_b64 exec, -1
          s_waitcnt lgkmcnt(0)""")
    stamp(5)
    a("s_branch L_T")

    a("L_V:")
    ws_srd(); perm_sel()
    sel_masks(36, 3, 4, 5)
    ffn_role()
    a(f"""s_mov_b32 s40, s20
          s_and_b32 s41, s21, 0xffff
          s_mov_b32 s42, {hex(1376 * 1024)}
          s_mov_b32 s43, 0x20000
          s_lshl_b32 s64, s62, 14
          s_lshl_b32 s52, s61, 8
          s_add_u32 s64, s64, s52
          v_lshrrev_b32 v3, 4, v0
          v_and_b32 v4, 15, v0
          v_lshlrev_b32 v1, 10, v3
          v_lshl_add_u32 v1, v4, 4, v1
          v_lshlrev_b32 v5, 4, v3
          v_lshl_add_u32 v19, v4, 5, v5
          s_mul_i32 s52, s61, {R_STRIDE}
          v_add_u32 v19, s52, v19
          s_lshl_b32 s53, s61, 9
          v_lshl_add_u32 v6, v0, 3, s53
          s_lshl_b32 s53, s61, 3
          v_mov_b32 v7, s53
          v_mov_b32 v3, 0
          s_lshl_b32 s66, s28, 5
          s_add_u32 s66, s66, s29
          s_mul_i32 s66, s66, {O_STRIDE}
          s_add_u32 s66, s66, {hex(WS_O)}
          s_waitcnt lgkmcnt(0)""")
    tag_setup()
    a("s_barrier")
    stamp(3)
    a(f"""s_setprio 3
          ds_read_b64 v[4:5], v6 offset:{L_P}
          ds_read_b128 v[8:11], v3 offset:{L_ST}
          ds_read_b128 v[12:15], v3 offset:{L_ST + 16}
          ds_read_b64 v[16:17], v7 offset:{L_ST}
          ds_read_b32 v18, v3 offset:{L_MODE}
          s_waitcnt lgkmcnt(0)
          v_readfirstlane_b32 s65, v18
          v_max3_f32 v8, v8, v10, v12
          v_max_f32 v8, v8, v14
          v_sub_f32 v18, v16, v8
          v_mul_f32 v18, {LOG2E}, v18
          v_exp_f32 v18, v18
          s_cmp_eq_u32 s61, 0
          s_cselect_b64 vcc, -1, 0
          v_cndmask_b32 v20, 0, v8, vcc
          v_mul_f32 v21, v18, v17
          v_mov_b32 v22, 0
          v_mov_b32 v23, 0
          v_mov_b32 v7, s52
          v_mov_b32 v3, s44
          s_mov_b64 exec, 1
          ds_write_b128 v7, v[20:23] offset:{L_R + 512}
          s_mov_b64 exec, -1""")
    for t in range(32):
        A = 28 + 4 * (t & 1)
        for r in range(4):
            a(f"v_and_b32_dpp v{A + r}, v{4 + (t >> 4)}, v{36 + r} row_newbcast:{t & 15} {DPPF}")
        a(f"s_waitcnt vmcnt({31 - t})")
        a(f"v_mfma_f32_16x16x32_bf16 v[24:27], v[{A}:{A + 3}], v[{KB + 4 * t}:{KB + 4 * t + 3}], {'0' if t == 0 else 'v[24:27]'}")
    stamp(4)
    for r in range(4): a(f"v_mul_f32 v{24 + r}, v18, v{24 + r}")
    setexec(0xffffffff)
    a(f"""ds_write_b128 v19, v[24:27] offset:{L_R}
          s_mov_b64 exec, -1
          s_waitcnt lgkmcnt(0)
          s_barrier""")
    stamp(5)
    a(f"""s_cmp_lg_u32 s61, 0
          s_cbranch_scc1 L_V_nopub""")
    setexec((1 << 33) - 1)
    for k in range(4): a(f"ds_read_b128 v[{56 + 4 * k}:{59 + 4 * k}], v2 offset:{L_R + k * R_STRIDE}")
    a("s_waitcnt lgkmcnt(2)")
    for r in range(4): a(f"v_add_f32 v{56 + r}, v{56 + r}, v{60 + r}")
    a("s_waitcnt lgkmcnt(0)")
    for r in range(4): a(f"v_add_f32 v{64 + r}, v{64 + r}, v{68 + r}")
    for r in range(4): a(f"v_add_f32 v{56 + r}, v{56 + r}, v{64 + r}")
    put_tags(56, 3)
    a(f"""s_cmp_eq_u32 s65, s44
          s_cbranch_scc0 L_V_safe
          buffer_store_dwordx4 v[56:59], v2, s[36:39], s66 offen
          L_V_pubd:
          s_mov_b64 exec, -1""")
    stamp(6)
    if P["stamps"]: a("s_cmp_eq_u32 s65, s44\ns_cselect_b32 s92, 1, 2")
    a(f"""s_cmp_lt_u32 s29, 16
          s_cbranch_scc0 L_V_nopub
          v_and_b32 v4, 7, v0
          v_lshrrev_b32 v5, 3, v0
          v_mul_u32_u24 v4, 144, v4
          v_lshl_add_u32 v4, v5, 4, v4
          v_lshlrev_b32 v5, 4, v5
          s_mul_i32 s52, s28, {A_STRIDE}
          s_lshl_b32 s53, s29, 7
          s_add_u32 s52, s52, s53
          s_add_u32 s52, s52, {hex(WS_A)}
          s_barrier
          ds_read_b128 v[56:59], v4 offset:{L_A}
          s_waitcnt lgkmcnt(0)""")
    stamp(9)
    oct_allreduce("v_add_f32", [56, 57, 58, 59])
    put_tags(56, 3)
    setexec(0x0101010101010101)
    a("buffer_store_dwordx4 v[56:59], v5, s[36:39], s52 offen sc1")
    stamp(10)
    a(f"""s_branch L_exit
          L_V_safe:
          buffer_store_dwordx4 v[56:59], v2, s[36:39], s66 offen sc1
          s_branch L_V_pubd
          L_V_nopub:
          s_cmp_eq_u32 s63, 1
          s_cbranch_scc0 L_exit""")
    if P["ffn_trig"] and P["down_at"] == 1: a("s_barrier")
    for u in range(4 if not P["skip_ffn"] else 0):
        a(f"s_add_u32 s52, s64, {u * 4096}")
        a(f"buffer_load_dwordx4 v[{KB + 4 * u}:{KB + 4 * u + 3}], v1, s[40:43], s52 offen")
    if P["ffn_trig"] and P["down_at"] == 0: a("s_barrier")
    a(f"""v_lshrrev_b32 v4, 4, v0
          v_and_b32 v5, 3, v0
          v_lshl_add_u32 v4, v5, 2, v4
          v_mul_u32_u24 v4, 40, v4
          v_bfe_u32 v5, v0, 2, 2
          v_lshl_add_u32 v4, v5, 3, v4
          v_and_b32 v5, 15, v0
          v_lshlrev_b32 v5, 5, v5
          v_lshrrev_b32 v6, 4, v0
          v_lshl_add_u32 v5, v6, 4, v5
          s_mul_i32 s52, s62, {F_STRIDE}
          s_lshl_b32 s53, s61, 9
          s_add_u32 s52, s52, s53
          s_add_u32 s52, s52, {hex(WS_F)}
          v_mov_b32 v20, {f32(GC2)}
          v_mov_b32 v21, {f32(GC1)}
          s_barrier
          s_waitcnt vmcnt(0)
          s_barrier
          ds_read_b64 v[8:9], v4 offset:{L_FG}
          ds_read_b64 v[10:11], v4 offset:{L_FG + 640}
          s_waitcnt lgkmcnt(0)""")
    stamp(7)
    a(f"""v_add_f32 v8, v8, v9
          v_add_f32 v10, v10, v11
          v_add_f32_dpp v8, v8, v8 row_ror:4 {DPPF}
          v_add_f32_dpp v10, v10, v10 row_ror:4 {DPPF}
          v_add_f32_dpp v8, v8, v8 row_ror:8 {DPPF}
          v_add_f32_dpp v10, v10, v10 row_ror:8 {DPPF}
          v_cvt_pk_bf16_f32 v12, v8, v10""")
    unpack(8, 10, 12)
    a(f"""v_mul_f32 v9, v8, v8
          v_fma_f32 v9, v9, v20, v21
          v_mul_f32 v9, v9, v8
          v_exp_f32 v9, v9
          v_add_f32 v9, 1.0, v9
          v_rcp_f32 v9, v9
          v_mul_f32 v9, v9, v8""")
    rbf(9)
    a(f"""v_mul_f32 v9, v9, v10
          v_cvt_pk_bf16_f32 v4, v9, v9""")
    for t in range(4):
        A = 28 + 4 * (t & 1)
        for r in range(4):
            a(f"v_and_b32_dpp v{A + r}, v4, v{36 + r} row_newbcast:{t} {DPPF}")
        a(f"v_mfma_f32_16x16x32_bf16 v[24:27], v[{A}:{A + 3}], v[{KB + 4 * t}:{KB + 4 * t + 3}], {'0' if t == 0 else 'v[24:27]'}")
    setexec(0xffffffff)
    put_tags(24, 3)
    a("buffer_store_dwordx4 v[24:27], v5, s[36:39], s52 offen sc1")
    stamp(8)
    a("s_branch L_exit")

    a("L_H:")
    ws_srd()
    a("s_cmp_eq_u32 s3, 1\ns_cbranch_scc0 L_H_notok")
    perm_sel()
    a(f"""s_getreg_b32 s67, hwreg(HW_REG_XCC_ID, 0, 4)
          s_lshl_b32 s67, s67, 8
          s_lshl_b32 s66, s28, 12
          s_add_u32 s66, s66, {hex(WS_X)}
          s_lshl_b32 s52, s29, 7
          s_add_u32 s52, s52, s66
          v_mov_b32 v104, s67
          v_mov_b32 v105, s67
          v_mov_b32 v106, s67
          v_mov_b32 v107, s67
          v_mov_b32 v108, 0
          s_waitcnt lgkmcnt(0)
          s_add_u32 s53, s44, {hex(TAG_STEP)}
          v_mov_b32 v109, s53""")
    put_tags(104, 109)
    a("""s_mov_b64 exec, 1
         buffer_store_dwordx4 v[104:107], v108, s[36:39], s52 offen
         s_mov_b64 exec, -1
         s_mov_b32 s64, 1
         s_branch L_H_tok
         L_H_notok:
         s_mov_b32 s64, 0
         L_H_tok:""")
    sel_masks(88, 13, 14, 15)
    a("""s_cmp_eq_u32 s64, 1
         s_cbranch_scc1 L_H_w1
         s_waitcnt vmcnt(4)
         s_branch L_H_w2
         L_H_w1:
         s_waitcnt vmcnt(5)
         L_H_w2:""")
    for k in range(4): unpack(80 + 2 * k, 81 + 2 * k, 8 + k)
    a("""v_add_f32 v8, v80, v81
         v_add_f32 v9, v82, v83
         v_add_f32 v10, v84, v85
         v_add_f32 v11, v86, v87
         v_add_f32 v8, v8, v9
         v_add_f32 v10, v10, v11
         v_add_f32 v8, v8, v10""")
    row_allreduce("v_add_f32", [8]); cross_rows("v_add_f32", [8], [9])
    a(f"v_mul_f32 v8, {f32(1 / 512)}, v8")
    for k in range(8): a(f"v_sub_f32 v{80 + k}, v{80 + k}, v8")
    a("v_mul_f32 v9, v80, v80")
    for k in range(1, 8): a(f"v_fmac_f32 v9, v{80 + k}, v{80 + k}")
    row_allreduce("v_add_f32", [9]); cross_rows("v_add_f32", [9], [10])
    a(f"""v_mul_f32 v9, {f32(1 / 512)}, v9
          v_cvt_pk_bf16_f32 v10, v8, v9""")
    unpack(8, 9, 10)
    a(f"v_add_f32 v9, {EPS}, v9")
    rbf(9)
    a(f"""v_sqrt_f32 v9, v9
          v_lshlrev_b32 v12, 16, v12
          v_sub_f32 v12, v12, v8""")
    rbf(9); rbf(12)
    a(f"""v_rcp_f32 v10, v9
          v_mul_f32 v11, v12, v10
          v_fma_f32 v13, -v11, v9, v12
          v_fma_f32 v11, v13, v10, v11
          v_cvt_pk_bf16_f32 v12, v11, v11
          s_cmp_eq_u32 s64, 1
          s_cbranch_scc1 L_H_w3
          s_waitcnt vmcnt(0)
          s_branch L_H_w4
          L_H_w3:
          s_waitcnt vmcnt(1)
          L_H_w4:""")
    stamp(2)
    for t in range(4):
        A = 96 + 4 * (t & 1)
        for r in range(4):
            a(f"v_and_b32_dpp v{A + r}, v12, v{88 + r} row_newbcast:{t} {DPPF}")
        a(f"v_mfma_f32_16x16x32_bf16 v[92:95], v[{A}:{A + 3}], v[{16 + 4 * t}:{19 + 4 * t}], {'0' if t == 0 else 'v[92:95]'}")
    a("s_waitcnt lgkmcnt(0)")
    tag_setup()
    a(f"""s_cmp_eq_u32 s3, 0
          s_cbranch_scc1 L_H0
          s_lshl_b32 s52, s61, 9
          v_add_u32 v5, s52, v2
          s_lshl_b32 s52, s61, 2
          v_mov_b32 v6, s52
          v_mov_b32 v7, s44""")
    setexec(0xffffffff)
    a(f"""ds_write_b128 v5, v[92:95] offset:{L_HQ - 512}
          s_waitcnt lgkmcnt(0)
          s_mov_b64 exec, 1
          ds_write_b32 v6, v7 offset:{L_HF}
          s_mov_b64 exec, -1
          s_branch L_H123
          L_H0:
          v_lshlrev_b32 v4, 6, v4
          v_lshl_add_u32 v4, v3, 5, v4
          s_lshl_b32 s53, s30, 13
          s_add_u32 s53, s53, {hex(WS_Q)}
          s_lshl_b32 s58, s31, 10
          s_add_u32 s58, s58, s53
          v_mov_b32 v5, 0
          s_mov_b32 s60, 0
          L_H0_join:
          ds_read_b128 v[8:11], v5 offset:{L_HF}
          s_waitcnt lgkmcnt(0)
          v_xor_b32 v9, s44, v9
          v_bitop3_b32 v9, v9, v10, s44 bitop3:0xf6
          v_bitop3_b32 v9, v9, v11, s44 bitop3:0xf6
          v_cmp_ne_u32 vcc, 0, v9
          s_cbranch_vccz L_H0_joined
          s_add_u32 s60, s60, 1
          s_cmp_lt_u32 s60, {POLL_CAP}
          s_cbranch_scc1 L_H0_join
          L_H0_joined:""")
    for k in range(3): a(f"ds_read_b128 v[{16 + 4 * k}:{19 + 4 * k}], v2 offset:{L_HQ + 512 * k}")
    a(f"""v_mov_b32 v9, s44
          v_mov_b32 v11, s44
          v_mov_b32 v13, s44
          v_mov_b32 v15, s44
          s_waitcnt lgkmcnt(0)""")
    for r in range(4): a(f"v_add_f32 v{92 + r}, v{92 + r}, v{16 + r}\nv_add_f32 v{20 + r}, v{20 + r}, v{24 + r}")
    for r in range(4): a(f"v_add_f32 v{8 + 2 * r}, v{92 + r}, v{20 + r}")
    setexec(0xffffffff)
    a(f"""buffer_store_dwordx4 v[8:11], v4, s[36:39], s58 offen
          buffer_store_dwordx4 v[12:15], v4, s[36:39], s58 offen offset:16
          s_mov_b64 exec, -1
          s_mov_b32 s65, 0""")
    def republish():
        l = a.label("L_rep")
        a(f"""s_cmp_eq_u32 s65, 1
              s_cbranch_scc1 {l}
              ds_read_b64 v[6:7], v5 offset:{L_MODE}
              s_waitcnt lgkmcnt(0)
              v_readfirstlane_b32 s64, v7
              v_readfirstlane_b32 s59, v6
              s_cmp_eq_u32 s64, s44
              s_cbranch_scc0 {l}
              s_mov_b32 s65, 1
              s_cmp_eq_u32 s59, s44
              s_cbranch_scc1 {l}""")
        setexec(0xffffffff)
        a(f"""buffer_store_dwordx4 v[8:11], v4, s[36:39], s58 offen sc1
              buffer_store_dwordx4 v[12:15], v4, s[36:39], s58 offen offset:16 sc1
              s_mov_b64 exec, -1
              {l}:""")
    stamp(3)
    a(f"""s_add_u32 s52, s53, 4096
          s_mov_b32 s60, 0""")
    if P["q_sleep"]: a(f"s_sleep {P['q_sleep']}")
    a("L_H0_poll:")
    for p in range(8):
        a(f"buffer_load_dwordx4 v[{16 + 4 * p}:{19 + 4 * p}], v2, s[36:39], {'s53' if p < 4 else 's52'} offen offset:{(p & 3) * 1024} sc1")
    for p in range(8):
        a(f"s_waitcnt vmcnt({7 - p})")
        if p == 0: a(f"v_xor_b32 v62, s44, v17")
        else: a(f"v_bitop3_b32 v62, v62, v{17 + 4 * p}, s44 bitop3:0xf6")
        a(f"v_bitop3_b32 v62, v62, v{19 + 4 * p}, s44 bitop3:0xf6")
    a(f"""v_cmp_ne_u32 vcc, 0, v62
          s_cbranch_vccz L_H0_got""")
    republish()
    a(f"""s_add_u32 s60, s60, 1
          s_cmp_lt_u32 s60, {POLL_CAP}
          s_sleep 4
          s_cbranch_scc1 L_H0_poll
          L_H0_got:""")
    note(5, "s60")
    for p in range(1, 8):
        a(f"v_add_f32 v16, v16, v{16 + 4 * p}\nv_add_f32 v18, v18, v{18 + 4 * p}")
    a(f"""v_cvt_pk_bf16_f32 v16, v16, v18
          v_lshlrev_b32 v3, 2, v0
          v_mov_b32 v6, s44
          ds_write_b32 v3, v16 offset:{L_Q}
          s_waitcnt lgkmcnt(0)
          s_mov_b64 exec, 1
          ds_write_b32 v5, v6 offset:{L_FLAG}
          s_mov_b64 exec, -1
          s_waitcnt lgkmcnt(0)""")
    stamp(4)
    lds_wait("L_H0_mode", L_MFLAG, 5, 6, 4)
    republish()
    a("s_branch L_T")

    a("""L_H123:
         s_cmp_eq_u32 s3, 1
         s_cbranch_scc0 L_H23
         v_and_b32 v3, 31, v0
         v_lshlrev_b32 v3, 7, v3""")
    if P["x_sleep"]: a(f"s_sleep {P['x_sleep']}")
    poll("L_H1_poll", [("buffer_load_dwordx4 v[4:7], v3, s[36:39], s66 offen sc1", 4)], cap=12, sleep=8)
    a("s_mov_b64 exec, -1")
    a(f"""s_cmp_lt_u32 s60, 12
          s_cselect_b32 s67, s67, -1
          v_and_b32 v4, 0xffffff00, v4
          v_cmp_ne_u32 vcc, s67, v4
          s_cmp_eq_u64 vcc, 0
          s_cselect_b32 s52, s44, 0""")
    if P["force_safe"]: a("s_mov_b32 s52, 0")
    a(f"""v_mov_b32 v4, s52
          v_mov_b32 v5, s44
          v_mov_b32 v9, 0
          s_mov_b64 exec, 1
          ds_write_b64 v9, v[4:5] offset:{L_MODE}
          s_mov_b64 exec, -1
          s_waitcnt lgkmcnt(0)""")
    stamp(3)
    a("s_branch L_T\nL_H23:")
    if P["prefetch_code"]:
        a(f"""s_cmp_eq_u32 s3, 2
              s_cbranch_scc0 L_H3
              s_getpc_b64 s[52:53]
              L_pc:
              s_sub_u32 s52, s52, L_pc-{NAME}
              s_subb_u32 s53, s53, 0
              v_lshlrev_b32 v3, 6, v0
              v_add_u32 v3, 1024, v3
              v_min_u32 v4, L_end-{NAME}, v3
              global_load_dword v100, v4, s[52:53]
              v_add_u32 v3, 4096, v3
              v_min_u32 v4, L_end-{NAME}, v3
              global_load_dword v101, v4, s[52:53]
              v_add_u32 v3, 4096, v3
              v_min_u32 v4, L_end-{NAME}, v3
              global_load_dword v102, v4, s[52:53]""")
        if P["warm"]:
            a(f"""s_lshl_b32 s52, s28, 5
                  s_add_u32 s52, s52, s29
                  s_mul_i32 s52, s52, {O_STRIDE}
                  s_add_u32 s52, s52, {hex(WS_O)}
                  v_lshlrev_b32 v3, 7, v0
                  s_mov_b64 exec, 31
                  buffer_load_dword v103, v3, s[36:39], s52 offen
                  s_mov_b64 exec, -1""")
        if P["warm"] & 2:
            a(f"""s_mul_i32 s52, s2, 768
                  s_add_u32 s52, s52, {hex(WS_F)}
                  s_mov_b64 exec, 63
                  buffer_load_dword v104, v3, s[36:39], s52 offen
                  s_mov_b32 s52, {hex(WS_A)}
                  s_mov_b64 exec, -1
                  buffer_load_dword v105, v3, s[36:39], s52 offen
                  s_add_u32 s52, s52, 8192
                  buffer_load_dword v106, v3, s[36:39], s52 offen
                  s_add_u32 s52, s52, 8192
                  buffer_load_dword v107, v3, s[36:39], s52 offen""")
        a(f"""s_branch L_T
              L_H3:""")
    else:
        a("s_cmp_eq_u32 s3, 2\ns_cbranch_scc1 L_T")
    if P["pf_wo"] == 0: prefetch_wo()
    if P["pf_wo"] == 1 or P["pf_ffn"] == 0:
        a("v_mov_b32 v9, 0")
        lds_wait("L_H3_wait", L_FLAG, 9, 3, 4)
        if P["pf_wo"] == 1: prefetch_wo()
        if P["pf_ffn"] == 0: prefetch_ffn()

    a("L_T:\ns_setprio 0")
    ffn_role(); bitmasks()
    a(f"""v_lshrrev_b32 v3, 4, v0
          v_lshrrev_b32 v4, 3, v0
          v_and_b32 v5, 7, v0
          v_bfe_u32 v7, v0, 2, 2
          v_lshl_add_u32 v7, v7, 2, v3
          v_lshlrev_b32 v7, 6, v7
          v_and_b32 v8, 3, v0
          v_lshl_add_u32 v7, v8, 3, v7
          s_lshl_b32 s61, s3, 12
          s_add_u32 s61, s61, {L_W}
          v_add_u32 v7, s61, v7
          v_lshrrev_b32 v9, 2, v0
          s_cmp_lt_u32 s29, 16
          s_cbranch_scc1 L_T_wo
          s_cmp_eq_u32 s63, 1
          s_cbranch_scc1 L_T_ffn""")
    def b12(at_b2=None, late_pf=True, at_b1=None):
        a("s_barrier"); stamp(6)
        if at_b1: at_b1()
        for when, fn in ((P["pf_wo"] == 2, prefetch_wo), (P["pf_ffn"] == 1, prefetch_ffn)):
            if when:
                l = a.label("L_pf"); a(f"s_cmp_eq_u32 s3, 3\ns_cbranch_scc0 {l}"); fn(); a(f"{l}:")
        a("s_barrier"); stamp(7)
        if at_b2: at_b2()
        if P["pf_ffn"] == 2 and late_pf:
            l = a.label("L_pf"); a(f"s_cmp_eq_u32 s3, 3\ns_cbranch_scc0 {l}"); prefetch_ffn(32); a(f"{l}:")
    a(f"""s_sub_u32 s52, s29, 27
          s_cmp_lt_u32 s52, 4
          s_cselect_b32 s53, 1, 0
          s_cmp_lt_u32 s3, 2
          s_cselect_b32 s53, s53, 0
          s_cmp_eq_u32 s53, 1
          s_cbranch_scc1 L_T_fin""")
    b12()
    a("s_branch L_exit")

    a(f"""L_T_wo:
          v_lshlrev_b32 v10, 10, v9
          v_lshl_add_u32 v10, v8, 4, v10
          s_lshl_b32 s52, s28, 9
          s_lshl_b32 s53, s3, 6
          s_add_u32 s52, s52, s53
          s_lshl_b32 s52, s52, 10
          s_lshl_b32 s53, s29, 6
          s_add_u32 s64, s52, s53
          v_mul_u32_u24 v11, {O_STRIDE}, v4
          v_lshl_add_u32 v12, v5, 4, v11
          s_lshl_b32 s52, s28, 5
          s_lshr_b32 s53, s3, 1
          s_lshl_b32 s53, s53, 3
          s_add_u32 s52, s52, s53
          s_mul_i32 s52, s52, {O_STRIDE}
          s_add_u32 s58, s52, {hex(WS_O)}
          s_and_b32 s53, s3, 1
          s_lshl_b32 s53, s53, 8
          s_add_u32 s59, s53, s58
          v_and_b32 v13, 31, v0
          v_lshlrev_b32 v13, 2, v13
          s_mul_i32 s53, s3, 144
          v_add_u32 v13, s53, v13""")
    def wo_dma():
        srd(40, "s12", "s13", "0x400000")
        for t in range(4):
            a(f"""s_add_u32 m0, s61, {t * 1024}
                  s_add_u32 s53, s64, {t * 16384}
                  buffer_load_dwordx4 v10, s[40:43], s53 offen lds""")
    if P["wo_at"] == 1: b12(late_pf=False, at_b1=wo_dma)
    else: b12(wo_dma, late_pf=False)
    def after_dma(slot):
        def f(n):
            a(f"s_waitcnt vmcnt({n})"); tr_reads(); stamp(slot)
        return f
    poll("L_wo_poll", [("buffer_load_dwordx4 v[32:35], v11, s[36:39], s58 offen offset:512 sc1", 32),
                       ("buffer_load_dwordx4 v[36:39], v12, s[36:39], s59 offen sc1", 36),
                       ("buffer_load_dwordx4 v[40:43], v12, s[36:39], s59 offen offset:128 sc1", 40)], first=after_dma(11))
    a("s_mov_b64 exec, -1")
    stamp(8)
    note(10, "s60")
    a(f"""v_and_b32 v32, 0xffffff00, v32
          v_max_f32_dpp v34, v32, v32 row_ror:8 {DPPF}""")
    cross_rows("v_max_f32", [34], [35])
    a(f"""v_sub_f32 v32, v32, v34
          v_mul_f32 v32, {LOG2E}, v32
          v_exp_f32 v32, v32
          v_mul_f32 v33, v32, v33""")
    for r in range(8): a(f"v_mul_f32 v{36 + r}, v32, v{36 + r}")
    treduce(36, 44, (33, 34))
    a("v_mul_f32 v44, v44, v33")
    to_a(44, 45, 48)
    a("s_waitcnt lgkmcnt(0)")
    gemv2()
    a(f"""ds_write_b32 v13, v56 offset:{L_A}
          s_waitcnt lgkmcnt(0)
          s_barrier
          s_branch L_exit""")

    a(f"""L_T_ffn:
          s_lshl_b32 s52, s3, 6
          v_add_u32 v10, s52, v9
          v_mul_u32_u24 v10, 2752, v10
          v_and_b32 v14, 1, v0
          v_lshl_add_u32 v10, v14, 4, v10
          s_lshl_b32 s52, s62, 5
          v_add_u32 v10, s52, v10
          v_mov_b32 v72, s16
          v_mov_b32 v73, s17
          v_mov_b32 v14, s18
          v_mov_b32 v15, s19
          v_cndmask_b32 v72, v72, v14, s[54:55]
          v_cndmask_b32 v73, v73, v15, s[54:55]
          v_add_co_u32 v72, vcc, v72, v10
          v_addc_co_u32 v73, vcc, 0, v73, vcc
          v_and_b32 v14, 15, v0
          v_lshl_add_u32 v14, v14, 2, v3
          v_lshlrev_b32 v14, 1, v14
          s_lshl_b32 s52, s3, 7
          v_add_u32 v14, s52, v14""")
    srd(40, "s4", "s5", "1024")
    a(f"""buffer_load_ushort v68, v14, s[40:43], 0 offen
          v_lshlrev_b32 v70, 4, v5
          v_mul_u32_u24 v10, {A_STRIDE}, v4
          v_add_u32 v70, v70, v10
          s_lshl_b32 s52, s3, 8
          v_add_u32 v70, s52, v70
          v_and_b32 v71, 31, v0
          v_mul_u32_u24 v71, 40, v71
          s_lshl_b32 s52, s3, 2
          v_add_u32 v71, s52, v71
          s_lshl_b32 s52, s3, 4
          v_mov_b32 v74, s52
          v_lshlrev_b32 v75, 4, v5
          s_lshl_b32 s52, s28, 5
          s_mul_i32 s52, s52, {O_STRIDE}
          s_add_u32 s58, s52, {hex(WS_O)}
          v_and_b32 v11, 31, v0
          v_mul_u32_u24 v11, {O_STRIDE}, v11""")
    b12()
    if P["ffn_trig"]:
        a("s_cmp_eq_u32 s3, 0\ns_cbranch_scc0 L_ffn_trigd")
        poll("L_trig_poll", [("buffer_load_dwordx4 v[32:35], v11, s[36:39], s58 offen offset:512 sc1", 32)], sleep=2)
        a("s_mov_b64 exec, -1\nL_ffn_trigd:\ns_barrier")
    stamp(8)
    for t in range(4 if not P["skip_ffn"] else 0):
        a(f"s_add_u32 m0, s61, {t * 1024}\nglobal_load_lds_dwordx4 v[72:73], off")
        if t < 3: a("v_add_co_u32 v72, vcc, 44032, v72\nv_addc_co_u32 v73, vcc, 0, v73, vcc")
    a(f"s_mov_b32 s58, {hex(WS_A)}")
    poll("L_ffn_poll", [("buffer_load_dwordx4 v[36:39], v70, s[36:39], s58 offen sc1", 36),
                        ("buffer_load_dwordx4 v[40:43], v70, s[36:39], s58 offen offset:128 sc1", 40)], first=after_dma(9))
    a("s_mov_b64 exec, -1\nv_lshlrev_b32 v68, 16, v68")
    stamp(10)
    note(1, "s60")
    treduce(36, 44)
    rbf(44)
    a("v_add_f32 v44, v44, v68")
    rbf(44)
    a(f"""v_readfirstlane_b32 s53, v44
          v_subrev_f32 v53, s53, v44
          v_mov_b32 v52, s53
          v_mul_f32 v54, v53, v53""")
    row_allreduce("v_add_f32", [53, 54]); cross_rows("v_add_f32", [53, 54], [56, 57])
    a(f"""s_mov_b64 exec, 1
          v_mov_b32 v55, 0
          ds_write_b128 v74, v[52:55] offset:{L_S2}
          s_mov_b64 exec, -1
          s_waitcnt lgkmcnt(0)
          s_barrier
          ds_read_b128 v[52:55], v75 offset:{L_S2}
          s_waitcnt lgkmcnt(0)""")
    stamp(11)
    a(f"""v_mul_f32 v56, 0x42800000, v52
          v_add_f32 v56, v56, v53""")
    oct_allreduce("v_add_f32", [56])
    a(f"""v_mul_f32 v56, {f32(1 / 512)}, v56
          v_sub_f32 v57, v56, v52
          v_mul_f32 v58, 0x42800000, v57
          v_fmac_f32 v58, -2.0, v53
          v_fma_f32 v57, v58, v57, v54""")
    oct_allreduce("v_add_f32", [57])
    a(f"""v_mul_f32 v57, {f32(1 / 512)}, v57
          v_cvt_pk_bf16_f32 v58, v56, v57""")
    unpack(56, 57, 58)
    a(f"""v_add_f32 v57, {EPS}, v57
          v_sub_f32 v44, v44, v56
          v_cvt_pk_bf16_f32 v57, v57, v57
          v_cvt_pk_bf16_f32 v44, v44, v44
          v_and_b32 v57, 0xffff0000, v57
          v_sqrt_f32 v57, v57
          v_and_b32 v44, 0xffff0000, v44""")
    rbf(57)
    a(f"""v_rcp_f32 v57, v57
          v_mul_f32 v44, v44, v57""")
    to_a(44, 45, 48)
    gemv2()
    a(f"""ds_write_b32 v71, v56 offset:{L_FG}
          s_waitcnt lgkmcnt(0)
          s_barrier
          s_branch L_exit""")

    a(f"""L_T_fin:
          s_lshl_b32 s53, s28, 2
          s_add_u32 s52, s52, s53
          s_lshl_b32 s52, s52, 1
          s_add_u32 s64, s52, s3
          v_and_b32 v4, 1, v0
          v_lshlrev_b32 v5, 3, v4
          s_lshl_b32 s52, s64, 4
          v_add_u32 v5, s52, v5""")
    srd(40, "s4", "s5", "1024")
    a(f"""buffer_load_dwordx2 v[8:9], v5, s[40:43], 0 offen
          v_lshlrev_b32 v6, 1, v5
          v_bfe_u32 v7, v0, 1, 3
          v_mul_u32_u24 v7, {A_STRIDE}, v7
          v_add_u32 v10, v7, v6
          v_lshrrev_b32 v7, 1, v0
          v_mul_u32_u24 v7, {F_STRIDE}, v7
          v_add_u32 v11, v7, v6
          v_lshl_add_u32 v5, v3, 1, v5
          v_mov_b32 v44, 0
          v_mov_b32 v45, 0
          v_mov_b32 v46, 0
          v_mov_b32 v47, 0""")
    b12(late_pf=False)
    a(f"s_mov_b32 s58, {hex(WS_A)}\ns_waitcnt vmcnt(0)")
    unpack(16, 17, 8); unpack(18, 19, 9)
    srd(40, "s22", "s23", "1024")
    poll("L_fin_poll1", [("buffer_load_dwordx4 v[20:23], v10, s[36:39], s58 offen sc1", 20)], sleep=2)
    a("s_mov_b64 exec, -1")
    stamp(8)
    def fin_dpp(rs):
        for mode in ("quad_perm:[2,3,0,1]", "row_ror:4", "row_ror:8"):
            for r in rs: a(f"v_add_f32_dpp v{r}, v{r}, v{r} {mode} {DPPF}")
    fin_dpp([20, 21, 22, 23])
    a("v_cvt_pk_bf16_f32 v24, v20, v21\nv_cvt_pk_bf16_f32 v25, v22, v23")
    unpack(20, 21, 24); unpack(22, 23, 25)
    for r in range(4): a(f"v_add_f32 v{20 + r}, v{20 + r}, v{16 + r}")
    a(f"""v_cmp_eq_u32 vcc, 1, v3
          v_cndmask_b32 v20, v20, v21, vcc
          v_cmp_eq_u32 vcc, 2, v3
          v_cndmask_b32 v20, v20, v22, vcc
          v_cmp_eq_u32 vcc, 3, v3
          v_cndmask_b32 v20, v20, v23, vcc""")
    rbf(20)
    a(f"""s_mov_b32 s58, {hex(WS_F)}
          s_mov_b32 s59, {hex(WS_F + 32 * F_STRIDE)}
          s_mov_b32 s53, {hex(WS_F + 64 * F_STRIDE)}
          v_mov_b32 v63, 0
          s_mov_b32 s60, 0
          s_mov_b32 s54, -1
          s_mov_b32 s55, 0xfff
          L_fin_poll2:
          buffer_load_dwordx4 v[36:39], v11, s[36:39], s58 offen sc1
          buffer_load_dwordx4 v[40:43], v11, s[36:39], s59 offen sc1
          s_mov_b64 s[56:57], exec
          s_and_b64 exec, exec, s[54:55]
          s_cbranch_scc0 L_fin_no3
          buffer_load_dwordx4 v[44:47], v11, s[36:39], s53 offen sc1
          L_fin_no3:
          s_waitcnt vmcnt(0)
          s_mov_b64 exec, s[56:57]""")
    chk_tags(62, 36, True); chk_tags(62, 40, False)
    a("s_and_b64 exec, exec, s[54:55]")
    chk_tags(62, 44, False)
    a(f"""s_mov_b64 exec, s[56:57]
          v_cmp_ne_u32_sdwa vcc, v62, v63 src0_sel:BYTE_0 src1_sel:DWORD
          s_add_u32 s60, s60, 1
          s_and_b64 exec, vcc, vcc
          s_cbranch_scc0 L_fin_got2
          s_cmp_lt_u32 s60, {POLL_CAP}
          s_cbranch_scc1 L_fin_poll2
          L_fin_got2:
          s_mov_b64 exec, -1""")
    stamp(9)
    for r in range(4): a(f"v_add_f32 v{36 + r}, v{36 + r}, v{40 + r}")
    for r in range(4): a(f"v_add_f32 v{36 + r}, v{36 + r}, v{44 + r}")
    fin_dpp([36, 37, 38, 39])
    a(f"""v_permlane16_swap_b32 v36, v37
          v_permlane16_swap_b32 v38, v39
          v_add_f32 v36, v36, v37
          v_add_f32 v38, v38, v39
          v_permlane32_swap_b32 v36, v38
          v_add_f32 v36, v36, v38""")
    rbf(36)
    a(f"""v_add_f32 v36, v36, v20
          v_cvt_pk_bf16_f32 v36, v36, v36""")
    setexec(0x0003000300030003)
    a(f"""buffer_store_short v36, v5, s[40:43], 0 offen
          s_cmp_lg_u32 s64, 0
          s_cbranch_scc1 L_fin_done
          s_mov_b64 exec, 1
          v_mov_b32 v4, s44
          v_mov_b32 v6, 0
          buffer_store_dword v4, v6, s[36:39], 0 offen
          L_fin_done:""")
    if P["pad_to"]:
        a(f"""s_mov_b32 s60, 0
              L_pad:
              s_memrealtime s[66:67]
              s_waitcnt lgkmcnt(0)
              s_sub_u32 s66, s66, s68
              s_add_u32 s60, s60, 1
              s_cmp_gt_u32 s60, 100000
              s_cbranch_scc1 L_padd
              s_cmp_lt_u32 s66, {P['pad_to']}
              s_cbranch_scc1 L_pad
              L_padd:""")
    stamp(10)

    a("L_exit:")
    if P["stamps"]:
        a(f"""s_mov_b64 exec, 1
              s_mul_i32 s52, s2, 12
              s_add_u32 s52, s52, s3
              s_lshl_b32 s52, s52, 6
              s_add_u32 s52, s52, {hex(WS_STAMP)}
              v_mov_b32 v3, 0
              s_waitcnt lgkmcnt(0)""")
        for q in range(3):
            for k in range(4): a(f"v_mov_b32 v{4 + 4 * q + k}, s{70 + 2 * (4 * q + k)}")
            a(f"buffer_store_dwordx4 v[{4 + 4 * q}:{7 + 4 * q}], v3, s[36:39], s52 offen offset:{16 * q}")
    a("L_end:\ns_endpgm")

    lines, nops = fix_hazards(a.lines)
    hdr = f"""; Fused pre-LN attention (cached K/V) + GeGLU FFN decode step for gfx950, one launch.
; @launch grid=(256,1,1) block=(768,1,1) lds={P['lds']}
.amdgcn_target "amdgcn-amd-amdhsa--gfx950"
.text
.globl {NAME}
.p2align 8
.type {NAME},@function
{NAME}:
"""
    ftr = f"""
    .fill 32, 4, 0xbf800000
.section .rodata,"a"
.p2align 6
.amdhsa_kernel {NAME}
  .amdhsa_next_free_vgpr 168
  .amdhsa_next_free_sgpr 96
  .amdhsa_accum_offset 168
  .amdhsa_group_segment_fixed_size 0
  .amdhsa_kernarg_size 96
  .amdhsa_user_sgpr_count 2
  .amdhsa_user_sgpr_kernarg_segment_ptr 1
  .amdhsa_system_sgpr_workgroup_id_x 1
  .amdhsa_float_denorm_mode_32 3
.end_amdhsa_kernel
"""
    return hdr + "\n".join(lines) + ftr, nops

if __name__ == "__main__":
    out = sys.argv[1]
    kw = {}
    for x in sys.argv[2:]:
        k, v = x.split("="); kw[k] = int(v)
    s, n = build(**kw)
    open(out, "w").write(s)
    print("wrote", out, "lines", s.count("\n"), "nop states inserted", n)
```

```python
import sys, struct
from asmlib import Asm, fix_hazards

NAME = "sequential_preLN__mha_block_cached__geglu_ffn__decode_kernel"
def f32(x): return "0x%08x" % struct.unpack("<I", struct.pack("<f", x))[0]

WS_X, WS_Q, WS_O, WS_A, WS_F, WS_STAMP, WS_SIZE = 0x1000, 0x10000, 0x50000, 0x90000, 0xA0000, 0x100000, 0x200000
O_STRIDE, A_STRIDE, F_STRIDE = 640, 2176, 2176
L_Q, L_FLAG, L_MODE, L_MFLAG, L_ST, L_P, L_R, L_A, L_S2, L_FG, L_HF, L_HQ, L_W, LDS_SIZE = \
    0, 256, 264, 268, 288, 512, 2560, 4736, 5888, 4736, 6272, 6400, 8192, 40960
R_STRIDE = 528
TAG_STEP = 0x9E3779B1
SCALE = f32(128 ** -0.5)
LOG2E = f32(1.4426950408889634)
EPS = f32(1e-5)
GC1 = -2.0 * 0.7978845608028654 * 1.4426950408889634
GC2 = GC1 * 0.044715
DPPF = "row_mask:0xf bank_mask:0xf"
POLL_CAP = 100000
L_S2 = 6016
L_KF = 272
L_FG2 = 4736

DEF = dict(kv_nt=True, wq_nt=True, stamps=False, q_sleep=25, x_sleep=30, force_safe=False, prefetch_code=False, pad_to=0,
           lds=LDS_SIZE, pf_stride=128, pf_wo=9, pf_ffn=2, ffn_trig=1, no_pf=0, depth=0, wo_at=1, down_at=0, skip_ffn=0, warm=0, sync=0, ffn_at=2, dma_flag=0, fin_sleep=40, fused=1, wo_sleep=0, wo_split=4, lean_a=1, thr_even=0, thr_odd=0, thr_k=1, ffn_rot=0, ffn_sleep=0, nfe=16, nfo=6, wo_wait=1, trig_odd=0, trig_even=0, kprio=2, rot=0, poll_sleep=0)

def build(**kw):
    P = dict(DEF); P.update(kw)
    a = Asm()
    KV = ["", " nt", " sc1 nt", " sc0 sc1 nt", " sc0 nt", " sc1", " sc0 sc1"][int(P["kv_nt"])]
    WQ = " nt" if P["wq_nt"] else ""
    KB = 40

    def stamp(n, key=False):
        if P["stamps"] == 1 or (P["stamps"] == 2 and key): a(f"s_memrealtime s[{70 + 2 * n}:{71 + 2 * n}]")
    def note(n, sreg):
        if P["stamps"] == 1: a(f"s_mov_b32 s{70 + 2 * n}, {sreg}")
    def srd(d, lo, hi, size):
        a(f"s_mov_b32 s{d}, {lo}\ns_and_b32 s{d + 1}, {hi}, 0xffff\ns_mov_b32 s{d + 2}, {size}\ns_mov_b32 s{d + 3}, 0x20000")
    def ws_srd(): srd(36, "s26", "s27", hex(WS_SIZE))
    def tag_setup():
        a(f"""s_add_u32 s44, s44, {hex(TAG_STEP)}
              s_lshr_b32 s45, s44, 8
              s_lshr_b32 s46, s44, 16
              s_lshr_b32 s47, s44, 24""")
    def perm_sel():
        for k in range(4): a(f"s_mov_b32 s{48 + k}, {hex(0x07060500 + k)}")
    def put_tags(r, vtag):
        for k in range(4): a(f"v_perm_b32 v{r + k}, v{r + k}, v{vtag}, s{48 + k}")
    def chk_tags(acc, r, first):
        for k in range(4):
            if first and k == 0: a(f"v_xor_b32 v{acc}, s44, v{r}")
            else: a(f"v_bitop3_b32 v{acc}, v{acc}, v{r + k}, s{44 + k} bitop3:0xf6")
    def setexec(mask):
        if mask == -1: a("s_mov_b64 exec, -1")
        elif mask < 64: a(f"s_mov_b64 exec, {mask}")
        else: a(f"s_mov_b32 exec_lo, {hex(mask & 0xffffffff)}\ns_mov_b32 exec_hi, {hex(mask >> 32)}")
    def poll(name, loads, cap=POLL_CAP, sleep=None, first=None):
        sleep = P["poll_sleep"] if sleep is None else sleep
        a("s_mov_b32 s60, 0\nv_mov_b32 v63, 0")
        if first:
            for txt, _ in loads: a(txt)
            first(len(loads))
            a(f"s_branch {name}_chk")
        a(f"{name}:")
        for txt, _ in loads: a(txt)
        if first: a(f"{name}_chk:")
        for k, (_, r) in enumerate(loads):
            a(f"s_waitcnt vmcnt({len(loads) - 1 - k})"); chk_tags(62, r, k == 0)
        a(f"""v_cmp_ne_u32_sdwa vcc, v62, v63 src0_sel:BYTE_0 src1_sel:DWORD
              s_add_u32 s60, s60, 1
              s_and_b64 exec, vcc, vcc
              s_cbranch_scc0 {name}_ok
              s_cmp_lt_u32 s60, {cap}""")
        if sleep: a(f"s_sleep {sleep}")
        a(f"s_cbranch_scc1 {name}\n{name}_ok:")
    def lds_wait(name, off, vz, vt, sleep):
        a(f"""s_mov_b32 s60, 0
              {name}:
              ds_read_b32 v{vt}, v{vz} offset:{off}
              s_waitcnt lgkmcnt(0)
              v_readfirstlane_b32 s52, v{vt}
              s_cmp_eq_u32 s52, s44
              s_cbranch_scc1 {name}_ok
              s_sleep {sleep}
              s_add_u32 s60, s60, 1
              s_cmp_lt_u32 s60, {POLL_CAP}
              s_cbranch_scc1 {name}
              {name}_ok:""")
    def row_allreduce(op, rs):
        for mode in ("quad_perm:[1,0,3,2]", "quad_perm:[2,3,0,1]", "row_half_mirror", "row_mirror"):
            for r in rs: a(f"{op}_dpp v{r}, v{r}, v{r} {mode} {DPPF}")
    def oct_allreduce(op, rs):
        for mode in ("quad_perm:[1,0,3,2]", "quad_perm:[2,3,0,1]", "row_half_mirror"):
            for r in rs: a(f"{op}_dpp v{r}, v{r}, v{r} {mode} {DPPF}")
    def cross_rows(op, rs, tmps):
        for sw in ("v_permlane16_swap_b32", "v_permlane32_swap_b32"):
            for r, t in zip(rs, tmps): a(f"v_mov_b32 v{t}, v{r}")
            for r, t in zip(rs, tmps): a(f"{sw} v{t}, v{r}")
            for r, t in zip(rs, tmps): a(f"{op} v{r}, v{r}, v{t}")
    def sel_masks(m, t0, t1, t2):
        a(f"""v_bfe_u32 v{t0}, v0, 1, 3
              v_and_b32 v{t1}, 1, v0
              v_lshlrev_b32 v{t1}, 4, v{t1}
              v_mov_b32 v{t2}, 0xffff
              v_lshlrev_b32 v{t1}, v{t1}, v{t2}""")
        for r in range(4):
            a(f"v_cmp_eq_u32 vcc, {r}, v{t0}\nv_cndmask_b32 v{m + r}, 0, v{t1}, vcc")
    def unpack(dst_lo, dst_hi, src):
        a(f"v_and_b32 v{dst_hi}, 0xffff0000, v{src}\nv_lshlrev_b32 v{dst_lo}, 16, v{src}")
    def rbf(r): a(f"v_cvt_pk_bf16_f32 v{r}, v{r}, v{r}\nv_and_b32 v{r}, 0xffff0000, v{r}")
    def bitmasks():
        a("""s_mov_b32 s54, 0xcccccccc
             s_mov_b32 s55, 0xcccccccc
             s_mov_b32 s56, 0xaaaaaaaa
             s_mov_b32 s57, 0xaaaaaaaa""")
    NFE, NFO = P["nfe"], P["nfo"]
    def ffn_role():
        a(f"""s_lshr_b32 s52, s28, 1
              s_mul_i32 s67, s52, {NFE}
              s_mul_i32 s53, s52, {NFO}
              s_add_u32 s53, s53, {4 * NFE}
              s_bitcmp1_b32 s28, 0
              s_cselect_b32 s67, s53, s67
              s_cselect_b32 s69, {NFO}, {NFE}
              s_sub_u32 s52, s29, 16
              s_add_u32 s62, s67, s52
              s_cmp_lt_u32 s52, s69
              s_cselect_b32 s53, 1, 0
              s_cmp_lt_u32 s62, 86
              s_cselect_b32 s63, s53, 0""")
    def treduce(v, o, extra=None):
        for u in range(4): a(f"v_add_f32_dpp v{o + u}, v{v + u}, v{v + u} row_ror:8 row_mask:0xf bank_mask:0x3")
        if extra: a(f"v_add_f32_dpp v{extra[0]}, v{extra[0]}, v{extra[0]} row_ror:8 {DPPF}")
        for u in range(4): a(f"v_add_f32_dpp v{o + u}, v{v + 4 + u}, v{v + 4 + u} row_ror:8 row_mask:0xf bank_mask:0xc")
        if extra: a(f"v_mov_b32 v{extra[1]}, v{extra[0]}")
        a(f"v_permlane16_swap_b32 v{o}, v{o + 1}\nv_permlane16_swap_b32 v{o + 2}, v{o + 3}")
        if extra: a(f"v_permlane16_swap_b32 v{extra[1]}, v{extra[0]}")
        a(f"v_add_f32 v{o}, v{o}, v{o + 1}\nv_add_f32 v{o + 2}, v{o + 2}, v{o + 3}")
        if extra: a(f"v_add_f32 v{extra[0]}, v{extra[0]}, v{extra[1]}\nv_mov_b32 v{extra[1]}, v{extra[0]}")
        a(f"v_permlane32_swap_b32 v{o}, v{o + 2}")
        if extra: a(f"v_permlane32_swap_b32 v{extra[1]}, v{extra[0]}")
        a(f"v_add_f32 v{o}, v{o}, v{o + 2}")
        if extra: a(f"v_add_f32 v{extra[0]}, v{extra[0]}, v{extra[1]}\nv_rcp_f32 v{extra[0]}, v{extra[0]}")
    def to_a(val, tmp, A):
        a(f"v_mov_b32_dpp v{tmp}, v{val} quad_perm:[1,0,3,2] {DPPF}\nv_cvt_pk_bf16_f32 v{tmp}, v{val}, v{tmp}")
        for s_ in range(2):
            for r in range(4): a(f"v_mov_b32_dpp v{A + 4 * s_ + r}, v{tmp} row_newbcast:{8 * s_ + 2 * r} {DPPF}")
    def tr_reads():
        for s_ in range(2):
            for nt in range(2):
                for hf in range(2):
                    r = 16 + 8 * s_ + 4 * nt + 2 * hf
                    a(f"ds_read_b64_tr_b16 v[{r}:{r + 1}], v7 offset:{s_ * 2048 + nt * 32 + hf * 1024}")
    def gemv2():
        a(f"""v_mfma_f32_16x16x32_bf16 v[56:59], v[48:51], v[16:19], 0
              v_mfma_f32_16x16x32_bf16 v[64:67], v[48:51], v[20:23], 0
              v_mfma_f32_16x16x32_bf16 v[56:59], v[52:55], v[24:27], v[56:59]
              v_mfma_f32_16x16x32_bf16 v[64:67], v[52:55], v[28:31], v[64:67]
              s_mov_b32 s54, 0xffff0000
              s_mov_b32 s55, 0
              v_cndmask_b32 v56, v56, v64, s[54:55]""")
        setexec(0xffffffff)
    DF = ["", " nt", " sc1", " sc0 sc1", " sc0"][P["dma_flag"]]
    S = P["pf_stride"]
    def prefetch_wo():
        if P["no_pf"] & 1: return
        srd(40, "s12", "s13", "0x400000")
        a(f"""v_mul_u32_u24 v100, {S}, v0
              s_lshl_b32 s52, s28, 5
              s_add_u32 s52, s52, s29
              s_lshl_b32 s52, s52, 14""")
        for u in range(16384 // (64 * S)):
            a(f"buffer_load_dword v101, v100, s[40:43], s52 offen")
            a(f"s_add_u32 s52, s52, {64 * S}")
    def prefetch_ffn(rows=0):
        if P["no_pf"] & 2 or P["skip_ffn"]: return
        a(f"""v_and_b32 v100, 7, v0
              v_lshlrev_b32 v100, 7, v100
              s_lshl_b32 s52, s69, 5
              s_sub_u32 s52, s52, 4
              v_min_u32 v100, s52, v100
              v_lshrrev_b32 v102, 3, v0
              v_mul_u32_u24 v102, 2752, v102
              v_add_u32 v100, v100, v102
              s_sub_u32 s52, s29, 16
              s_mul_i32 s52, s52, {32 * 2752}
              s_lshl_b32 s53, s67, 5
              s_add_u32 s53, s53, s52""")
        for lo, hi in (("s16", "s17"), ("s18", "s19")):
            srd(40, lo, hi, str(512 * 2752))
            for u in range(4):
                a(f"s_add_u32 s52, s53, {u * 8 * 2752}\nbuffer_load_dword v101, v100, s[40:43], s52 offen")

    a(f"""s_cmp_ge_u32 s2, 256
          s_cbranch_scc1 L_end
          s_load_dwordx16 s[4:19], s[0:1], 0
          s_load_dwordx8 s[20:27], s[0:1], 64""")
    if P["stamps"]:
        a("s_memrealtime s[70:71]")
        for n in range(1, 12): a(f"s_mov_b64 s[{70 + 2 * n}:{71 + 2 * n}], 0")
    if P["pad_to"]: a("s_memrealtime s[68:69]")
    a(f"""v_lshrrev_b32 v1, 6, v0
          v_and_b32 v0, 63, v0
          s_and_b32 s28, s2, 7
          v_readfirstlane_b32 s3, v1
          s_lshr_b32 s29, s2, 3
          s_lshr_b32 s30, s29, 3
          s_lshl_b32 s52, s28, 2
          s_add_u32 s30, s30, s52
          s_and_b32 s31, s29, 7
          v_lshlrev_b32 v2, 4, v0
          s_and_b32 s61, s3, 3
          s_mov_b32 s35, 0x20000
          s_cmp_lt_u32 s3, 4
          s_cbranch_scc0 L_KV
          s_setprio 3
          v_lshrrev_b32 v3, 4, v0
          v_and_b32 v4, 15, v0
          v_and_b32 v5, 3, v0
          v_lshl_add_u32 v5, v5, 2, v3
          s_lshl_b32 s52, s31, 2
          s_add_u32 s52, s52, s61
          s_lshl_b32 s53, s52, 4
          v_add_u32 v5, s53, v5
          v_lshlrev_b32 v5, 1, v5
          v_lshlrev_b32 v6, 13, v3
          v_lshl_add_u32 v6, v4, 4, v6
          s_lshl_b32 s52, s52, 17
          s_lshl_b32 s53, s30, 8
          s_add_u32 s52, s52, s53
          s_mov_b32 s34, 0x400000
          s_mov_b32 s42, 1024
          s_mov_b32 s43, 0x20000
          s_waitcnt lgkmcnt(0)
          s_load_dword s44, s[26:27], 0
          s_mov_b32 s40, s4
          s_and_b32 s41, s5, 0xffff
          s_mov_b32 s32, s10
          s_and_b32 s33, s11, 0xffff
          buffer_load_dwordx4 v[8:11], v2, s[40:43], 0 offen
          buffer_load_ushort v12, v5, s[40:43], 0 offen""")
    for t in range(4):
        a(f"buffer_load_dwordx4 v[{16 + 4 * t}:{19 + 4 * t}], v6, s[32:35], s52 offen{WQ}")
        if t < 3: a("s_add_u32 s52, s52, 0x8000")
    stamp(1)
    a(f"""s_branch L_H
          L_KV:
          s_lshl_b32 s54, s30, 20
          s_lshl_b32 s53, s31, 17
          s_add_u32 s54, s54, s53
          s_lshl_b32 s52, s61, 10
          s_mov_b32 s34, 0x20000
          s_cmp_lt_u32 s3, 8
          s_cbranch_scc0 L_KV_v
          s_setprio {P['kprio']}
          L_KV_v:
          s_waitcnt lgkmcnt(0)
          s_cselect_b32 s32, s6, s8
          s_cselect_b32 s33, s7, s9
          s_add_u32 s32, s32, s54
          s_addc_u32 s33, s33, 0
          s_and_b32 s33, s33, 0xffff""")
    stamp(1)
    def stream(depth):
        if P["rot"]:
            a(f"s_mul_i32 s53, s2, {P['rot']}\ns_lshl_b32 s53, s53, 12\ns_add_u32 s52, s52, s53")
        for t in range(32):
            if t: a("s_add_u32 s52, s52, 4096")
            if P["rot"]: a("s_and_b32 s52, s52, 0x1ffff")
            if depth and t >= depth: a(f"s_waitcnt vmcnt({depth - 1})")
            a(f"buffer_load_dwordx4 v[{KB + 4 * t}:{KB + 4 * t + 3}], v2, s[32:35], s52 offen{KV}")
    THR = P["thr_even"] or P["thr_odd"]
    if not THR:
        stream(P["depth"])
        a("s_load_dword s44, s[26:27], 0")
    else:
        a(f"""s_load_dword s44, s[26:27], 0
              s_getreg_b32 s53, hwreg(HW_REG_XCC_ID, 0, 1)
              s_cmp_lt_u32 s3, 8
              s_cbranch_scc1 L_st_go
              s_lshl_b32 s54, s61, 2
              v_mov_b32 v9, s54
              s_waitcnt lgkmcnt(0)
              s_add_u32 s54, s44, {hex(TAG_STEP)}
              s_mov_b32 s60, 0
              L_st_wait:
              ds_read_b32 v3, v9 offset:{L_KF}
              s_waitcnt lgkmcnt(0)
              v_readfirstlane_b32 s55, v3
              s_cmp_eq_u32 s55, s54
              s_cbranch_scc1 L_st_go
              s_sleep 2
              s_add_u32 s60, s60, 1
              s_cmp_lt_u32 s60, {POLL_CAP}
              s_cbranch_scc1 L_st_wait
              L_st_go:""")
        if not P["thr_k"]: a("s_cmp_lt_u32 s3, 8\ns_cbranch_scc1 L_st_odd")
        a("""s_cmp_eq_u32 s53, 1
             s_cbranch_scc1 L_st_odd""")
        stream(P["thr_even"])
        a("s_branch L_st_done\nL_st_odd:")
        stream(P["thr_odd"])
        a(f"""L_st_done:
              s_cmp_ge_u32 s3, 8
              s_cbranch_scc1 L_st_nflag
              s_lshl_b32 s54, s61, 2
              v_mov_b32 v9, s54
              s_waitcnt lgkmcnt(0)
              s_add_u32 s54, s44, {hex(TAG_STEP)}
              v_mov_b32 v3, s54
              s_mov_b64 exec, 1
              ds_write_b32 v9, v3 offset:{L_KF}
              s_mov_b64 exec, -1
              L_st_nflag:""")
    stamp(2)
    a("""s_cmp_ge_u32 s3, 8
         s_cbranch_scc1 L_V""")

    ws_srd(); bitmasks()
    a(f"""v_and_b32 v8, 15, v0
          v_lshlrev_b32 v8, 4, v8
          v_mov_b32 v9, 0
          s_waitcnt lgkmcnt(0)""")
    tag_setup()
    lds_wait("L_K_wait", L_FLAG, 9, 3, 1)
    a(f"""ds_read_b128 v[4:7], v8 offset:{L_Q}
          s_waitcnt lgkmcnt(0)""")
    stamp(3)
    for b in range(2):
        R = lambda t, k=0: KB + 4 * (16 * b + t) + k
        for t in range(16):
            a(f"s_waitcnt vmcnt({31 - (16 * b + t)})")
            a(f"v_dot2_f32_bf16 v{R(t)}, v{R(t)}, v4, 0")
            for k in range(1, 4): a(f"v_dot2_f32_bf16 v{R(t)}, v{R(t, k)}, v{4 + k}, v{R(t)}")
        for u in range(8):
            a(f"v_add_f32_dpp v{R(u, 1)}, v{R(u)}, v{R(u)} row_ror:8 row_mask:0xf bank_mask:0x3")
        for u in range(8):
            a(f"v_add_f32_dpp v{R(u, 1)}, v{R(u + 8)}, v{R(u + 8)} row_ror:8 row_mask:0xf bank_mask:0xc")
        for u in range(4):
            a(f"v_add_f32_dpp v{R(u, 2)}, v{R(u, 1)}, v{R(u, 1)} row_shl:4 row_mask:0xf bank_mask:0x5")
        for u in range(4):
            a(f"v_add_f32_dpp v{R(u, 2)}, v{R(u + 4, 1)}, v{R(u + 4, 1)} row_shr:4 row_mask:0xf bank_mask:0xa")
        for u in range(4):
            a(f"v_add_f32_dpp v{R(u, 3)}, v{R(u, 2)}, v{R(u, 2)} quad_perm:[2,3,0,1] {DPPF}")
        for u in range(2):
            a(f"v_cndmask_b32 v{R(u + 4, 3)}, v{R(u, 3)}, v{R(u + 2, 3)}, s[54:55]")
        for u in range(2):
            a(f"v_add_f32_dpp v{R(u + 6, 3)}, v{R(u + 4, 3)}, v{R(u + 4, 3)} quad_perm:[1,0,3,2] {DPPF}")
        a(f"v_cndmask_b32 v{10 + b}, v{R(6, 3)}, v{R(7, 3)}, s[56:57]")
    stamp(4)
    a(f"v_cvt_pk_bf16_f32 v12, v10, v11")
    unpack(10, 11, 12)
    a(f"""v_mul_f32 v10, {SCALE}, v10
          v_mul_f32 v11, {SCALE}, v11
          v_cvt_pk_bf16_f32 v12, v10, v11""")
    unpack(10, 11, 12)
    a("v_max_f32 v13, v10, v11")
    row_allreduce("v_max_f32", [13]); cross_rows("v_max_f32", [13], [14])
    a(f"""v_sub_f32 v10, v10, v13
          v_sub_f32 v11, v11, v13
          v_mul_f32 v10, {LOG2E}, v10
          v_mul_f32 v11, {LOG2E}, v11
          v_exp_f32 v10, v10
          v_exp_f32 v11, v11
          s_lshl_b32 s53, s61, 9
          v_lshl_add_u32 v8, v0, 3, s53
          v_add_f32 v14, v10, v11
          v_cvt_pk_bf16_f32 v16, v10, v10
          v_cvt_pk_bf16_f32 v17, v11, v11
          ds_write_b64 v8, v[16:17] offset:{L_P}""")
    row_allreduce("v_add_f32", [14]); cross_rows("v_add_f32", [14], [15])
    a(f"""s_lshl_b32 s53, s61, 3
          v_mov_b32 v9, s53
          v_mov_b32 v18, v13
          v_mov_b32 v19, v14
          s_mov_b64 exec, 1
          ds_write_b64 v9, v[18:19] offset:{L_ST}
          s_mov_b64 exec, -1
          s_waitcnt lgkmcnt(0)""")
    stamp(5)
    a("s_branch L_T")

    a("L_V:")
    ws_srd(); perm_sel()
    sel_masks(36, 3, 4, 5)
    ffn_role()
    a(f"""s_mov_b32 s40, s20
          s_and_b32 s41, s21, 0xffff
          s_mov_b32 s42, {hex(1376 * 1024)}
          s_mov_b32 s43, 0x20000
          s_lshl_b32 s64, s62, 14
          s_lshl_b32 s52, s61, 8
          s_add_u32 s64, s64, s52
          v_lshrrev_b32 v3, 4, v0
          v_and_b32 v4, 15, v0
          v_lshlrev_b32 v1, 10, v3
          v_lshl_add_u32 v1, v4, 4, v1
          v_lshlrev_b32 v5, 4, v3
          v_lshl_add_u32 v19, v4, 5, v5
          s_mul_i32 s52, s61, {R_STRIDE}
          v_add_u32 v19, s52, v19
          s_lshl_b32 s53, s61, 9
          v_lshl_add_u32 v6, v0, 3, s53
          s_lshl_b32 s53, s61, 3
          v_mov_b32 v7, s53
          v_mov_b32 v3, 0
          s_lshl_b32 s66, s28, 5
          s_add_u32 s66, s66, s29
          s_mul_i32 s66, s66, {O_STRIDE}
          s_add_u32 s66, s66, {hex(WS_O)}
          s_waitcnt lgkmcnt(0)""")
    tag_setup()
    a("s_barrier")
    stamp(3)
    a(f"""s_setprio 3
          ds_read_b64 v[4:5], v6 offset:{L_P}
          ds_read_b128 v[8:11], v3 offset:{L_ST}
          ds_read_b128 v[12:15], v3 offset:{L_ST + 16}
          ds_read_b64 v[16:17], v7 offset:{L_ST}
          ds_read_b32 v18, v3 offset:{L_MODE}
          s_waitcnt lgkmcnt(0)
          v_readfirstlane_b32 s65, v18
          v_max3_f32 v8, v8, v10, v12
          v_max_f32 v8, v8, v14
          v_sub_f32 v18, v16, v8
          v_mul_f32 v18, {LOG2E}, v18
          v_exp_f32 v18, v18
          s_cmp_eq_u32 s61, 0
          s_cselect_b64 vcc, -1, 0
          v_cndmask_b32 v20, 0, v8, vcc
          v_mul_f32 v21, v18, v17
          v_mov_b32 v22, 0
          v_mov_b32 v23, 0
          v_mov_b32 v7, s52
          v_mov_b32 v3, s44
          s_mov_b64 exec, 1
          ds_write_b128 v7, v[20:23] offset:{L_R + 512}
          s_mov_b64 exec, -1""")
    def down_loads():
        for u in range(4 if not P["skip_ffn"] else 0):
            a(f"s_add_u32 s52, s64, {u * 4096}")
            a(f"buffer_load_dwordx4 v[{KB + 4 * u}:{KB + 4 * u + 3}], v1, s[40:43], s52 offen")
    if P["down_at"] == 2: a("s_cmp_eq_u32 s63, 1\ns_cselect_b32 s42, s42, 0")
    for t in range(32):
        A = 28 + 4 * (t & 1)
        for r in range(4):
            a(f"v_and_b32_dpp v{A + r}, v{4 + (t >> 4)}, v{36 + r} row_newbcast:{t & 15} {DPPF}")
        a(f"s_waitcnt vmcnt({31 - t + (4 if P['down_at'] == 2 and t > 5 else 0)})")
        a(f"v_mfma_f32_16x16x32_bf16 v[24:27], v[{A}:{A + 3}], v[{KB + 4 * t}:{KB + 4 * t + 3}], {'0' if t == 0 else 'v[24:27]'}")
        if t == 5 and P["down_at"] == 2: down_loads()
    if P["sync"]:
        a(f"""s_waitcnt lgkmcnt(0)
              s_lshr_b32 s52, s70, 11
              s_add_u32 s52, s52, 2
              s_lshl_b32 s52, s52, 11
              s_mul_i32 s53, s2, 0x9e3779b1
              s_lshr_b32 s53, s53, 25
              s_mul_i32 s53, s53, {P["sync"] - 1}
              s_lshr_b32 s53, s53, 7
              s_add_u32 s52, s52, s53
              s_mov_b32 s60, 0
              L_sync:
              s_memrealtime s[98:99]
              s_waitcnt lgkmcnt(0)
              s_sub_u32 s53, s98, s52
              s_add_u32 s60, s60, 1
              s_cmp_gt_u32 s60, 100000
              s_cbranch_scc1 L_syncd
              s_cmp_lt_i32 s53, 0
              s_cbranch_scc1 L_sync
              L_syncd:""")
    stamp(4, True)
    for r in range(4): a(f"v_mul_f32 v{24 + r}, v18, v{24 + r}")
    setexec(0xffffffff)
    a(f"""ds_write_b128 v19, v[24:27] offset:{L_R}
          s_mov_b64 exec, -1
          s_waitcnt lgkmcnt(0)
          s_barrier""")
    stamp(5)
    a(f"""s_cmp_lg_u32 s61, 0
          s_cbranch_scc1 L_V_nopub""")
    setexec((1 << 33) - 1)
    for k in range(4): a(f"ds_read_b128 v[{56 + 4 * k}:{59 + 4 * k}], v2 offset:{L_R + k * R_STRIDE}")
    a("s_waitcnt lgkmcnt(2)")
    for r in range(4): a(f"v_add_f32 v{56 + r}, v{56 + r}, v{60 + r}")
    a("s_waitcnt lgkmcnt(0)")
    for r in range(4): a(f"v_add_f32 v{64 + r}, v{64 + r}, v{68 + r}")
    for r in range(4): a(f"v_add_f32 v{56 + r}, v{56 + r}, v{64 + r}")
    put_tags(56, 3)
    a(f"""s_cmp_eq_u32 s65, s44
          s_cbranch_scc0 L_V_safe
          buffer_store_dwordx4 v[56:59], v2, s[36:39], s66 offen
          L_V_pubd:
          s_mov_b64 exec, -1""")
    stamp(6)
    if P["stamps"] == 1: a("s_cmp_eq_u32 s65, s44\ns_cselect_b32 s92, 1, 2")
    a(f"""L_V_nopub:
          s_cmp_lt_u32 s29, 16
          s_cbranch_scc0 L_V_nowo
          s_cmp_lt_u32 s61, 2
          s_cbranch_scc0 L_exit
          v_and_b32 v4, 7, v0
          v_lshrrev_b32 v5, 3, v0
          v_mul_u32_u24 v4, 272, v4
          v_lshl_add_u32 v4, v5, 4, v4
          s_lshl_b32 s53, s61, 7
          v_add_u32 v4, s53, v4
          v_lshlrev_b32 v5, 4, v5
          s_lshl_b32 s52, s28, 1
          s_lshr_b32 s54, s29, 3
          s_add_u32 s52, s52, s54
          s_mul_i32 s52, s52, {A_STRIDE}
          s_add_u32 s52, s52, s53
          s_lshl_b32 s53, s31, 8
          s_add_u32 s52, s52, s53
          s_add_u32 s52, s52, {hex(WS_A)}
          v_bfe_u32 v6, v0, 2, 1
          v_bfe_u32 v7, v0, 1, 1
          v_lshl_add_u32 v7, v6, 1, v7
          v_lshl_add_u32 v6, v7, 2, v5
          v_add_u32 v7, 0x07060500, v7
          s_mov_b32 s54, 0xcccccccc
          s_mov_b32 s55, 0xcccccccc
          s_barrier
          ds_read_b128 v[56:59], v4 offset:{L_A}
          s_waitcnt lgkmcnt(0)""")
    stamp(9)
    for u in range(2): a(f"v_add_f32_dpp v{60 + u}, v{56 + u}, v{56 + u} row_shl:4 row_mask:0xf bank_mask:0x5")
    for u in range(2): a(f"v_add_f32_dpp v{60 + u}, v{58 + u}, v{58 + u} row_shr:4 row_mask:0xf bank_mask:0xa")
    for u in range(2): a(f"v_add_f32_dpp v{60 + u}, v{60 + u}, v{60 + u} quad_perm:[2,3,0,1] {DPPF}")
    a(f"""v_cndmask_b32 v60, v60, v61, s[54:55]
          v_add_f32_dpp v60, v60, v60 quad_perm:[1,0,3,2] {DPPF}
          v_perm_b32 v60, v60, v3, v7""")
    setexec(0x5555555555555555)
    a("buffer_store_dword v60, v6, s[36:39], s52 offen sc1")
    stamp(10)
    a(f"""s_branch L_exit
          L_V_safe:
          buffer_store_dwordx4 v[56:59], v2, s[36:39], s66 offen sc1
          s_branch L_V_pubd
          L_V_nowo:
          s_cmp_eq_u32 s63, 1
          s_cbranch_scc0 L_exit""")
    if P["ffn_trig"] and P["down_at"] == 1: a("s_barrier")
    if P["down_at"] != 2: down_loads()
    if P["ffn_trig"] and P["down_at"] != 1: a("s_barrier")
    a(f"""v_lshrrev_b32 v4, 4, v0
          v_and_b32 v5, 3, v0
          v_lshl_add_u32 v4, v5, 2, v4
          v_mul_u32_u24 v4, 40, v4
          v_bfe_u32 v5, v0, 2, 2
          v_lshl_add_u32 v4, v5, 3, v4
          v_and_b32 v5, 15, v0
          v_lshlrev_b32 v5, 5, v5
          v_lshrrev_b32 v6, 4, v0
          v_lshl_add_u32 v5, v6, 4, v5
          s_mul_i32 s52, s62, {F_STRIDE}
          s_lshl_b32 s53, s61, 9
          s_add_u32 s52, s52, s53
          s_add_u32 s52, s52, {hex(WS_F)}
          v_mov_b32 v20, {f32(GC2)}
          v_mov_b32 v21, {f32(GC1)}""")
    if not P["fused"]:
        a(f"""s_barrier
              s_waitcnt vmcnt(0)
              s_barrier
              ds_read_b64 v[8:9], v4 offset:{L_FG}
              ds_read_b64 v[10:11], v4 offset:{L_FG + 640}
              s_waitcnt lgkmcnt(0)""")
        stamp(7)
        a(f"""v_add_f32 v8, v8, v9
              v_add_f32 v10, v10, v11
              v_add_f32_dpp v8, v8, v8 row_ror:4 {DPPF}
              v_add_f32_dpp v10, v10, v10 row_ror:4 {DPPF}
              v_add_f32_dpp v8, v8, v8 row_ror:8 {DPPF}
              v_add_f32_dpp v10, v10, v10 row_ror:8 {DPPF}
              v_cvt_pk_bf16_f32 v12, v8, v10""")
    else:
        a(f"""v_bfe_u32 v6, v0, 2, 2
              v_lshlrev_b32 v6, 3, v6
              s_waitcnt vmcnt(0)
              s_barrier
              ds_read_b64 v[16:17], v6 offset:{L_FG2 + 65 * 40}
              ds_read_b64 v[18:19], v6 offset:{L_FG2 + 64 * 40}
              ds_read_b64 v[8:9], v4 offset:{L_FG2}
              ds_read_b64 v[10:11], v4 offset:{L_FG2 + 640}
              ds_read_b64 v[12:13], v4 offset:{L_FG2 + 1280}
              ds_read_b64 v[14:15], v4 offset:{L_FG2 + 1920}
              s_waitcnt lgkmcnt(4)""")
        stamp(7)
        a(f"""v_add_f32 v16, v16, v17
              v_add_f32 v18, v18, v19
              s_waitcnt lgkmcnt(0)
              v_add_f32 v8, v8, v9
              v_add_f32 v10, v10, v11
              v_add_f32 v12, v12, v13
              v_add_f32 v14, v14, v15""")
        for mode in ("row_ror:4", "row_ror:8"):
            for r in (16, 18, 8, 10, 12, 14): a(f"v_add_f32_dpp v{r}, v{r}, v{r} {mode} {DPPF}")
        a(f"""v_mul_f32 v16, {f32(1 / 512)}, v16
              v_mul_f32 v18, {f32(1 / 512)}, v18
              v_fma_f32 v18, -v16, v16, v18
              v_max_f32 v18, 0, v18
              v_cvt_pk_bf16_f32 v17, v16, v18""")
        unpack(16, 18, 17)
        a(f"""v_add_f32 v18, {EPS}, v18
              v_fma_f32 v8, -v16, v12, v8
              v_cvt_pk_bf16_f32 v18, v18, v18
              v_fma_f32 v10, -v16, v14, v10
              v_and_b32 v18, 0xffff0000, v18
              v_sqrt_f32 v18, v18""")
        rbf(18)
        a(f"""v_rcp_f32 v18, v18
              v_mul_f32 v8, v8, v18
              v_mul_f32 v10, v10, v18
              v_cvt_pk_bf16_f32 v12, v8, v10""")
    unpack(8, 10, 12)
    a(f"""v_mul_f32 v9, v8, v8
          v_fma_f32 v9, v9, v20, v21
          v_mul_f32 v9, v9, v8
          v_exp_f32 v9, v9
          v_add_f32 v9, 1.0, v9
          v_rcp_f32 v9, v9
          v_mul_f32 v9, v9, v8""")
    rbf(9)
    a(f"""v_mul_f32 v9, v9, v10
          v_cvt_pk_bf16_f32 v4, v9, v9""")
    for t in range(4):
        A = 28 + 4 * (t & 1)
        for r in range(4):
            a(f"v_and_b32_dpp v{A + r}, v4, v{36 + r} row_newbcast:{t} {DPPF}")
        a(f"v_mfma_f32_16x16x32_bf16 v[24:27], v[{A}:{A + 3}], v[{KB + 4 * t}:{KB + 4 * t + 3}], {'0' if t == 0 else 'v[24:27]'}")
    setexec(0xffffffff)
    put_tags(24, 3)
    a("buffer_store_dwordx4 v[24:27], v5, s[36:39], s52 offen sc1")
    stamp(8)
    a("s_branch L_exit")

    a("L_H:")
    ws_srd()
    a("s_cmp_eq_u32 s3, 1\ns_cbranch_scc0 L_H_notok")
    perm_sel()
    a(f"""s_getreg_b32 s67, hwreg(HW_REG_XCC_ID, 0, 4)
          s_lshl_b32 s67, s67, 8
          s_lshl_b32 s66, s28, 12
          s_add_u32 s66, s66, {hex(WS_X)}
          s_lshl_b32 s52, s29, 7
          s_add_u32 s52, s52, s66
          v_mov_b32 v104, s67
          v_mov_b32 v105, s67
          v_mov_b32 v106, s67
          v_mov_b32 v107, s67
          v_mov_b32 v108, 0
          s_waitcnt lgkmcnt(0)
          s_add_u32 s53, s44, {hex(TAG_STEP)}
          v_mov_b32 v109, s53""")
    put_tags(104, 109)
    a("""s_mov_b64 exec, 1
         buffer_store_dwordx4 v[104:107], v108, s[36:39], s52 offen
         s_mov_b64 exec, -1
         s_mov_b32 s64, 1
         s_branch L_H_tok
         L_H_notok:
         s_mov_b32 s64, 0
         L_H_tok:""")
    sel_masks(88, 13, 14, 15)
    a("""s_cmp_eq_u32 s64, 1
         s_cbranch_scc1 L_H_w1
         s_waitcnt vmcnt(4)
         s_branch L_H_w2
         L_H_w1:
         s_waitcnt vmcnt(5)
         L_H_w2:""")
    for k in range(4): unpack(80 + 2 * k, 81 + 2 * k, 8 + k)
    a("""v_add_f32 v8, v80, v81
         v_add_f32 v9, v82, v83
         v_add_f32 v10, v84, v85
         v_add_f32 v11, v86, v87
         v_add_f32 v8, v8, v9
         v_add_f32 v10, v10, v11
         v_add_f32 v8, v8, v10""")
    row_allreduce("v_add_f32", [8]); cross_rows("v_add_f32", [8], [9])
    a(f"v_mul_f32 v8, {f32(1 / 512)}, v8")
    for k in range(8): a(f"v_sub_f32 v{80 + k}, v{80 + k}, v8")
    a("v_mul_f32 v9, v80, v80")
    for k in range(1, 8): a(f"v_fmac_f32 v9, v{80 + k}, v{80 + k}")
    row_allreduce("v_add_f32", [9]); cross_rows("v_add_f32", [9], [10])
    a(f"""v_mul_f32 v9, {f32(1 / 512)}, v9
          v_cvt_pk_bf16_f32 v10, v8, v9""")
    unpack(8, 9, 10)
    a(f"v_add_f32 v9, {EPS}, v9")
    rbf(9)
    a(f"""v_sqrt_f32 v9, v9
          v_lshlrev_b32 v12, 16, v12
          v_sub_f32 v12, v12, v8""")
    rbf(9); rbf(12)
    a(f"""v_rcp_f32 v10, v9
          v_mul_f32 v11, v12, v10
          v_fma_f32 v13, -v11, v9, v12
          v_fma_f32 v11, v13, v10, v11
          v_cvt_pk_bf16_f32 v12, v11, v11
          s_cmp_eq_u32 s64, 1
          s_cbranch_scc1 L_H_w3
          s_waitcnt vmcnt(0)
          s_branch L_H_w4
          L_H_w3:
          s_waitcnt vmcnt(1)
          L_H_w4:""")
    stamp(2)
    for t in range(4):
        A = 96 + 4 * (t & 1)
        for r in range(4):
            a(f"v_and_b32_dpp v{A + r}, v12, v{88 + r} row_newbcast:{t} {DPPF}")
        a(f"v_mfma_f32_16x16x32_bf16 v[92:95], v[{A}:{A + 3}], v[{16 + 4 * t}:{19 + 4 * t}], {'0' if t == 0 else 'v[92:95]'}")
    a("s_waitcnt lgkmcnt(0)")
    tag_setup()
    a(f"""s_cmp_eq_u32 s3, 0
          s_cbranch_scc1 L_H0
          s_lshl_b32 s52, s61, 9
          v_add_u32 v5, s52, v2
          s_lshl_b32 s52, s61, 2
          v_mov_b32 v6, s52
          v_mov_b32 v7, s44""")
    setexec(0xffffffff)
    a(f"""ds_write_b128 v5, v[92:95] offset:{L_HQ - 512}
          s_waitcnt lgkmcnt(0)
          s_mov_b64 exec, 1
          ds_write_b32 v6, v7 offset:{L_HF}
          s_mov_b64 exec, -1
          s_branch L_H123
          L_H0:
          v_lshlrev_b32 v4, 6, v4
          v_lshl_add_u32 v4, v3, 5, v4
          s_lshl_b32 s53, s30, 13
          s_add_u32 s53, s53, {hex(WS_Q)}
          s_lshl_b32 s58, s31, 10
          s_add_u32 s58, s58, s53
          v_mov_b32 v5, 0
          s_mov_b32 s60, 0
          L_H0_join:
          ds_read_b128 v[8:11], v5 offset:{L_HF}
          s_waitcnt lgkmcnt(0)
          v_xor_b32 v9, s44, v9
          v_bitop3_b32 v9, v9, v10, s44 bitop3:0xf6
          v_bitop3_b32 v9, v9, v11, s44 bitop3:0xf6
          v_cmp_ne_u32 vcc, 0, v9
          s_cbranch_vccz L_H0_joined
          s_add_u32 s60, s60, 1
          s_cmp_lt_u32 s60, {POLL_CAP}
          s_cbranch_scc1 L_H0_join
          L_H0_joined:""")
    for k in range(3): a(f"ds_read_b128 v[{16 + 4 * k}:{19 + 4 * k}], v2 offset:{L_HQ + 512 * k}")
    a(f"""v_mov_b32 v9, s44
          v_mov_b32 v11, s44
          v_mov_b32 v13, s44
          v_mov_b32 v15, s44
          s_waitcnt lgkmcnt(0)""")
    for r in range(4): a(f"v_add_f32 v{92 + r}, v{92 + r}, v{16 + r}\nv_add_f32 v{20 + r}, v{20 + r}, v{24 + r}")
    for r in range(4): a(f"v_add_f32 v{8 + 2 * r}, v{92 + r}, v{20 + r}")
    setexec(0xffffffff)
    a(f"""buffer_store_dwordx4 v[8:11], v4, s[36:39], s58 offen
          buffer_store_dwordx4 v[12:15], v4, s[36:39], s58 offen offset:16
          s_mov_b64 exec, -1
          s_mov_b32 s65, 0""")
    def republish():
        l = a.label("L_rep")
        a(f"""s_cmp_eq_u32 s65, 1
              s_cbranch_scc1 {l}
              ds_read_b64 v[6:7], v5 offset:{L_MODE}
              s_waitcnt lgkmcnt(0)
              v_readfirstlane_b32 s64, v7
              v_readfirstlane_b32 s59, v6
              s_cmp_eq_u32 s64, s44
              s_cbranch_scc0 {l}
              s_mov_b32 s65, 1
              s_cmp_eq_u32 s59, s44
              s_cbranch_scc1 {l}""")
        setexec(0xffffffff)
        a(f"""buffer_store_dwordx4 v[8:11], v4, s[36:39], s58 offen sc1
              buffer_store_dwordx4 v[12:15], v4, s[36:39], s58 offen offset:16 sc1
              s_mov_b64 exec, -1
              {l}:""")
    stamp(3)
    a(f"""s_add_u32 s52, s53, 4096
          s_mov_b32 s60, 0""")
    if P["q_sleep"]: a(f"s_sleep {P['q_sleep']}")
    a("L_H0_poll:")
    for p in range(8):
        a(f"buffer_load_dwordx4 v[{16 + 4 * p}:{19 + 4 * p}], v2, s[36:39], {'s53' if p < 4 else 's52'} offen offset:{(p & 3) * 1024} sc1")
    for p in range(8):
        a(f"s_waitcnt vmcnt({7 - p})")
        if p == 0: a(f"v_xor_b32 v62, s44, v17")
        else: a(f"v_bitop3_b32 v62, v62, v{17 + 4 * p}, s44 bitop3:0xf6")
        a(f"v_bitop3_b32 v62, v62, v{19 + 4 * p}, s44 bitop3:0xf6")
    a(f"""v_cmp_ne_u32 vcc, 0, v62
          s_cbranch_vccz L_H0_got""")
    republish()
    a(f"""s_add_u32 s60, s60, 1
          s_cmp_lt_u32 s60, {POLL_CAP}
          s_sleep 4
          s_cbranch_scc1 L_H0_poll
          L_H0_got:""")
    note(5, "s60")
    for p in range(1, 8):
        a(f"v_add_f32 v16, v16, v{16 + 4 * p}\nv_add_f32 v18, v18, v{18 + 4 * p}")
    a(f"""v_cvt_pk_bf16_f32 v16, v16, v18
          v_lshlrev_b32 v3, 2, v0
          v_mov_b32 v6, s44
          ds_write_b32 v3, v16 offset:{L_Q}
          s_waitcnt lgkmcnt(0)
          s_mov_b64 exec, 1
          ds_write_b32 v5, v6 offset:{L_FLAG}
          s_mov_b64 exec, -1
          s_waitcnt lgkmcnt(0)""")
    stamp(4)
    lds_wait("L_H0_mode", L_MFLAG, 5, 6, 4)
    republish()
    a("s_branch L_T")

    a("""L_H123:
         s_cmp_eq_u32 s3, 1
         s_cbranch_scc0 L_H23
         v_and_b32 v3, 31, v0
         v_lshlrev_b32 v3, 7, v3""")
    if P["x_sleep"]: a(f"s_sleep {P['x_sleep']}")
    poll("L_H1_poll", [("buffer_load_dwordx4 v[4:7], v3, s[36:39], s66 offen sc1", 4)], cap=12, sleep=8)
    a("s_mov_b64 exec, -1")
    a(f"""s_cmp_lt_u32 s60, 12
          s_cselect_b32 s67, s67, -1
          v_and_b32 v4, 0xffffff00, v4
          v_cmp_ne_u32 vcc, s67, v4
          s_cmp_eq_u64 vcc, 0
          s_cselect_b32 s52, s44, 0""")
    if P["force_safe"]: a("s_mov_b32 s52, 0")
    a(f"""v_mov_b32 v4, s52
          v_mov_b32 v5, s44
          v_mov_b32 v9, 0
          s_mov_b64 exec, 1
          ds_write_b64 v9, v[4:5] offset:{L_MODE}
          s_mov_b64 exec, -1
          s_waitcnt lgkmcnt(0)""")
    stamp(3)
    a("s_branch L_T\nL_H23:")
    if P["prefetch_code"]:
        a(f"""s_cmp_eq_u32 s3, 2
              s_cbranch_scc0 L_H3
              s_getpc_b64 s[52:53]
              L_pc:
              s_sub_u32 s52, s52, L_pc-{NAME}
              s_subb_u32 s53, s53, 0
              v_lshlrev_b32 v3, 6, v0
              v_add_u32 v3, 1024, v3
              v_min_u32 v4, L_end-{NAME}, v3
              global_load_dword v100, v4, s[52:53]
              v_add_u32 v3, 4096, v3
              v_min_u32 v4, L_end-{NAME}, v3
              global_load_dword v101, v4, s[52:53]
              v_add_u32 v3, 4096, v3
              v_min_u32 v4, L_end-{NAME}, v3
              global_load_dword v102, v4, s[52:53]""")
        if P["warm"]:
            a(f"""s_lshl_b32 s52, s28, 5
                  s_add_u32 s52, s52, s29
                  s_mul_i32 s52, s52, {O_STRIDE}
                  s_add_u32 s52, s52, {hex(WS_O)}
                  v_lshlrev_b32 v3, 7, v0
                  s_mov_b64 exec, 31
                  buffer_load_dword v103, v3, s[36:39], s52 offen
                  s_mov_b64 exec, -1""")
        if P["warm"] & 2:
            a(f"""s_mul_i32 s52, s2, 768
                  s_add_u32 s52, s52, {hex(WS_F)}
                  s_mov_b64 exec, 63
                  buffer_load_dword v104, v3, s[36:39], s52 offen
                  s_mov_b32 s52, {hex(WS_A)}
                  s_mov_b64 exec, -1
                  buffer_load_dword v105, v3, s[36:39], s52 offen
                  s_add_u32 s52, s52, 8192
                  buffer_load_dword v106, v3, s[36:39], s52 offen
                  s_add_u32 s52, s52, 8192
                  buffer_load_dword v107, v3, s[36:39], s52 offen""")
        a(f"""s_branch L_T
              L_H3:""")
    else:
        a("s_cmp_eq_u32 s3, 2\ns_cbranch_scc1 L_T")
    if P["pf_wo"] == 0: prefetch_wo()
    if P["pf_wo"] == 1 or P["pf_ffn"] == 0:
        a("v_mov_b32 v9, 0")
        lds_wait("L_H3_wait", L_FLAG, 9, 3, 4)
        if P["pf_wo"] == 1: prefetch_wo()
        if P["pf_ffn"] == 0: prefetch_ffn()

    a("L_T:\ns_setprio 0")
    ffn_role(); bitmasks()
    a(f"""v_lshrrev_b32 v3, 4, v0
          v_lshrrev_b32 v4, 3, v0
          v_and_b32 v5, 7, v0
          v_bfe_u32 v7, v0, 2, 2
          v_lshl_add_u32 v7, v7, 2, v3
          v_lshlrev_b32 v7, 6, v7
          v_and_b32 v8, 3, v0
          v_lshl_add_u32 v7, v8, 3, v7
          s_lshl_b32 s61, s3, 12
          s_add_u32 s61, s61, {L_W}
          v_add_u32 v7, s61, v7
          v_lshrrev_b32 v9, 2, v0
          s_cmp_lt_u32 s29, 16
          s_cbranch_scc1 L_T_wo
          s_cmp_eq_u32 s63, 1
          s_cbranch_scc1 L_T_ffn""")
    def b12(at_b2=None, late_pf=True, at_b1=None):
        a("s_barrier"); stamp(6)
        if at_b1: at_b1()
        for when, fn in ((P["pf_wo"] == 2, prefetch_wo), (P["pf_ffn"] == 1, prefetch_ffn)):
            if when:
                l = a.label("L_pf"); a(f"s_cmp_eq_u32 s3, 3\ns_cbranch_scc0 {l}"); fn(); a(f"{l}:")
        a("s_barrier"); stamp(7)
        if at_b2: at_b2()
        if P["pf_ffn"] == 2 and late_pf:
            l = a.label("L_pf"); a(f"s_cmp_eq_u32 s3, 3\ns_cbranch_scc0 {l}"); prefetch_ffn(32); a(f"{l}:")
    FIN_ODD = NFE > 11
    if FIN_ODD:
        a(f"""s_sub_u32 s52, s29, {16 + NFO}
              s_cmp_lt_u32 s52, 8
              s_cselect_b32 s53, 1, 0
              s_bitcmp1_b32 s28, 0
              s_cselect_b32 s53, s53, 0""")
    else:
        a(f"""s_sub_u32 s52, s29, 27
              s_cmp_lt_u32 s52, 4
              s_cselect_b32 s53, 1, 0""")
    a(f"""s_cmp_lt_u32 s3, 2
          s_cselect_b32 s53, s53, 0
          s_cmp_eq_u32 s53, 1
          s_cbranch_scc1 L_T_fin""")
    b12()
    a("s_branch L_exit")

    a(f"""L_T_wo:
          v_lshlrev_b32 v10, 10, v4
          v_lshl_add_u32 v10, v5, 4, v10
          s_lshl_b32 s52, s28, 1
          s_lshr_b32 s53, s29, 3
          s_add_u32 s52, s52, s53
          s_lshl_b32 s58, s52, 3
          s_add_u32 s58, s58, s3
          s_lshl_b32 s64, s58, 15
          s_lshl_b32 s53, s31, 7
          s_add_u32 s64, s64, s53
          v_bfe_u32 v7, v0, 2, 2
          v_lshl_add_u32 v7, v7, 2, v3
          v_lshlrev_b32 v7, 7, v7
          v_lshl_add_u32 v7, v8, 3, v7
          v_add_u32 v7, s61, v7
          v_mul_u32_u24 v11, {O_STRIDE}, v4
          v_lshl_add_u32 v12, v5, 4, v11
          s_lshr_b32 s58, s58, 2
          s_mul_i32 s58, s58, {8 * O_STRIDE}
          s_add_u32 s58, s58, {hex(WS_O)}
          s_and_b32 s53, s3, 3
          s_lshl_b32 s53, s53, 7
          s_add_u32 s59, s53, s58
          v_lshlrev_b32 v13, 2, v0
          s_mul_i32 s53, s3, 272
          v_add_u32 v13, s53, v13""")
    def wo_dma(ts=range(4)):
        srd(40, "s12", "s13", "0x400000")
        for t in ts:
            a(f"""s_add_u32 m0, s61, {t * 1024}
                  s_add_u32 s53, s64, {t * 8192}
                  buffer_load_dwordx4 v10, s[40:43], s53 offen{DF} lds""")
    if P["wo_at"] == 1:
        b12(late_pf=False, at_b1=lambda: wo_dma(range(P["wo_split"])))
        if P["wo_sleep"]: a(f"s_sleep {P['wo_sleep']}")
        if P["wo_split"] < 4: wo_dma(range(P["wo_split"], 4))
    else: b12(wo_dma, late_pf=False)
    if P["wo_wait"] < 4: a(f"s_waitcnt vmcnt({P['wo_wait']})")
    def tr_reads_wo():
        for nt in range(4):
            for hf in range(2):
                r = 16 + 4 * nt + 2 * hf
                a(f"ds_read_b64_tr_b16 v[{r}:{r + 1}], v7 offset:{nt * 32 + hf * 2048}")
    def after_dma(slot, fn=None):
        def f(n):
            a(f"s_waitcnt vmcnt({n})"); (fn or tr_reads)(); stamp(slot)
        return f
    poll("L_wo_poll", [("buffer_load_dwordx4 v[32:35], v11, s[36:39], s58 offen offset:512 sc1", 32),
                       ("buffer_load_dwordx4 v[36:39], v12, s[36:39], s59 offen sc1", 36)], first=after_dma(11, tr_reads_wo))
    a("s_mov_b64 exec, -1")
    stamp(8)
    note(10, "s60")
    a(f"""v_and_b32 v32, 0xffffff00, v32
          v_max_f32_dpp v34, v32, v32 row_ror:8 {DPPF}""")
    cross_rows("v_max_f32", [34], [35])
    a(f"""v_sub_f32 v32, v32, v34
          v_mul_f32 v32, {LOG2E}, v32
          v_exp_f32 v32, v32
          v_mul_f32 v33, v32, v33""")
    for r in range(4): a(f"v_mul_f32 v{36 + r}, v32, v{36 + r}")
    a(f"""v_add_f32_dpp v33, v33, v33 row_ror:8 {DPPF}
          v_add_f32_dpp v44, v36, v36 row_ror:8 row_mask:0xf bank_mask:0x3
          v_add_f32_dpp v45, v37, v37 row_ror:8 row_mask:0xf bank_mask:0x3
          v_mov_b32 v34, v33
          v_add_f32_dpp v44, v38, v38 row_ror:8 row_mask:0xf bank_mask:0xc
          v_add_f32_dpp v45, v39, v39 row_ror:8 row_mask:0xf bank_mask:0xc
          v_permlane16_swap_b32 v34, v33
          v_permlane16_swap_b32 v44, v45
          v_add_f32 v33, v33, v34
          v_add_f32 v44, v44, v45
          v_mov_b32 v34, v33
          v_mov_b32 v45, v44
          v_permlane32_swap_b32 v34, v33
          v_permlane32_swap_b32 v45, v44
          v_add_f32 v33, v33, v34
          v_add_f32 v44, v44, v45
          v_rcp_f32 v33, v33
          v_mul_f32 v44, v44, v33
          v_mov_b32_dpp v45, v44 quad_perm:[1,0,3,2] {DPPF}
          v_cvt_pk_bf16_f32 v45, v44, v45""")
    for r in range(4): a(f"v_mov_b32_dpp v{48 + r}, v45 row_newbcast:{2 * r} row_mask:0x3 bank_mask:0xf")
    for r in range(4): a(f"v_mov_b32_dpp v{48 + r}, v45 row_newbcast:{8 + 2 * r} row_mask:0xc bank_mask:0xf")
    a("s_waitcnt lgkmcnt(0)")
    D = [56, 64, 68, 72]
    for nt in range(4):
        a(f"v_mfma_f32_16x16x32_bf16 v[{D[nt]}:{D[nt] + 3}], v[48:51], v[{16 + 4 * nt}:{19 + 4 * nt}], 0")
    a(f"""s_mov_b32 s54, 0xffff0000
          s_mov_b32 s55, 0xffff0000
          s_mov_b32 s56, 0
          s_mov_b32 s57, -1
          v_cndmask_b32 v56, v56, v64, s[54:55]
          v_cndmask_b32 v68, v68, v72, s[54:55]
          v_cndmask_b32 v56, v56, v68, s[56:57]
          ds_write_b32 v13, v56 offset:{L_A}
          s_waitcnt lgkmcnt(0)
          s_barrier
          s_branch L_exit""")

    a(f"""L_T_ffn:
          s_lshl_b32 s52, s3, 6
          v_add_u32 v10, s52, v9
          v_mul_u32_u24 v10, 2752, v10
          v_and_b32 v14, 1, v0
          v_lshl_add_u32 v10, v14, 4, v10
          s_lshl_b32 s52, s62, 5
          v_add_u32 v10, s52, v10
          v_mov_b32 v72, s16
          v_mov_b32 v73, s17
          v_mov_b32 v14, s18
          v_mov_b32 v15, s19
          v_cndmask_b32 v72, v72, v14, s[54:55]
          v_cndmask_b32 v73, v73, v15, s[54:55]
          v_add_co_u32 v72, vcc, v72, v10
          v_addc_co_u32 v73, vcc, 0, v73, vcc
          v_and_b32 v14, 15, v0
          v_lshl_add_u32 v14, v14, 2, v3
          v_lshlrev_b32 v14, 1, v14
          s_lshl_b32 s52, s3, 7
          v_add_u32 v14, s52, v14""")
    srd(40, "s4", "s5", "1024")
    a(f"""buffer_load_ushort v68, v14, s[40:43], 0 offen
          v_lshlrev_b32 v70, 4, v5
          v_mul_u32_u24 v10, {A_STRIDE}, v4
          v_add_u32 v70, v70, v10
          s_lshl_b32 s52, s3, 8
          v_add_u32 v70, s52, v70
          v_and_b32 v71, {63 if P["fused"] else 31}, v0
          v_mul_u32_u24 v71, 40, v71
          s_lshl_b32 s52, s3, 2
          v_add_u32 v71, s52, v71""")
    if P["fused"]:
        a("""v_bfe_u32 v74, v0, 3, 1
             v_mul_u32_u24 v74, 40, v74
             v_add_u32 v74, s52, v74""")
        for r in range(8): a(f"v_mov_b32 v{48 + r}, 0x3f803f80")
    else:
        a("""s_lshl_b32 s52, s3, 4
             v_mov_b32 v74, s52""")
    a(f"""v_lshlrev_b32 v75, 4, v5
          s_lshl_b32 s52, s28, 5
          s_mul_i32 s52, s52, {O_STRIDE}
          s_add_u32 s58, s52, {hex(WS_O)}
          v_and_b32 v11, 31, v0
          v_mul_u32_u24 v11, {O_STRIDE}, v11""")
    def ffn_dma():
        if P["ffn_sleep"]: a(f"s_sleep {P['ffn_sleep']}")
        if P["ffn_rot"]:
            for t in range(4):
                a(f"""s_add_u32 s52, s62, {t}
                      s_and_b32 s52, s52, 3
                      s_mul_i32 s53, s52, 44032
                      s_lshl_b32 s52, s52, 10
                      v_add_co_u32 v76, vcc, s53, v72
                      s_add_u32 m0, s61, s52
                      v_addc_co_u32 v77, vcc, 0, v73, vcc
                      global_load_lds_dwordx4 v[76:77], off{DF}""")
            return
        for t in range(4 if not P["skip_ffn"] else 0):
            a(f"s_add_u32 m0, s61, {t * 1024}\nglobal_load_lds_dwordx4 v[72:73], off{DF}")
            if t < 3: a("v_add_co_u32 v72, vcc, 44032, v72\nv_addc_co_u32 v73, vcc, 0, v73, vcc")
    if P["ffn_at"] == 1: b12(at_b1=ffn_dma)
    else: b12()
    if P["ffn_trig"]:
        a(f"""s_bitcmp1_b32 s28, 0
              s_cselect_b32 s52, {P['trig_odd']}, {P['trig_even']}
              s_cmp_eq_u32 s52, 1
              s_cbranch_scc1 L_ffn_poll_trig
              s_cmp_eq_u32 s3, 3
              s_cbranch_scc0 L_ffn_trigd
              s_waitcnt vmcnt(0)
              s_branch L_ffn_trigd
              L_ffn_poll_trig:
              s_cmp_eq_u32 s3, 0
              s_cbranch_scc0 L_ffn_trigd""")
        poll("L_trig_poll", [("buffer_load_dwordx4 v[32:35], v11, s[36:39], s58 offen offset:512 sc1", 32)], sleep=2)
        a("s_mov_b64 exec, -1\nL_ffn_trigd:\ns_barrier")
    stamp(8)
    if P["ffn_at"] == 2: ffn_dma()
    a(f"s_mov_b32 s58, {hex(WS_A)}\ns_mov_b32 s59, {hex(WS_A + 8 * A_STRIDE)}")
    poll("L_ffn_poll", [("buffer_load_dwordx4 v[36:39], v70, s[36:39], s58 offen sc1", 36),
                        ("buffer_load_dwordx4 v[40:43], v70, s[36:39], s58 offen offset:128 sc1", 40),
                        ("buffer_load_dwordx4 v[80:83], v70, s[36:39], s59 offen sc1", 80),
                        ("buffer_load_dwordx4 v[84:87], v70, s[36:39], s59 offen offset:128 sc1", 84)], first=after_dma(9))
    a("s_mov_b64 exec, -1\nv_lshlrev_b32 v68, 16, v68")
    for r in range(4): a(f"v_pk_add_f32 v[{36 + 2 * r}:{37 + 2 * r}], v[{36 + 2 * r}:{37 + 2 * r}], v[{80 + 2 * r}:{81 + 2 * r}]")
    stamp(10)
    note(1, "s60")
    treduce(36, 44)
    rbf(44)
    a("v_add_f32 v44, v44, v68")
    if P["fused"]:
        a(f"v_mov_b32_dpp v45, v44 quad_perm:[1,0,3,2] {DPPF}\nv_cvt_pk_bf16_f32 v45, v44, v45")
        for s_ in range(2):
            for r in range(4): a(f"v_mov_b32_dpp v{48 + 4 * s_ + r}, v45 row_newbcast:{8 * s_ + 2 * r} row_mask:0xf bank_mask:0x3")
        a(f"""s_waitcnt lgkmcnt(0)
              v_mfma_f32_16x16x32_bf16 v[56:59], v[48:51], v[16:19], 0
              v_mfma_f32_16x16x32_bf16 v[64:67], v[48:51], v[20:23], 0
              v_mfma_f32_16x16x32_bf16 v[76:79], v[48:51], v[48:51], 0
              v_mfma_f32_16x16x32_bf16 v[56:59], v[52:55], v[24:27], v[56:59]
              v_mfma_f32_16x16x32_bf16 v[64:67], v[52:55], v[28:31], v[64:67]
              v_mfma_f32_16x16x32_bf16 v[76:79], v[52:55], v[52:55], v[76:79]
              s_mov_b32 s54, 0xffff0000
              s_mov_b32 s55, 0xffff0000
              v_cndmask_b32 v56, v56, v64, s[54:55]
              ds_write_b32 v71, v56 offset:{L_FG2}""")
        setexec(0x101)
        a(f"""ds_write_b32 v74, v76 offset:{L_FG2 + 64 * 40}
              s_waitcnt lgkmcnt(0)
              s_barrier
              s_branch L_exit""")
    else:
        rbf(44)
        a(f"""v_readfirstlane_b32 s53, v44
              v_subrev_f32 v53, s53, v44
              v_mov_b32 v52, s53
              v_mul_f32 v54, v53, v53""")
        row_allreduce("v_add_f32", [53, 54]); cross_rows("v_add_f32", [53, 54], [56, 57])
        a(f"""s_mov_b64 exec, 1
              v_mov_b32 v55, 0
              ds_write_b128 v74, v[52:55] offset:{L_S2}
              s_mov_b64 exec, -1
              s_waitcnt lgkmcnt(0)
              s_barrier
              ds_read_b128 v[52:55], v75 offset:{L_S2}
              s_waitcnt lgkmcnt(0)""")
        stamp(11)
        a(f"""v_mul_f32 v56, 0x42800000, v52
              v_add_f32 v56, v56, v53""")
        oct_allreduce("v_add_f32", [56])
        a(f"""v_mul_f32 v56, {f32(1 / 512)}, v56
              v_sub_f32 v57, v56, v52
              v_mul_f32 v58, 0x42800000, v57
              v_fmac_f32 v58, -2.0, v53
              v_fma_f32 v57, v58, v57, v54""")
        oct_allreduce("v_add_f32", [57])
        a(f"""v_mul_f32 v57, {f32(1 / 512)}, v57
              v_cvt_pk_bf16_f32 v58, v56, v57""")
        unpack(56, 57, 58)
        a(f"""v_add_f32 v57, {EPS}, v57
              v_sub_f32 v44, v44, v56
              v_cvt_pk_bf16_f32 v57, v57, v57
              v_cvt_pk_bf16_f32 v44, v44, v44
              v_and_b32 v57, 0xffff0000, v57
              v_sqrt_f32 v57, v57
              v_and_b32 v44, 0xffff0000, v44""")
        rbf(57)
        a(f"""v_rcp_f32 v57, v57
              v_mul_f32 v44, v44, v57""")
        to_a(44, 45, 48)
        gemv2()
        a(f"""ds_write_b32 v71, v56 offset:{L_FG}
              s_waitcnt lgkmcnt(0)
              s_barrier
              s_branch L_exit""")


    a(f"""L_T_fin:
          s_lshr_b32 s53, s28, {1 if FIN_ODD else 0}
          s_lshl_b32 s53, s53, {3 if FIN_ODD else 2}
          s_add_u32 s52, s52, s53
          s_lshl_b32 s52, s52, 1
          s_add_u32 s64, s52, s3
          v_and_b32 v4, 1, v0
          v_lshlrev_b32 v5, 3, v4
          s_lshl_b32 s52, s64, 4
          v_add_u32 v5, s52, v5""")
    srd(40, "s4", "s5", "1024")
    a(f"""buffer_load_dwordx2 v[8:9], v5, s[40:43], 0 offen
          v_lshlrev_b32 v6, 1, v5
          v_bfe_u32 v7, v0, 1, 3
          v_mul_u32_u24 v7, {A_STRIDE}, v7
          v_add_u32 v10, v7, v6
          v_lshrrev_b32 v7, 1, v0
          v_mul_u32_u24 v7, {F_STRIDE}, v7
          v_add_u32 v11, v7, v6
          v_lshl_add_u32 v5, v3, 1, v5
          v_mov_b32 v44, 0
          v_mov_b32 v45, 0
          v_mov_b32 v46, 0
          v_mov_b32 v47, 0""")
    b12(late_pf=False)
    a(f"s_mov_b32 s58, {hex(WS_A)}\ns_mov_b32 s59, {hex(WS_A + 8 * A_STRIDE)}\ns_waitcnt vmcnt(0)")
    unpack(16, 17, 8); unpack(18, 19, 9)
    srd(40, "s22", "s23", "1024")
    poll("L_fin_poll1", [("buffer_load_dwordx4 v[20:23], v10, s[36:39], s58 offen sc1", 20),
                         ("buffer_load_dwordx4 v[24:27], v10, s[36:39], s59 offen sc1", 24)], sleep=2)
    a("s_mov_b64 exec, -1")
    for r in range(4): a(f"v_add_f32 v{20 + r}, v{20 + r}, v{24 + r}")
    stamp(8)
    def fin_dpp(rs):
        for mode in ("quad_perm:[2,3,0,1]", "row_ror:4", "row_ror:8"):
            for r in rs: a(f"v_add_f32_dpp v{r}, v{r}, v{r} {mode} {DPPF}")
    fin_dpp([20, 21, 22, 23])
    a("v_cvt_pk_bf16_f32 v24, v20, v21\nv_cvt_pk_bf16_f32 v25, v22, v23")
    unpack(20, 21, 24); unpack(22, 23, 25)
    for r in range(4): a(f"v_add_f32 v{20 + r}, v{20 + r}, v{16 + r}")
    a(f"""v_cmp_eq_u32 vcc, 1, v3
          v_cndmask_b32 v20, v20, v21, vcc
          v_cmp_eq_u32 vcc, 2, v3
          v_cndmask_b32 v20, v20, v22, vcc
          v_cmp_eq_u32 vcc, 3, v3
          v_cndmask_b32 v20, v20, v23, vcc""")
    rbf(20)
    a(f"""s_mov_b32 s58, {hex(WS_F)}
          s_mov_b32 s59, {hex(WS_F + 32 * F_STRIDE)}
          s_mov_b32 s53, {hex(WS_F + 64 * F_STRIDE)}
          v_mov_b32 v63, 0
          s_mov_b32 s60, 0
          s_mov_b32 s54, -1
          s_mov_b32 s55, 0xfff""")
    if P["fin_sleep"]: a(f"s_sleep {P['fin_sleep']}")
    a(f"""L_fin_poll2:
          buffer_load_dwordx4 v[36:39], v11, s[36:39], s58 offen sc1
          buffer_load_dwordx4 v[40:43], v11, s[36:39], s59 offen sc1
          s_mov_b64 s[56:57], exec
          s_and_b64 exec, exec, s[54:55]
          s_cbranch_scc0 L_fin_no3
          buffer_load_dwordx4 v[44:47], v11, s[36:39], s53 offen sc1
          L_fin_no3:
          s_waitcnt vmcnt(0)
          s_mov_b64 exec, s[56:57]""")
    chk_tags(62, 36, True); chk_tags(62, 40, False)
    a("s_and_b64 exec, exec, s[54:55]")
    chk_tags(62, 44, False)
    a(f"""s_mov_b64 exec, s[56:57]
          v_cmp_ne_u32_sdwa vcc, v62, v63 src0_sel:BYTE_0 src1_sel:DWORD
          s_add_u32 s60, s60, 1
          s_and_b64 exec, vcc, vcc
          s_cbranch_scc0 L_fin_got2
          s_cmp_lt_u32 s60, {POLL_CAP}
          s_cbranch_scc1 L_fin_poll2
          L_fin_got2:
          s_mov_b64 exec, -1""")
    stamp(9)
    for r in range(4): a(f"v_add_f32 v{36 + r}, v{36 + r}, v{40 + r}")
    for r in range(4): a(f"v_add_f32 v{36 + r}, v{36 + r}, v{44 + r}")
    fin_dpp([36, 37, 38, 39])
    a(f"""v_permlane16_swap_b32 v36, v37
          v_permlane16_swap_b32 v38, v39
          v_add_f32 v36, v36, v37
          v_add_f32 v38, v38, v39
          v_permlane32_swap_b32 v36, v38
          v_add_f32 v36, v36, v38""")
    rbf(36)
    a(f"""v_add_f32 v36, v36, v20
          v_cvt_pk_bf16_f32 v36, v36, v36""")
    setexec(0x0003000300030003)
    a(f"""buffer_store_short v36, v5, s[40:43], 0 offen
          s_cmp_lg_u32 s64, 0
          s_cbranch_scc1 L_fin_done
          s_mov_b64 exec, 1
          v_mov_b32 v4, s44
          v_mov_b32 v6, 0
          buffer_store_dword v4, v6, s[36:39], 0 offen
          L_fin_done:""")
    if P["pad_to"]:
        a(f"""s_mov_b32 s60, 0
              L_pad:
              s_memrealtime s[66:67]
              s_waitcnt lgkmcnt(0)
              s_sub_u32 s66, s66, s68
              s_add_u32 s60, s60, 1
              s_cmp_gt_u32 s60, 100000
              s_cbranch_scc1 L_padd
              s_cmp_lt_u32 s66, {P['pad_to']}
              s_cbranch_scc1 L_pad
              L_padd:""")
    stamp(10, True)

    a("L_exit:")
    if P["stamps"]:
        a(f"""s_mov_b64 exec, 1
              s_mul_i32 s52, s2, 12
              s_add_u32 s52, s52, s3
              s_lshl_b32 s52, s52, 6
              s_add_u32 s52, s52, {hex(WS_STAMP)}
              v_mov_b32 v3, 0
              s_waitcnt lgkmcnt(0)""")
        for q in range(3):
            for k in range(4): a(f"v_mov_b32 v{4 + 4 * q + k}, s{70 + 2 * (4 * q + k)}")
            a(f"buffer_store_dwordx4 v[{4 + 4 * q}:{7 + 4 * q}], v3, s[36:39], s52 offen offset:{16 * q}")
    a("L_end:\ns_endpgm")

    lines, nops = fix_hazards(a.lines)
    hdr = f"""; Fused pre-LN attention (cached K/V) + GeGLU FFN decode step for gfx950, one launch.
; @launch grid=(256,1,1) block=(768,1,1) lds={P['lds']}
.amdgcn_target "amdgcn-amd-amdhsa--gfx950"
.text
.globl {NAME}
.p2align 8
.type {NAME},@function
{NAME}:
"""
    ftr = f"""
    .fill 32, 4, 0xbf800000
.section .rodata,"a"
.p2align 6
.amdhsa_kernel {NAME}
  .amdhsa_next_free_vgpr 168
  .amdhsa_next_free_sgpr {100 if P['sync'] else 96}
  .amdhsa_accum_offset 168
  .amdhsa_group_segment_fixed_size 0
  .amdhsa_kernarg_size 96
  .amdhsa_user_sgpr_count 2
  .amdhsa_user_sgpr_kernarg_segment_ptr 1
  .amdhsa_system_sgpr_workgroup_id_x 1
  .amdhsa_float_denorm_mode_32 3
.end_amdhsa_kernel
"""
    return hdr + "\n".join(lines) + ftr, nops

if __name__ == "__main__":
    out = sys.argv[1]
    kw = {}
    for x in sys.argv[2:]:
        k, v = x.split("="); kw[k] = int(v)
    s, n = build(**kw)
    open(out, "w").write(s)
    print("wrote", out, "lines", s.count("\n"), "nop states inserted", n)
```

```python
import sys, struct
from asmlib import Asm, fix_hazards

NAME = "sequential_preLN__mha_block_cached__geglu_ffn__decode_kernel"
def f32(x): return "0x%08x" % struct.unpack("<I", struct.pack("<f", x))[0]

WS_X, WS_Q, WS_O, WS_A, WS_F, WS_STAMP, WS_SIZE = 0x1000, 0x10000, 0x50000, 0x90000, 0xA0000, 0x100000, 0x200000
O_STRIDE, A_STRIDE, F_STRIDE = 640, 2176, 2176
L_Q, L_FLAG, L_MODE, L_MFLAG, L_ST, L_P, L_R, L_A, L_G, L_HF, L_HQ, L_W, LDS_SIZE = \
    0, 256, 264, 268, 288, 512, 2560, 4736, 4736, 6272, 6400, 8192, 40960
R_STRIDE = 528
TAG_STEP = 0x9E3779B1
SCALE = f32(128 ** -0.5)
LOG2E = f32(1.4426950408889634)
EPS = f32(1e-5)
GC1 = -2.0 * 0.7978845608028654 * 1.4426950408889634
GC2 = GC1 * 0.044715
DPPF = "row_mask:0xf bank_mask:0xf"
POLL_CAP = 1000000
NFE, NFO = 16, 6
KB = 40

DEF = dict(stamps=0, jitter=0, force_safe=0, q_sleep=25, x_sleep=16, fin_sleep=44, lds=LDS_SIZE, pad_to=0)

HEADER = """\
;
"""

def build(**kw):
    P = dict(DEF); P.update(kw)
    a = Asm()
    def c(text): a.lines.append("    ; " + text)
    def sec(text): a.lines.append(""); a.lines.append("; ---- " + text)

    def stamp(n, key=False):
        if P["stamps"] == 1 or (P["stamps"] == 2 and key): a(f"s_memrealtime s[{70 + 2 * n}:{71 + 2 * n}]")
    def note(n, sreg):
        if P["stamps"] == 1: a(f"s_mov_b32 s{70 + 2 * n}, {sreg}")
    def jit():
        l = a.label("L_jit")
        a(f"""s_mul_i32 s96, s96, 1664525
              s_add_u32 s96, s96, 1013904223
              s_lshr_b32 s97, s96, 30
              s_cmp_lg_u32 s97, 0
              s_cbranch_scc1 {l}d
              s_lshr_b32 s97, s96, 20
              s_and_b32 s97, s97, 255
              {l}:
              s_sleep 1
              s_sub_u32 s97, s97, 1
              s_cmp_gt_i32 s97, 0
              s_cbranch_scc1 {l}
              {l}d:""")
    def srd(d, lo, hi, size):
        a(f"s_mov_b32 s{d}, {lo}\ns_and_b32 s{d + 1}, {hi}, 0xffff\ns_mov_b32 s{d + 2}, {size}\ns_mov_b32 s{d + 3}, 0x20000")
    def ws_srd(): srd(36, "s26", "s27", hex(WS_SIZE))
    def tag_setup():
        c("s44 = tag of this launch; s68, s45, s46, s47 = its four bytes")
        a(f"""s_add_u32 s44, s44, {hex(TAG_STEP)}
              s_and_b32 s68, s44, 0xff
              s_bfe_u32 s45, s44, 0x80008
              s_bfe_u32 s46, s44, 0x80010
              s_lshr_b32 s47, s44, 24""")
    def perm_sel():
        for k in range(4): a(f"s_mov_b32 s{48 + k}, {hex(0x07060500 + k)}")
    def put_tags(r, vtag):
        for k in range(4): a(f"v_perm_b32 v{r + k}, v{r + k}, v{vtag}, s{48 + k}")
    def chk_tags(acc, r, first):
        for k in range(4): a(f"v_xor_b32 v{r + k}, s{(68, 45, 46, 47)[k]}, v{r + k}")
        if first: a(f"v_or_b32 v{acc}, v{r}, v{r + 1}")
        else: a(f"v_or3_b32 v{acc}, v{acc}, v{r}, v{r + 1}")
        a(f"v_or3_b32 v{acc}, v{acc}, v{r + 2}, v{r + 3}")
    def setexec(mask):
        if mask == -1: a("s_mov_b64 exec, -1")
        elif mask < 64: a(f"s_mov_b64 exec, {mask}")
        else: a(f"s_mov_b32 exec_lo, {hex(mask & 0xffffffff)}\ns_mov_b32 exec_hi, {hex(mask >> 32)}")
    def poll(name, loads, cap=POLL_CAP, sleep=0, first=None):
        c("bounded poll: lanes whose granules carry the tag stop reloading")
        a("s_mov_b32 s60, 0\nv_mov_b32 v63, 0")
        if first:
            for txt, _ in loads: a(txt)
            first(len(loads))
            a(f"s_branch {name}_chk")
        a(f"{name}:")
        for txt, _ in loads: a(txt)
        if first: a(f"{name}_chk:")
        for k, (_, r) in enumerate(loads):
            a(f"s_waitcnt vmcnt({len(loads) - 1 - k})"); chk_tags(62, r, k == 0)
        a(f"""v_cmp_ne_u32_sdwa vcc, v62, v63 src0_sel:BYTE_0 src1_sel:DWORD
              s_and_b64 exec, vcc, vcc
              s_cbranch_scc0 {name}_ok
              s_add_u32 s60, s60, 1
              s_cmp_lt_u32 s60, {cap}""")
        if sleep: a(f"s_sleep {sleep}")
        a(f"s_cbranch_scc1 {name}\n{name}_ok:\ns_mov_b64 exec, -1")
    def lds_wait(name, off, vz, vt, sleep):
        a(f"""s_mov_b32 s60, 0
              {name}:
              ds_read_b32 v{vt}, v{vz} offset:{off}
              s_waitcnt lgkmcnt(0)
              v_readfirstlane_b32 s52, v{vt}
              s_cmp_eq_u32 s52, s44
              s_cbranch_scc1 {name}_ok
              s_sleep {sleep}
              s_add_u32 s60, s60, 1
              s_cmp_lt_u32 s60, {POLL_CAP}
              s_cbranch_scc1 {name}
              {name}_ok:""")
    def row_allreduce(op, rs):
        for mode in ("quad_perm:[1,0,3,2]", "quad_perm:[2,3,0,1]", "row_half_mirror", "row_mirror"):
            for r in rs: a(f"{op}_dpp v{r}, v{r}, v{r} {mode} {DPPF}")
    def cross_rows(op, rs, tmps):
        for sw in ("v_permlane16_swap_b32", "v_permlane32_swap_b32"):
            for r, t in zip(rs, tmps): a(f"v_mov_b32 v{t}, v{r}")
            for r, t in zip(rs, tmps): a(f"{sw} v{t}, v{r}")
            for r, t in zip(rs, tmps): a(f"{op} v{r}, v{r}, v{t}")
    def sel_masks(m, t0, t1, t2):
        c("selector masks: A row m keeps element m of its k slab (rows 8..15 stay zero)")
        a(f"""v_bfe_u32 v{t0}, v0, 1, 3
              v_and_b32 v{t1}, 1, v0
              v_lshlrev_b32 v{t1}, 4, v{t1}
              v_mov_b32 v{t2}, 0xffff
              v_lshlrev_b32 v{t1}, v{t1}, v{t2}""")
        for r in range(4):
            a(f"v_cmp_eq_u32 vcc, {r}, v{t0}\nv_cndmask_b32 v{m + r}, 0, v{t1}, vcc")
    def unpack(lo, hi, src):
        a(f"v_and_b32 v{hi}, 0xffff0000, v{src}\nv_lshlrev_b32 v{lo}, 16, v{src}")
    def rbf(r): a(f"v_cvt_pk_bf16_f32 v{r}, v{r}, v{r}\nv_and_b32 v{r}, 0xffff0000, v{r}")
    def bitmasks():
        a("""s_mov_b32 s54, 0xcccccccc
             s_mov_b32 s55, 0xcccccccc
             s_mov_b32 s56, 0xaaaaaaaa
             s_mov_b32 s57, 0xaaaaaaaa""")
    def ffn_role():
        c("s62 = FFN slice, s63 = 1 for FFN workgroups, s67 = first slice of the group, s69 = slices of the group")
        a(f"""s_lshr_b32 s52, s28, 1
              s_mul_i32 s67, s52, {NFE}
              s_mul_i32 s53, s52, {NFO}
              s_add_u32 s53, s53, {4 * NFE}
              s_bitcmp1_b32 s28, 0
              s_cselect_b32 s67, s53, s67
              s_cselect_b32 s69, {NFO}, {NFE}
              s_sub_u32 s52, s29, 16
              s_add_u32 s62, s67, s52
              s_cmp_lt_u32 s52, s69
              s_cselect_b32 s53, 1, 0
              s_cmp_lt_u32 s62, 86
              s_cselect_b32 s63, s53, 0""")
    def stream():
        c("tile t = 16 keys; the four waves of a role interleave at 1 KB")
        for t in range(32):
            if t: a("s_add_u32 s52, s52, 4096")
            a(f"buffer_load_dwordx4 v[{KB + 4 * t}:{KB + 4 * t + 3}], v2, s[32:35], s52 offen nt")
    def prefetch_ffn():
        c("wave 3: 32 rows of the gate / up column window of this group into L2 (whole lines, one dword each)")
        l = a.label("L_pf")
        a(f"""s_cmp_eq_u32 s3, 3
              s_cbranch_scc0 {l}
              v_and_b32 v100, 7, v0
              v_lshlrev_b32 v100, 7, v100
              s_lshl_b32 s52, s69, 5
              s_sub_u32 s52, s52, 4
              v_min_u32 v100, s52, v100
              v_lshrrev_b32 v102, 3, v0
              v_mul_u32_u24 v102, 2752, v102
              v_add_u32 v100, v100, v102
              s_sub_u32 s52, s29, 16
              s_mul_i32 s52, s52, {32 * 2752}
              s_lshl_b32 s53, s67, 5
              s_add_u32 s53, s53, s52""")
        for lo, hi in (("s16", "s17"), ("s18", "s19")):
            srd(40, lo, hi, str(512 * 2752))
            for u in range(4):
                a(f"s_add_u32 s52, s53, {u * 8 * 2752}\nbuffer_load_dword v101, v100, s[40:43], s52 offen")
        a(f"{l}:")

    a(f"""s_cmp_ge_u32 s2, 256
          s_cbranch_scc1 L_end
          s_load_dwordx16 s[4:19], s[0:1], 0""")
    if P["stamps"]:
        a("s_memrealtime s[70:71]")
        for n in range(1, 12): a(f"s_mov_b64 s[{70 + 2 * n}:{71 + 2 * n}], 0")
    if P["pad_to"]: a("s_memrealtime s[98:99]")
    if P["jitter"]:
        a("""s_memtime s[96:97]
             s_waitcnt lgkmcnt(0)
             v_readfirstlane_b32 s97, v0
             s_mul_i32 s97, s97, 0x1b873593
             s_mul_i32 s98, s2, 0x85ebca6b
             s_add_u32 s96, s96, s97
             s_add_u32 s96, s96, s98
             s_mul_i32 s96, s96, 0x9e3779b1""")
    c("s3 = wave, s28 = group, s29 = idx, s30 = head, s31 = key split, s61 = wave & 3, v0 = lane")
    a(f"""v_lshrrev_b32 v1, 6, v0
          v_and_b32 v0, 63, v0
          s_and_b32 s28, s2, 7
          v_readfirstlane_b32 s3, v1
          s_lshr_b32 s29, s2, 3
          s_lshr_b32 s30, s29, 3
          s_lshl_b32 s52, s28, 2
          s_add_u32 s30, s30, s52
          s_and_b32 s31, s29, 7
          v_lshlrev_b32 v2, 4, v0
          s_and_b32 s61, s3, 3
          s_mov_b32 s35, 0x20000
          s_cmp_lt_u32 s3, 4
          s_cbranch_scc0 L_KV""")
    c("H waves: x (whole and one element per lane) and 16 rows x 128 columns of wq")
    a(f"""s_load_dwordx8 s[20:27], s[0:1], 64
          s_setprio 3
          v_lshrrev_b32 v3, 4, v0
          v_and_b32 v4, 15, v0
          v_and_b32 v5, 3, v0
          v_lshl_add_u32 v5, v5, 2, v3
          s_lshl_b32 s52, s31, 2
          s_add_u32 s52, s52, s61
          s_lshl_b32 s53, s52, 4
          v_add_u32 v5, s53, v5
          v_lshlrev_b32 v5, 1, v5
          v_lshlrev_b32 v6, 13, v3
          v_lshl_add_u32 v6, v4, 4, v6
          s_lshl_b32 s52, s52, 17
          s_lshl_b32 s53, s30, 8
          s_add_u32 s52, s52, s53
          s_mov_b32 s34, 0x400000
          s_mov_b32 s42, 1024
          s_mov_b32 s43, 0x20000
          s_waitcnt lgkmcnt(0)
          s_load_dword s44, s[26:27], 0
          s_mov_b32 s40, s4
          s_and_b32 s41, s5, 0xffff
          s_mov_b32 s32, s10
          s_and_b32 s33, s11, 0xffff
          buffer_load_dwordx4 v[8:11], v2, s[40:43], 0 offen
          buffer_load_ushort v12, v5, s[40:43], 0 offen""")
    for t in range(4):
        a(f"buffer_load_dwordx4 v[{16 + 4 * t}:{19 + 4 * t}], v6, s[32:35], s52 offen nt")
        if t < 3: a("s_add_u32 s52, s52, 0x8000")
    stamp(1)
    a(f"""s_branch L_H
          L_KV:
          s_lshl_b32 s54, s30, 20
          s_lshl_b32 s53, s31, 17
          s_add_u32 s54, s54, s53
          s_lshl_b32 s52, s61, 10
          s_mov_b32 s34, 0x20000
          s_cmp_lt_u32 s3, 8
          s_cbranch_scc0 L_V""")

    sec("K waves: scores and local softmax")
    a("""s_setprio 2
         s_waitcnt lgkmcnt(0)
         s_add_u32 s32, s6, s54
         s_addc_u32 s33, s7, 0
         s_and_b32 s33, s33, 0xffff""")
    stamp(1)
    stream()
    a("s_load_dwordx8 s[20:27], s[0:1], 64\ns_waitcnt lgkmcnt(0)\ns_load_dword s44, s[26:27], 0")
    stamp(2)
    ws_srd(); bitmasks()
    a(f"""v_and_b32 v8, 15, v0
          v_lshlrev_b32 v8, 4, v8
          v_mov_b32 v9, 0
          s_waitcnt lgkmcnt(0)""")
    tag_setup()
    c("wait for q (bf16, in LDS)")
    lds_wait("L_K_wait", L_FLAG, 9, 3, 1)
    a(f"""ds_read_b128 v[4:7], v8 offset:{L_Q}
          s_waitcnt lgkmcnt(0)""")
    stamp(3)
    for b in range(2):
        R = lambda t, k=0: KB + 4 * (16 * b + t) + k
        c(f"tiles {16 * b}..{16 * b + 15}: per-lane dot products, then a transposing sum over the 16 lanes of a key")
        for t in range(16):
            a(f"s_waitcnt vmcnt({31 - (16 * b + t)})")
            a(f"v_dot2_f32_bf16 v{R(t)}, v{R(t)}, v4, 0")
            for k in range(1, 4): a(f"v_dot2_f32_bf16 v{R(t)}, v{R(t, k)}, v{4 + k}, v{R(t)}")
        for u in range(8):
            a(f"v_add_f32_dpp v{R(u, 1)}, v{R(u)}, v{R(u)} row_ror:8 row_mask:0xf bank_mask:0x3")
        for u in range(8):
            a(f"v_add_f32_dpp v{R(u, 1)}, v{R(u + 8)}, v{R(u + 8)} row_ror:8 row_mask:0xf bank_mask:0xc")
        for u in range(4):
            a(f"v_add_f32_dpp v{R(u, 2)}, v{R(u, 1)}, v{R(u, 1)} row_shl:4 row_mask:0xf bank_mask:0x5")
        for u in range(4):
            a(f"v_add_f32_dpp v{R(u, 2)}, v{R(u + 4, 1)}, v{R(u + 4, 1)} row_shr:4 row_mask:0xf bank_mask:0xa")
        for u in range(4):
            a(f"v_add_f32_dpp v{R(u, 3)}, v{R(u, 2)}, v{R(u, 2)} quad_perm:[2,3,0,1] {DPPF}")
        for u in range(2):
            a(f"v_cndmask_b32 v{R(u + 4, 3)}, v{R(u, 3)}, v{R(u + 2, 3)}, s[54:55]")
        for u in range(2):
            a(f"v_add_f32_dpp v{R(u + 6, 3)}, v{R(u + 4, 3)}, v{R(u + 4, 3)} quad_perm:[1,0,3,2] {DPPF}")
        a(f"v_cndmask_b32 v{10 + b}, v{R(6, 3)}, v{R(7, 3)}, s[56:57]")
    stamp(4)
    c("scores rounded to bf16, scaled, rounded again (as the reference does); max, exp, sum of this wave's keys")
    a(f"v_cvt_pk_bf16_f32 v12, v10, v11")
    unpack(10, 11, 12)
    a(f"""v_mul_f32 v10, {SCALE}, v10
          v_mul_f32 v11, {SCALE}, v11
          v_cvt_pk_bf16_f32 v12, v10, v11""")
    unpack(10, 11, 12)
    a("v_max_f32 v13, v10, v11")
    row_allreduce("v_max_f32", [13]); cross_rows("v_max_f32", [13], [14])
    a(f"""v_sub_f32 v10, v10, v13
          v_sub_f32 v11, v11, v13
          v_mul_f32 v10, {LOG2E}, v10
          v_mul_f32 v11, {LOG2E}, v11
          v_exp_f32 v10, v10
          v_exp_f32 v11, v11
          s_lshl_b32 s53, s61, 9
          v_lshl_add_u32 v8, v0, 3, s53
          v_add_f32 v14, v10, v11
          v_cvt_pk_bf16_f32 v16, v10, v10
          v_cvt_pk_bf16_f32 v17, v11, v11
          ds_write_b64 v8, v[16:17] offset:{L_P}""")
    row_allreduce("v_add_f32", [14]); cross_rows("v_add_f32", [14], [15])
    a(f"""s_lshl_b32 s53, s61, 3
          v_mov_b32 v9, s53
          v_mov_b32 v18, v13
          v_mov_b32 v19, v14
          s_mov_b64 exec, 1
          ds_write_b64 v9, v[18:19] offset:{L_ST}
          s_mov_b64 exec, -1
          s_waitcnt lgkmcnt(0)""")
    stamp(5)
    a("s_branch L_T")

    sec("V waves: P.V, publication of the partial, later tail duties")
    a("""L_V:
         s_load_dwordx8 s[20:27], s[0:1], 64
         s_waitcnt lgkmcnt(0)
         s_load_dword s44, s[26:27], 0
         s_add_u32 s32, s8, s54
         s_addc_u32 s33, s9, 0
         s_and_b32 s33, s33, 0xffff""")
    ws_srd(); perm_sel()
    sel_masks(36, 3, 4, 5)
    ffn_role()
    a(f"""s_mov_b32 s40, s20
          s_and_b32 s41, s21, 0xffff
          s_mov_b32 s42, {hex(1376 * 1024)}
          s_mov_b32 s43, 0x20000
          s_lshl_b32 s64, s62, 14
          s_lshl_b32 s52, s61, 8
          s_add_u32 s64, s64, s52
          v_lshrrev_b32 v3, 4, v0
          v_and_b32 v4, 15, v0
          v_lshlrev_b32 v1, 10, v3
          v_lshl_add_u32 v1, v4, 4, v1
          v_lshlrev_b32 v5, 4, v3
          v_lshl_add_u32 v19, v4, 5, v5
          s_mul_i32 s59, s61, {R_STRIDE}
          v_add_u32 v19, s59, v19
          s_lshl_b32 s53, s61, 9
          v_lshl_add_u32 v6, v0, 3, s53
          s_lshl_b32 s53, s61, 3
          v_mov_b32 v7, s53
          v_mov_b32 v3, 0
          s_lshl_b32 s66, s28, 5
          s_add_u32 s66, s66, s29
          s_mul_i32 s66, s66, {O_STRIDE}
          s_add_u32 s66, s66, {hex(WS_O)}
          s_waitcnt lgkmcnt(0)""")
    tag_setup()
    a("s_lshl_b32 s52, s61, 10")
    stamp(1); stream(); stamp(2)
    c("B1: probabilities and wave statistics are in LDS")
    a("s_barrier")
    stamp(3)
    a(f"""s_setprio 3
          ds_read_b64 v[4:5], v6 offset:{L_P}
          ds_read_b128 v[8:11], v3 offset:{L_ST}
          ds_read_b128 v[12:15], v3 offset:{L_ST + 16}
          ds_read_b64 v[16:17], v7 offset:{L_ST}
          ds_read_b32 v18, v3 offset:{L_MODE}
          s_waitcnt lgkmcnt(0)
          v_readfirstlane_b32 s65, v18
          v_max3_f32 v8, v8, v10, v12
          v_max_f32 v8, v8, v14
          v_sub_f32 v18, v16, v8
          v_mul_f32 v18, {LOG2E}, v18
          v_exp_f32 v18, v18
          s_cmp_eq_u32 s61, 0
          s_cselect_b64 vcc, -1, 0
          v_cndmask_b32 v20, 0, v8, vcc
          v_mul_f32 v21, v18, v17
          v_mov_b32 v22, 0
          v_mov_b32 v23, 0
          v_mov_b32 v7, s59
          v_mov_b32 v3, s44
          s_mov_b64 exec, 1
          ds_write_b128 v7, v[20:23] offset:{L_R + 512}
          s_mov_b64 exec, -1""")
    c("one MFMA per 4 keys: A = probability on the diagonal, B = the V rows as loaded")
    for t in range(32):
        A = 28 + 4 * (t & 1)
        for r in range(4):
            a(f"v_and_b32_dpp v{A + r}, v{4 + (t >> 4)}, v{36 + r} row_newbcast:{t & 15} {DPPF}")
        a(f"s_waitcnt vmcnt({31 - t})")
        a(f"v_mfma_f32_16x16x32_bf16 v[24:27], v[{A}:{A + 3}], v[{KB + 4 * t}:{KB + 4 * t + 3}], {'0' if t == 0 else 'v[24:27]'}")
    stamp(4, True)
    for r in range(4): a(f"v_mul_f32 v{24 + r}, v18, v{24 + r}")
    setexec(0xffffffff)
    a(f"""ds_write_b128 v19, v[24:27] offset:{L_R}
          s_mov_b64 exec, -1
          s_waitcnt lgkmcnt(0)""")
    c("B2: the four wave partials are in LDS; V0 sums and publishes 128 values + (max, sum)")
    a("s_barrier")
    stamp(5)
    a(f"""s_cmp_lg_u32 s61, 0
          s_cbranch_scc1 L_V_nopub""")
    setexec((1 << 33) - 1)
    for k in range(4): a(f"ds_read_b128 v[{56 + 4 * k}:{59 + 4 * k}], v2 offset:{L_R + k * R_STRIDE}")
    a("s_waitcnt lgkmcnt(2)")
    for r in range(4): a(f"v_add_f32 v{56 + r}, v{56 + r}, v{60 + r}")
    a("s_waitcnt lgkmcnt(0)")
    for r in range(4): a(f"v_add_f32 v{64 + r}, v{64 + r}, v{68 + r}")
    for r in range(4): a(f"v_add_f32 v{56 + r}, v{56 + r}, v{64 + r}")
    put_tags(56, 3)
    a(f"""s_cmp_eq_u32 s65, s44
          s_cbranch_scc0 L_V_safe
          buffer_store_dwordx4 v[56:59], v2, s[36:39], s66 offen
          L_V_pubd:
          s_mov_b64 exec, -1""")
    stamp(6)
    if P["stamps"] == 1: a("s_cmp_eq_u32 s65, s44\ns_cselect_b32 s92, 1, 2")
    c("output-projection workgroups: V0 / V1 sum the eight wave partials of 32 columns each after B3")
    a(f"""L_V_nopub:
          s_cmp_lt_u32 s29, 16
          s_cbranch_scc0 L_V_nowo
          s_cmp_lt_u32 s61, 2
          s_cbranch_scc0 L_exit
          v_and_b32 v4, 7, v0
          v_lshrrev_b32 v5, 3, v0
          v_mul_u32_u24 v4, 272, v4
          v_lshl_add_u32 v4, v5, 4, v4
          s_lshl_b32 s53, s61, 7
          v_add_u32 v4, s53, v4
          v_lshlrev_b32 v5, 4, v5
          s_lshl_b32 s52, s28, 1
          s_lshr_b32 s54, s29, 3
          s_add_u32 s52, s52, s54
          s_mul_i32 s52, s52, {A_STRIDE}
          s_add_u32 s52, s52, s53
          s_lshl_b32 s53, s31, 8
          s_add_u32 s52, s52, s53
          s_add_u32 s52, s52, {hex(WS_A)}
          v_bfe_u32 v6, v0, 2, 1
          v_bfe_u32 v7, v0, 1, 1
          v_lshl_add_u32 v7, v6, 1, v7
          v_lshl_add_u32 v6, v7, 2, v5
          v_add_u32 v7, 0x07060500, v7
          s_mov_b32 s54, 0xcccccccc
          s_mov_b32 s55, 0xcccccccc
          s_barrier
          ds_read_b128 v[56:59], v4 offset:{L_A}
          s_waitcnt lgkmcnt(0)""")
    stamp(9)
    for u in range(2): a(f"v_add_f32_dpp v{60 + u}, v{56 + u}, v{56 + u} row_shl:4 row_mask:0xf bank_mask:0x5")
    for u in range(2): a(f"v_add_f32_dpp v{60 + u}, v{58 + u}, v{58 + u} row_shr:4 row_mask:0xf bank_mask:0xa")
    for u in range(2): a(f"v_add_f32_dpp v{60 + u}, v{60 + u}, v{60 + u} quad_perm:[2,3,0,1] {DPPF}")
    a(f"""v_cndmask_b32 v60, v60, v61, s[54:55]
          v_add_f32_dpp v60, v60, v60 quad_perm:[1,0,3,2] {DPPF}
          v_perm_b32 v60, v60, v3, v7""")
    setexec(0x5555555555555555)
    a("buffer_store_dword v60, v6, s[36:39], s52 offen sc1")
    stamp(10)
    a(f"""s_branch L_exit
          L_V_safe:
          buffer_store_dwordx4 v[56:59], v2, s[36:39], s66 offen sc1
          s_branch L_V_pubd
          L_V_nowo:
          s_cmp_eq_u32 s63, 1
          s_cbranch_scc0 L_exit""")
    c("FFN workgroups: 16 rows of w_down, 128 columns per wave")
    for u in range(4):
        a(f"s_add_u32 s52, s64, {u * 4096}")
        a(f"buffer_load_dwordx4 v[{KB + 4 * u}:{KB + 4 * u + 3}], v1, s[40:43], s52 offen")
    a(f"""s_barrier
          v_lshrrev_b32 v4, 4, v0
          v_and_b32 v5, 3, v0
          v_lshl_add_u32 v4, v5, 2, v4
          v_mul_u32_u24 v4, 40, v4
          v_bfe_u32 v5, v0, 2, 2
          v_lshl_add_u32 v4, v5, 3, v4
          v_and_b32 v5, 15, v0
          v_lshlrev_b32 v5, 5, v5
          v_lshrrev_b32 v6, 4, v0
          v_lshl_add_u32 v5, v6, 4, v5
          s_mul_i32 s52, s62, {F_STRIDE}
          s_lshl_b32 s53, s61, 9
          s_add_u32 s52, s52, s53
          s_add_u32 s52, s52, {hex(WS_F)}
          v_mov_b32 v20, {f32(GC2)}
          v_mov_b32 v21, {f32(GC1)}
          v_bfe_u32 v6, v0, 2, 2
          v_lshlrev_b32 v6, 3, v6
          s_waitcnt vmcnt(0)""")
    c("B5: partials of h.Wg, h.Wu, column sums of Wg / Wu, sum(h^2), sum(h)")
    a(f"""s_barrier
          ds_read_b64 v[16:17], v6 offset:{L_G + 65 * 40}
          ds_read_b64 v[18:19], v6 offset:{L_G + 64 * 40}
          ds_read_b64 v[8:9], v4 offset:{L_G}
          ds_read_b64 v[10:11], v4 offset:{L_G + 640}
          ds_read_b64 v[12:13], v4 offset:{L_G + 1280}
          ds_read_b64 v[14:15], v4 offset:{L_G + 1920}
          s_waitcnt lgkmcnt(4)""")
    stamp(7)
    a(f"""v_add_f32 v16, v16, v17
          v_add_f32 v18, v18, v19
          s_waitcnt lgkmcnt(0)
          v_add_f32 v8, v8, v9
          v_add_f32 v10, v10, v11
          v_add_f32 v12, v12, v13
          v_add_f32 v14, v14, v15""")
    for mode in ("row_ror:4", "row_ror:8"):
        for r in (16, 18, 8, 10, 12, 14): a(f"v_add_f32_dpp v{r}, v{r}, v{r} {mode} {DPPF}")
    c("gate = (h.W - mean * colsum(W)) / sqrt(var + eps), likewise up")
    a(f"""v_mul_f32 v16, {f32(1 / 512)}, v16
          v_mul_f32 v18, {f32(1 / 512)}, v18
          v_fma_f32 v18, -v16, v16, v18
          v_max_f32 v18, 0, v18
          v_cvt_pk_bf16_f32 v17, v16, v18""")
    unpack(16, 18, 17)
    a(f"""v_add_f32 v18, {EPS}, v18
          v_fma_f32 v8, -v16, v12, v8
          v_cvt_pk_bf16_f32 v18, v18, v18
          v_fma_f32 v10, -v16, v14, v10
          v_and_b32 v18, 0xffff0000, v18
          v_sqrt_f32 v18, v18""")
    rbf(18)
    a(f"""v_rcp_f32 v18, v18
          v_mul_f32 v8, v8, v18
          v_mul_f32 v10, v10, v18
          v_cvt_pk_bf16_f32 v12, v8, v10""")
    unpack(8, 10, 12)
    c("tanh GELU written as g / (1 + exp(-2 sqrt(2/pi) (g + 0.044715 g^3)))")
    a(f"""v_mul_f32 v9, v8, v8
          v_fma_f32 v9, v9, v20, v21
          v_mul_f32 v9, v9, v8
          v_exp_f32 v9, v9
          v_add_f32 v9, 1.0, v9
          v_rcp_f32 v9, v9
          v_mul_f32 v9, v9, v8""")
    rbf(9)
    a(f"""v_mul_f32 v9, v9, v10
          v_cvt_pk_bf16_f32 v4, v9, v9""")
    for t in range(4):
        A = 28 + 4 * (t & 1)
        for r in range(4):
            a(f"v_and_b32_dpp v{A + r}, v4, v{36 + r} row_newbcast:{t} {DPPF}")
        a(f"v_mfma_f32_16x16x32_bf16 v[24:27], v[{A}:{A + 3}], v[{KB + 4 * t}:{KB + 4 * t + 3}], {'0' if t == 0 else 'v[24:27]'}")
    setexec(0xffffffff)
    put_tags(24, 3)
    a("buffer_store_dwordx4 v[24:27], v5, s[36:39], s52 offen sc1")
    stamp(8)
    a("s_branch L_exit")

    sec("H waves: LN(x), query projection, early exchanges")
    a("L_H:")
    ws_srd()
    a("s_cmp_eq_u32 s3, 1\ns_cbranch_scc0 L_H_notok")
    c("H1 announces the XCC id of this workgroup with a plain store")
    perm_sel()
    a(f"""s_getreg_b32 s67, hwreg(HW_REG_XCC_ID, 0, 4)
          s_lshl_b32 s67, s67, 8
          s_lshl_b32 s66, s28, 12
          s_add_u32 s66, s66, {hex(WS_X)}
          s_lshl_b32 s52, s29, 7
          s_add_u32 s52, s52, s66
          v_mov_b32 v104, s67
          v_mov_b32 v105, s67
          v_mov_b32 v106, s67
          v_mov_b32 v107, s67
          v_mov_b32 v108, 0
          s_waitcnt lgkmcnt(0)
          s_add_u32 s53, s44, {hex(TAG_STEP)}
          v_mov_b32 v109, s53""")
    put_tags(104, 109)
    a("""s_mov_b64 exec, 1
         buffer_store_dwordx4 v[104:107], v108, s[36:39], s52 offen
         s_mov_b64 exec, -1
         s_mov_b32 s64, 1
         s_branch L_H_tok
         L_H_notok:
         s_mov_b32 s64, 0
         L_H_tok:""")
    sel_masks(88, 13, 14, 15)
    a("""s_cmp_eq_u32 s64, 1
         s_cbranch_scc1 L_H_w1
         s_waitcnt vmcnt(4)
         s_branch L_H_w2
         L_H_w1:
         s_waitcnt vmcnt(5)
         L_H_w2:""")
    c("layer norm of x with the reference's bf16 roundings")
    for k in range(4): unpack(80 + 2 * k, 81 + 2 * k, 8 + k)
    a("""v_add_f32 v8, v80, v81
         v_add_f32 v9, v82, v83
         v_add_f32 v10, v84, v85
         v_add_f32 v11, v86, v87
         v_add_f32 v8, v8, v9
         v_add_f32 v10, v10, v11
         v_add_f32 v8, v8, v10""")
    row_allreduce("v_add_f32", [8]); cross_rows("v_add_f32", [8], [9])
    a(f"v_mul_f32 v8, {f32(1 / 512)}, v8")
    for k in range(8): a(f"v_sub_f32 v{80 + k}, v{80 + k}, v8")
    a("v_mul_f32 v9, v80, v80")
    for k in range(1, 8): a(f"v_fmac_f32 v9, v{80 + k}, v{80 + k}")
    row_allreduce("v_add_f32", [9]); cross_rows("v_add_f32", [9], [10])
    a(f"""v_mul_f32 v9, {f32(1 / 512)}, v9
          v_cvt_pk_bf16_f32 v10, v8, v9""")
    unpack(8, 9, 10)
    a(f"v_add_f32 v9, {EPS}, v9")
    rbf(9)
    a(f"""v_sqrt_f32 v9, v9
          v_lshlrev_b32 v12, 16, v12
          v_sub_f32 v12, v12, v8""")
    rbf(9); rbf(12)
    a(f"""v_rcp_f32 v10, v9
          v_mul_f32 v11, v12, v10
          v_fma_f32 v13, -v11, v9, v12
          v_fma_f32 v11, v13, v10, v11
          v_cvt_pk_bf16_f32 v12, v11, v11
          s_cmp_eq_u32 s64, 1
          s_cbranch_scc1 L_H_w3
          s_waitcnt vmcnt(0)
          s_branch L_H_w4
          L_H_w3:
          s_waitcnt vmcnt(1)
          L_H_w4:""")
    stamp(2)
    for t in range(4):
        A = 96 + 4 * (t & 1)
        for r in range(4):
            a(f"v_and_b32_dpp v{A + r}, v12, v{88 + r} row_newbcast:{t} {DPPF}")
        a(f"v_mfma_f32_16x16x32_bf16 v[92:95], v[{A}:{A + 3}], v[{16 + 4 * t}:{19 + 4 * t}], {'0' if t == 0 else 'v[92:95]'}")
    a("s_waitcnt lgkmcnt(0)")
    tag_setup()
    c("H1..H3 hand their partial q to H0 through LDS")
    a(f"""s_cmp_eq_u32 s3, 0
          s_cbranch_scc1 L_H0
          s_lshl_b32 s52, s61, 9
          v_add_u32 v5, s52, v2
          s_lshl_b32 s52, s61, 2
          v_mov_b32 v6, s52
          v_mov_b32 v7, s44""")
    setexec(0xffffffff)
    a(f"""ds_write_b128 v5, v[92:95] offset:{L_HQ - 512}
          s_waitcnt lgkmcnt(0)
          s_mov_b64 exec, 1
          ds_write_b32 v6, v7 offset:{L_HF}
          s_mov_b64 exec, -1
          s_branch L_H123
          L_H0:
          v_lshlrev_b32 v4, 6, v4
          v_lshl_add_u32 v4, v3, 5, v4
          s_lshl_b32 s53, s30, 13
          s_add_u32 s53, s53, {hex(WS_Q)}
          s_lshl_b32 s58, s31, 10
          s_add_u32 s58, s58, s53
          v_mov_b32 v5, 0
          s_mov_b32 s60, 0
          L_H0_join:
          ds_read_b128 v[8:11], v5 offset:{L_HF}
          s_waitcnt lgkmcnt(0)
          v_xor_b32 v9, s44, v9
          v_bitop3_b32 v9, v9, v10, s44 bitop3:0xf6
          v_bitop3_b32 v9, v9, v11, s44 bitop3:0xf6
          v_cmp_ne_u32 vcc, 0, v9
          s_cbranch_vccz L_H0_joined
          s_add_u32 s60, s60, 1
          s_cmp_lt_u32 s60, {POLL_CAP}
          s_cbranch_scc1 L_H0_join
          L_H0_joined:""")
    for k in range(3): a(f"ds_read_b128 v[{16 + 4 * k}:{19 + 4 * k}], v2 offset:{L_HQ + 512 * k}")
    a(f"""v_mov_b32 v9, s44
          v_mov_b32 v11, s44
          v_mov_b32 v13, s44
          v_mov_b32 v15, s44
          s_waitcnt lgkmcnt(0)""")
    for r in range(4): a(f"v_add_f32 v{92 + r}, v{92 + r}, v{16 + r}\nv_add_f32 v{20 + r}, v{20 + r}, v{24 + r}")
    for r in range(4): a(f"v_add_f32 v{8 + 2 * r}, v{92 + r}, v{20 + r}")
    c("publish the partial q as {fp32, tag} pairs with plain stores; repeated write-through if the group is not on one XCD")
    setexec(0xffffffff)
    a(f"""buffer_store_dwordx4 v[8:11], v4, s[36:39], s58 offen
          buffer_store_dwordx4 v[12:15], v4, s[36:39], s58 offen offset:16
          s_mov_b64 exec, -1
          s_mov_b32 s65, 0""")
    def republish():
        l = a.label("L_rep")
        a(f"""s_cmp_eq_u32 s65, 1
              s_cbranch_scc1 {l}
              ds_read_b64 v[6:7], v5 offset:{L_MODE}
              s_waitcnt lgkmcnt(0)
              v_readfirstlane_b32 s64, v7
              v_readfirstlane_b32 s59, v6
              s_cmp_eq_u32 s64, s44
              s_cbranch_scc0 {l}
              s_mov_b32 s65, 1
              s_cmp_eq_u32 s59, s44
              s_cbranch_scc1 {l}""")
        setexec(0xffffffff)
        a(f"""buffer_store_dwordx4 v[8:11], v4, s[36:39], s58 offen sc1
              buffer_store_dwordx4 v[12:15], v4, s[36:39], s58 offen offset:16 sc1
              s_mov_b64 exec, -1
              {l}:""")
    stamp(3)
    a(f"""s_add_u32 s52, s53, 4096
          s_mov_b32 s60, 0""")
    c("back-off before the first poll: a failed pass costs the stream eight load slots")
    if P["q_sleep"]: a(f"s_sleep {P['q_sleep']}")
    a("L_H0_poll:")
    for p in range(8):
        a(f"buffer_load_dwordx4 v[{16 + 4 * p}:{19 + 4 * p}], v2, s[36:39], {'s53' if p < 4 else 's52'} offen offset:{(p & 3) * 1024} sc1")
    for p in range(8):
        a(f"s_waitcnt vmcnt({7 - p})")
        if p == 0: a(f"v_xor_b32 v62, s44, v17")
        else: a(f"v_bitop3_b32 v62, v62, v{17 + 4 * p}, s44 bitop3:0xf6")
        a(f"v_bitop3_b32 v62, v62, v{19 + 4 * p}, s44 bitop3:0xf6")
    a(f"""v_cmp_ne_u32 vcc, 0, v62
          s_cbranch_vccz L_H0_got""")
    republish()
    a(f"""s_add_u32 s60, s60, 1
          s_cmp_lt_u32 s60, {POLL_CAP}
          s_sleep 4
          s_cbranch_scc1 L_H0_poll
          L_H0_got:""")
    note(5, "s60")
    for p in range(1, 8):
        a(f"v_add_f32 v16, v16, v{16 + 4 * p}\nv_add_f32 v18, v18, v{18 + 4 * p}")
    a(f"""v_cvt_pk_bf16_f32 v16, v16, v18
          v_lshlrev_b32 v3, 2, v0
          v_mov_b32 v6, s44
          ds_write_b32 v3, v16 offset:{L_Q}
          s_waitcnt lgkmcnt(0)
          s_mov_b64 exec, 1
          ds_write_b32 v5, v6 offset:{L_FLAG}
          s_mov_b64 exec, -1
          s_waitcnt lgkmcnt(0)""")
    stamp(4)
    lds_wait("L_H0_mode", L_MFLAG, 5, 6, 4)
    republish()
    a("s_branch L_T")

    a("""L_H123:
         s_cmp_eq_u32 s3, 1
         s_cbranch_scc0 L_T""")
    c("H1: plain stores are allowed only if all 32 members are seen with this workgroup's own XCC id")
    a("""v_and_b32 v3, 31, v0
         v_lshlrev_b32 v3, 7, v3""")
    if P["x_sleep"]: a(f"s_sleep {P['x_sleep']}")
    poll("L_H1_poll", [("buffer_load_dwordx4 v[4:7], v3, s[36:39], s66 offen sc1", 4)], cap=12, sleep=8)
    a(f"""s_cmp_lt_u32 s60, 12
          s_cselect_b32 s67, s67, -1
          v_cmp_ne_u32 vcc, s67, v4
          s_cmp_eq_u64 vcc, 0
          s_cselect_b32 s52, s44, 0""")
    if P["force_safe"]: a("s_mov_b32 s52, 0")
    a(f"""v_mov_b32 v4, s52
          v_mov_b32 v5, s44
          v_mov_b32 v9, 0
          s_mov_b64 exec, 1
          ds_write_b64 v9, v[4:5] offset:{L_MODE}
          s_mov_b64 exec, -1
          s_waitcnt lgkmcnt(0)""")
    stamp(3)

    sec("T waves (H and K): tail roles")
    a("L_T:\ns_setprio 0")
    ffn_role(); bitmasks()
    a(f"""v_lshrrev_b32 v3, 4, v0
          v_lshrrev_b32 v4, 3, v0
          v_and_b32 v5, 7, v0
          v_bfe_u32 v7, v0, 2, 2
          v_lshl_add_u32 v7, v7, 2, v3
          v_lshlrev_b32 v7, 6, v7
          v_and_b32 v8, 3, v0
          v_lshl_add_u32 v7, v8, 3, v7
          s_lshl_b32 s61, s3, 12
          s_add_u32 s61, s61, {L_W}
          v_add_u32 v7, s61, v7
          v_lshrrev_b32 v9, 2, v0
          s_cmp_lt_u32 s29, 16
          s_cbranch_scc1 L_T_wo
          s_cmp_eq_u32 s63, 1
          s_cbranch_scc1 L_T_ffn
          s_sub_u32 s52, s29, {16 + NFO}
          s_cmp_lt_u32 s52, 8
          s_cselect_b32 s53, 1, 0
          s_bitcmp1_b32 s28, 0
          s_cselect_b32 s53, s53, 0
          s_cmp_lt_u32 s3, 2
          s_cselect_b32 s53, s53, 0
          s_cmp_eq_u32 s53, 1
          s_cbranch_scc1 L_T_fin""")
    def b12(at_b1=None, pf=False):
        a("s_barrier"); stamp(6)
        if at_b1: at_b1()
        a("s_barrier"); stamp(7)
        if pf: prefetch_ffn()
    b12(pf=True)
    a("s_branch L_exit")

    sec("output projection: two heads x 64 columns, 32 rows per wave")
    a(f"""L_T_wo:
          v_lshlrev_b32 v10, 10, v4
          v_lshl_add_u32 v10, v5, 4, v10
          s_lshl_b32 s52, s28, 1
          s_lshr_b32 s53, s29, 3
          s_add_u32 s52, s52, s53
          s_lshl_b32 s58, s52, 3
          s_add_u32 s58, s58, s3
          s_lshl_b32 s64, s58, 15
          s_lshl_b32 s53, s31, 7
          s_add_u32 s64, s64, s53
          v_bfe_u32 v7, v0, 2, 2
          v_lshl_add_u32 v7, v7, 2, v3
          v_lshlrev_b32 v7, 7, v7
          v_lshl_add_u32 v7, v8, 3, v7
          v_add_u32 v7, s61, v7
          v_mul_u32_u24 v11, {O_STRIDE}, v4
          v_lshl_add_u32 v12, v5, 4, v11
          s_lshr_b32 s58, s58, 2
          s_mul_i32 s58, s58, {8 * O_STRIDE}
          s_add_u32 s58, s58, {hex(WS_O)}
          s_and_b32 s53, s3, 3
          s_lshl_b32 s53, s53, 7
          s_add_u32 s59, s53, s58
          v_lshlrev_b32 v13, 2, v0
          s_mul_i32 s53, s3, 272
          v_add_u32 v13, s53, v13""")
    def wo_dma():
        c("wo tile into LDS, queued behind the V stream")
        srd(40, "s12", "s13", "0x400000")
        for t in range(4):
            a(f"""s_add_u32 m0, s61, {t * 1024}
                  s_add_u32 s53, s64, {t * 8192}
                  buffer_load_dwordx4 v10, s[40:43], s53 offen lds""")
    b12(at_b1=wo_dma)
    def tr_wo(n):
        a(f"s_waitcnt vmcnt({n})")
        for nt in range(4):
            for hf in range(2):
                r = 16 + 4 * nt + 2 * hf
                a(f"ds_read_b64_tr_b16 v[{r}:{r + 1}], v7 offset:{nt * 32 + hf * 2048}")
        stamp(11)
    poll("L_wo_poll", [("buffer_load_dwordx4 v[32:35], v11, s[36:39], s58 offen offset:512 sc1", 32),
                       ("buffer_load_dwordx4 v[36:39], v12, s[36:39], s59 offen sc1", 36)], first=tr_wo)
    stamp(8)
    note(10, "s60")
    c("softmax combine over the eight key splits (true max), o rounded to bf16")
    a(f"v_max_f32_dpp v34, v32, v32 row_ror:8 {DPPF}")
    cross_rows("v_max_f32", [34], [35])
    a(f"""v_sub_f32 v32, v32, v34
          v_mul_f32 v32, {LOG2E}, v32
          v_exp_f32 v32, v32
          v_mul_f32 v33, v32, v33""")
    for r in range(4): a(f"v_mul_f32 v{36 + r}, v32, v{36 + r}")
    a(f"""v_add_f32_dpp v33, v33, v33 row_ror:8 {DPPF}
          v_add_f32_dpp v44, v36, v36 row_ror:8 row_mask:0xf bank_mask:0x3
          v_add_f32_dpp v45, v37, v37 row_ror:8 row_mask:0xf bank_mask:0x3
          v_mov_b32 v34, v33
          v_add_f32_dpp v44, v38, v38 row_ror:8 row_mask:0xf bank_mask:0xc
          v_add_f32_dpp v45, v39, v39 row_ror:8 row_mask:0xf bank_mask:0xc
          v_permlane16_swap_b32 v34, v33
          v_permlane16_swap_b32 v44, v45
          v_add_f32 v33, v33, v34
          v_add_f32 v44, v44, v45
          v_mov_b32 v34, v33
          v_mov_b32 v45, v44
          v_permlane32_swap_b32 v34, v33
          v_permlane32_swap_b32 v45, v44
          v_add_f32 v33, v33, v34
          v_add_f32 v44, v44, v45
          v_rcp_f32 v33, v33
          v_mul_f32 v44, v44, v33
          v_mov_b32_dpp v45, v44 quad_perm:[1,0,3,2] {DPPF}
          v_cvt_pk_bf16_f32 v45, v44, v45""")
    for r in range(4): a(f"v_mov_b32_dpp v{48 + r}, v45 row_newbcast:{2 * r} row_mask:0x3 bank_mask:0xf")
    for r in range(4): a(f"v_mov_b32_dpp v{48 + r}, v45 row_newbcast:{8 + 2 * r} row_mask:0xc bank_mask:0xf")
    a("s_waitcnt lgkmcnt(0)")
    D = [56, 64, 68, 72]
    for nt in range(4):
        a(f"v_mfma_f32_16x16x32_bf16 v[{D[nt]}:{D[nt] + 3}], v[48:51], v[{16 + 4 * nt}:{19 + 4 * nt}], 0")
    a(f"""s_mov_b32 s54, 0xffff0000
          s_mov_b32 s55, 0xffff0000
          s_mov_b32 s56, 0
          s_mov_b32 s57, -1
          v_cndmask_b32 v56, v56, v64, s[54:55]
          v_cndmask_b32 v68, v68, v72, s[54:55]
          v_cndmask_b32 v56, v56, v68, s[56:57]
          ds_write_b32 v13, v56 offset:{L_A}
          s_waitcnt lgkmcnt(0)
          s_barrier
          s_branch L_exit""")

    sec("FFN gate / up: 16 + 16 columns, 64 rows per wave")
    a(f"""L_T_ffn:
          s_lshl_b32 s52, s3, 6
          v_add_u32 v10, s52, v9
          v_mul_u32_u24 v10, 2752, v10
          v_and_b32 v14, 1, v0
          v_lshl_add_u32 v10, v14, 4, v10
          s_lshl_b32 s52, s62, 5
          v_add_u32 v10, s52, v10
          v_mov_b32 v72, s16
          v_mov_b32 v73, s17
          v_mov_b32 v14, s18
          v_mov_b32 v15, s19
          v_cndmask_b32 v72, v72, v14, s[54:55]
          v_cndmask_b32 v73, v73, v15, s[54:55]
          v_add_co_u32 v72, vcc, v72, v10
          v_addc_co_u32 v73, vcc, 0, v73, vcc
          v_and_b32 v14, 15, v0
          v_lshl_add_u32 v14, v14, 2, v3
          v_lshlrev_b32 v14, 1, v14
          s_lshl_b32 s52, s3, 7
          v_add_u32 v14, s52, v14""")
    srd(40, "s4", "s5", "1024")
    a(f"""buffer_load_ushort v68, v14, s[40:43], 0 offen
          v_lshlrev_b32 v70, 4, v5
          v_mul_u32_u24 v10, {A_STRIDE}, v4
          v_add_u32 v70, v70, v10
          s_lshl_b32 s52, s3, 8
          v_add_u32 v70, s52, v70
          v_mul_u32_u24 v71, 40, v0
          s_lshl_b32 s52, s3, 2
          v_add_u32 v71, s52, v71
          v_bfe_u32 v74, v0, 3, 1
          v_mul_u32_u24 v74, 40, v74
          v_add_u32 v74, s52, v74""")
    c("rows 8..15 of the A operand hold ones: they deliver the column sums and sum(h)")
    for r in range(8): a(f"v_mov_b32 v{48 + r}, 0x3f803f80")
    b12(pf=True)
    c("the narrow gate / up slices are staged once this workgroup's share of the prefetch has landed")
    a(f"""s_cmp_eq_u32 s3, 3
          s_cbranch_scc0 L_ffn_go
          s_waitcnt vmcnt(0)
          L_ffn_go:
          s_barrier""")
    stamp(8)
    for t in range(4):
        a(f"s_add_u32 m0, s61, {t * 1024}\nglobal_load_lds_dwordx4 v[72:73], off")
        if t < 3: a("v_add_co_u32 v72, vcc, 44032, v72\nv_addc_co_u32 v73, vcc, 0, v73, vcc")
    a(f"s_mov_b32 s58, {hex(WS_A)}\ns_mov_b32 s59, {hex(WS_A + 8 * A_STRIDE)}")
    def tr_ffn(n):
        a(f"s_waitcnt vmcnt({n})")
        for s_ in range(2):
            for nt in range(2):
                for hf in range(2):
                    r = 16 + 8 * s_ + 4 * nt + 2 * hf
                    a(f"ds_read_b64_tr_b16 v[{r}:{r + 1}], v7 offset:{s_ * 2048 + nt * 32 + hf * 1024}")
        stamp(9)
    poll("L_ffn_poll", [("buffer_load_dwordx4 v[36:39], v70, s[36:39], s58 offen sc1", 36),
                        ("buffer_load_dwordx4 v[40:43], v70, s[36:39], s58 offen offset:128 sc1", 40),
                        ("buffer_load_dwordx4 v[80:83], v70, s[36:39], s59 offen sc1", 80),
                        ("buffer_load_dwordx4 v[84:87], v70, s[36:39], s59 offen offset:128 sc1", 84)], first=tr_ffn)
    c("h = bf16(x + bf16(sum of the 16 partials)), one column per lane")
    a("v_lshlrev_b32 v68, 16, v68")
    for r in range(4): a(f"v_pk_add_f32 v[{36 + 2 * r}:{37 + 2 * r}], v[{36 + 2 * r}:{37 + 2 * r}], v[{80 + 2 * r}:{81 + 2 * r}]")
    stamp(10)
    note(1, "s60")
    for u in range(4): a(f"v_add_f32_dpp v{44 + u}, v{36 + u}, v{36 + u} row_ror:8 row_mask:0xf bank_mask:0x3")
    for u in range(4): a(f"v_add_f32_dpp v{44 + u}, v{40 + u}, v{40 + u} row_ror:8 row_mask:0xf bank_mask:0xc")
    a("""v_permlane16_swap_b32 v44, v45
         v_permlane16_swap_b32 v46, v47
         v_add_f32 v44, v44, v45
         v_add_f32 v46, v46, v47
         v_permlane32_swap_b32 v44, v46
         v_add_f32 v44, v44, v46""")
    rbf(44)
    a(f"""v_add_f32 v44, v44, v68
          v_mov_b32_dpp v45, v44 quad_perm:[1,0,3,2] {DPPF}
          v_cvt_pk_bf16_f32 v45, v44, v45""")
    for s_ in range(2):
        for r in range(4): a(f"v_mov_b32_dpp v{48 + 4 * s_ + r}, v45 row_newbcast:{8 * s_ + 2 * r} row_mask:0xf bank_mask:0x3")
    a(f"""s_waitcnt lgkmcnt(0)
          v_mfma_f32_16x16x32_bf16 v[56:59], v[48:51], v[16:19], 0
          v_mfma_f32_16x16x32_bf16 v[64:67], v[48:51], v[20:23], 0
          v_mfma_f32_16x16x32_bf16 v[76:79], v[48:51], v[48:51], 0
          v_mfma_f32_16x16x32_bf16 v[56:59], v[52:55], v[24:27], v[56:59]
          v_mfma_f32_16x16x32_bf16 v[64:67], v[52:55], v[28:31], v[64:67]
          v_mfma_f32_16x16x32_bf16 v[76:79], v[52:55], v[52:55], v[76:79]
          s_mov_b32 s54, 0xffff0000
          s_mov_b32 s55, 0xffff0000
          v_cndmask_b32 v56, v56, v64, s[54:55]
          ds_write_b32 v71, v56 offset:{L_G}""")
    setexec(0x101)
    a(f"""ds_write_b32 v74, v76 offset:{L_G + 64 * 40}
          s_waitcnt lgkmcnt(0)
          s_barrier
          s_branch L_exit""")

    sec("final reduction: 8 output columns per wave")
    a(f"""L_T_fin:
          s_lshr_b32 s53, s28, 1
          s_lshl_b32 s53, s53, 3
          s_add_u32 s52, s52, s53
          s_lshl_b32 s52, s52, 1
          s_add_u32 s64, s52, s3
          v_and_b32 v4, 1, v0
          v_lshlrev_b32 v5, 3, v4
          s_lshl_b32 s52, s64, 4
          v_add_u32 v5, s52, v5""")
    srd(40, "s4", "s5", "1024")
    a(f"""buffer_load_dwordx2 v[8:9], v5, s[40:43], 0 offen
          v_lshlrev_b32 v6, 1, v5
          v_bfe_u32 v7, v0, 1, 3
          v_mul_u32_u24 v7, {A_STRIDE}, v7
          v_add_u32 v10, v7, v6
          v_lshrrev_b32 v7, 1, v0
          v_mul_u32_u24 v7, {F_STRIDE}, v7
          v_add_u32 v11, v7, v6
          v_lshl_add_u32 v5, v3, 1, v5
          v_mov_b32 v44, 0
          v_mov_b32 v45, 0
          v_mov_b32 v46, 0
          v_mov_b32 v47, 0""")
    b12()
    a(f"s_mov_b32 s58, {hex(WS_A)}\ns_mov_b32 s59, {hex(WS_A + 8 * A_STRIDE)}\ns_waitcnt vmcnt(0)")
    unpack(16, 17, 8); unpack(18, 19, 9)
    srd(40, "s22", "s23", "1024")
    poll("L_fin_poll1", [("buffer_load_dwordx4 v[20:23], v10, s[36:39], s58 offen sc1", 20),
                         ("buffer_load_dwordx4 v[24:27], v10, s[36:39], s59 offen sc1", 24)], sleep=2)
    for r in range(4): a(f"v_add_f32 v{20 + r}, v{20 + r}, v{24 + r}")
    stamp(8)
    def fin_dpp(rs):
        for mode in ("quad_perm:[2,3,0,1]", "row_ror:4", "row_ror:8"):
            for r in rs: a(f"v_add_f32_dpp v{r}, v{r}, v{r} {mode} {DPPF}")
    fin_dpp([20, 21, 22, 23])
    a("v_cvt_pk_bf16_f32 v24, v20, v21\nv_cvt_pk_bf16_f32 v25, v22, v23")
    unpack(20, 21, 24); unpack(22, 23, 25)
    for r in range(4): a(f"v_add_f32 v{20 + r}, v{20 + r}, v{16 + r}")
    a(f"""v_cmp_eq_u32 vcc, 1, v3
          v_cndmask_b32 v20, v20, v21, vcc
          v_cmp_eq_u32 vcc, 2, v3
          v_cndmask_b32 v20, v20, v22, vcc
          v_cmp_eq_u32 vcc, 3, v3
          v_cndmask_b32 v20, v20, v23, vcc""")
    rbf(20)
    a(f"""s_mov_b32 s58, {hex(WS_F)}
          s_mov_b32 s59, {hex(WS_F + 32 * F_STRIDE)}
          s_mov_b32 s53, {hex(WS_F + 64 * F_STRIDE)}
          v_mov_b32 v63, 0
          s_mov_b32 s60, 0
          s_mov_b32 s54, -1
          s_mov_b32 s55, 0xfff""")
    c("back-off for the length of the FFN stage: a poll that races the producers' stores slows both down")
    if P["fin_sleep"]: a(f"s_sleep {P['fin_sleep']}")
    a(f"""L_fin_poll2:
          buffer_load_dwordx4 v[36:39], v11, s[36:39], s58 offen sc1
          buffer_load_dwordx4 v[40:43], v11, s[36:39], s59 offen sc1
          s_mov_b64 s[56:57], exec
          s_and_b64 exec, exec, s[54:55]
          s_cbranch_scc0 L_fin_no3
          buffer_load_dwordx4 v[44:47], v11, s[36:39], s53 offen sc1
          L_fin_no3:
          s_waitcnt vmcnt(0)
          s_mov_b64 exec, s[56:57]""")
    chk_tags(62, 36, True); chk_tags(62, 40, False)
    a("s_and_b64 exec, exec, s[54:55]")
    chk_tags(62, 44, False)
    a(f"""s_mov_b64 exec, s[56:57]
          v_cmp_ne_u32_sdwa vcc, v62, v63 src0_sel:BYTE_0 src1_sel:DWORD
          s_and_b64 exec, vcc, vcc
          s_cbranch_scc0 L_fin_got2
          s_add_u32 s60, s60, 1
          s_cmp_lt_u32 s60, {POLL_CAP}
          s_cbranch_scc1 L_fin_poll2
          L_fin_got2:
          s_mov_b64 exec, -1""")
    stamp(9)
    for r in range(4): a(f"v_add_f32 v{36 + r}, v{36 + r}, v{40 + r}")
    for r in range(4): a(f"v_add_f32 v{36 + r}, v{36 + r}, v{44 + r}")
    fin_dpp([36, 37, 38, 39])
    a(f"""v_permlane16_swap_b32 v36, v37
          v_permlane16_swap_b32 v38, v39
          v_add_f32 v36, v36, v37
          v_add_f32 v38, v38, v39
          v_permlane32_swap_b32 v36, v38
          v_add_f32 v36, v36, v38""")
    rbf(36)
    a(f"""v_add_f32 v36, v36, v20
          v_cvt_pk_bf16_f32 v36, v36, v36""")
    setexec(0x0003000300030003)
    a(f"""buffer_store_short v36, v5, s[40:43], 0 offen
          s_cmp_lg_u32 s64, 0
          s_cbranch_scc1 L_fin_done""")
    c("every wave of the grid has read d_ws[0] by now: leave this launch's tag there")
    a(f"""s_mov_b64 exec, 1
          v_mov_b32 v4, s44
          v_mov_b32 v6, 0
          buffer_store_dword v4, v6, s[36:39], 0 offen
          L_fin_done:""")
    if P["pad_to"]:
        a(f"""s_mov_b32 s60, 0
              L_pad:
              s_memrealtime s[66:67]
              s_waitcnt lgkmcnt(0)
              s_sub_u32 s66, s66, s98
              s_add_u32 s60, s60, 1
              s_cmp_gt_u32 s60, 100000
              s_cbranch_scc1 L_padd
              s_cmp_lt_u32 s66, {P['pad_to']}
              s_cbranch_scc1 L_pad
              L_padd:""")
    stamp(10, True)

    a("L_exit:")
    if P["stamps"]:
        a(f"""s_mov_b64 exec, 1
              s_mul_i32 s52, s2, 12
              s_add_u32 s52, s52, s3
              s_lshl_b32 s52, s52, 6
              s_add_u32 s52, s52, {hex(WS_STAMP)}
              v_mov_b32 v3, 0
              s_waitcnt lgkmcnt(0)""")
        for q in range(3):
            for k in range(4): a(f"v_mov_b32 v{4 + 4 * q + k}, s{70 + 2 * (4 * q + k)}")
            a(f"buffer_store_dwordx4 v[{4 + 4 * q}:{7 + 4 * q}], v3, s[36:39], s52 offen offset:{16 * q}")
    a("L_end:\ns_endpgm")

    if P["jitter"]:
        src, a.lines = a.lines, []
        for l in src:
            t = l.strip()
            if t.startswith(("s_barrier", "buffer_store", "ds_write")) or t in ("L_H:", "L_V:", "L_T:"):
                if t.endswith(":"): a(t); jit(); continue
                jit(); a(t)
                if t.startswith("s_barrier"): jit()
            else: a.lines.append(l)
    lines, nops = fix_hazards(a.lines)
    hdr = HEADER + f"""; @launch grid=(256,1,1) block=(768,1,1) lds={P['lds']}
.amdgcn_target "amdgcn-amd-amdhsa--gfx950"
.text
.globl {NAME}
.p2align 8
.type {NAME},@function
{NAME}:
"""
    ftr = f"""
    .fill 32, 4, 0xbf800000
.section .rodata,"a"
.p2align 6
.amdhsa_kernel {NAME}
  .amdhsa_next_free_vgpr 168
  .amdhsa_next_free_sgpr {100 if P['jitter'] or P['pad_to'] else (96 if P['stamps'] else 72)}
  .amdhsa_accum_offset 168
  .amdhsa_group_segment_fixed_size 0
  .amdhsa_kernarg_size 96
  .amdhsa_user_sgpr_count 2
  .amdhsa_user_sgpr_kernarg_segment_ptr 1
  .amdhsa_system_sgpr_workgroup_id_x 1
  .amdhsa_float_denorm_mode_32 3
.end_amdhsa_kernel
"""
    return hdr + "\n".join(lines) + ftr, nops

if __name__ == "__main__":
    out = sys.argv[1]
    kw = {}
    for x in sys.argv[2:]:
        k, v = x.split("="); kw[k] = int(v)
    s, n = build(**kw)
    open(out, "w").write(s)
    print("wrote", out, "lines", s.count("\n"), "nop states inserted", n)
```

```python
import sys, struct
from asmlib import Asm, fix_hazards

NAME = "sequential_preLN__mha_block_cached__geglu_ffn__decode_kernel"
def f32(x): return "0x%08x" % struct.unpack("<I", struct.pack("<f", x))[0]

WS_X, WS_Q, WS_O, WS_A, WS_F, WS_STAMP, WS_SIZE = 0x1000, 0x10000, 0x50000, 0x90000, 0xA0000, 0x100000, 0x200000
O_STRIDE, A_STRIDE, F_STRIDE = 640, 2176, 2176
L_Q, L_FLAG, L_MODE, L_MFLAG, L_ST, L_P, L_R, L_A, L_G, L_HF, L_HQ, L_W, LDS_SIZE = \
    0, 256, 264, 268, 288, 512, 2560, 4736, 4736, 6272, 6400, 8192, 40960
R_STRIDE = 528
TAG_STEP = 0x9E3779B1
SCALE = f32(128 ** -0.5)
LOG2E = f32(1.4426950408889634)
EPS = f32(1e-5)
GC1 = -2.0 * 0.7978845608028654 * 1.4426950408889634
GC2 = GC1 * 0.044715
DPPF = "row_mask:0xf bank_mask:0xf"
POLL_CAP = 1000000
NFE, NFO = 16, 6
KB = 40

DEF = dict(stamps=0, jitter=0, force_safe=0, q_sleep=25, x_sleep=16, fin_sleep=44, lds=LDS_SIZE, pad_to=0, robust=1)

HEADER = """\
;
"""

def build(**kw):
    P = dict(DEF); P.update(kw)
    a = Asm()
    def c(text): a.lines.append("    ; " + text)
    def sec(text): a.lines.append(""); a.lines.append("; ---- " + text)

    def stamp(n, key=False):
        if P["stamps"] == 1 or (P["stamps"] == 2 and key): a(f"s_memrealtime s[{70 + 2 * n}:{71 + 2 * n}]")
    def note(n, sreg):
        if P["stamps"] == 1: a(f"s_mov_b32 s{70 + 2 * n}, {sreg}")
    def jit():
        l = a.label("L_jit")
        a(f"""s_mul_i32 s96, s96, 1664525
              s_add_u32 s96, s96, 1013904223
              s_lshr_b32 s97, s96, 30
              s_cmp_lg_u32 s97, 0
              s_cbranch_scc1 {l}d
              s_lshr_b32 s97, s96, 20
              s_and_b32 s97, s97, 255
              {l}:
              s_sleep 1
              s_sub_u32 s97, s97, 1
              s_cmp_gt_i32 s97, 0
              s_cbranch_scc1 {l}
              {l}d:""")
    def srd(d, lo, hi, size):
        a(f"s_mov_b32 s{d}, {lo}\ns_and_b32 s{d + 1}, {hi}, 0xffff\ns_mov_b32 s{d + 2}, {size}\ns_mov_b32 s{d + 3}, 0x20000")
    def ws_srd(): srd(36, "s26", "s27", hex(WS_SIZE))
    def tag_setup():
        c("s44 = tag of this launch; s68, s45, s46, s47 = its four bytes")
        a(f"""s_add_u32 s44, s44, {hex(TAG_STEP)}
              s_and_b32 s68, s44, 0xff
              s_bfe_u32 s45, s44, 0x80008
              s_bfe_u32 s46, s44, 0x80010
              s_lshr_b32 s47, s44, 24""")
    def perm_sel():
        for k in range(4): a(f"s_mov_b32 s{48 + k}, {hex(0x07060500 + k)}")
    def put_tags(r, vtag):
        for k in range(4): a(f"v_perm_b32 v{r + k}, v{r + k}, v{vtag}, s{48 + k}")
    def chk_tags(acc, r, first):
        for k in range(4): a(f"v_xor_b32 v{r + k}, s{(68, 45, 46, 47)[k]}, v{r + k}")
        if first: a(f"v_or_b32 v{acc}, v{r}, v{r + 1}")
        else: a(f"v_or3_b32 v{acc}, v{acc}, v{r}, v{r + 1}")
        a(f"v_or3_b32 v{acc}, v{acc}, v{r + 2}, v{r + 3}")
    def setexec(mask):
        if mask == -1: a("s_mov_b64 exec, -1")
        elif mask < 64: a(f"s_mov_b64 exec, {mask}")
        else: a(f"s_mov_b32 exec_lo, {hex(mask & 0xffffffff)}\ns_mov_b32 exec_hi, {hex(mask >> 32)}")
    def poll(name, loads, cap=POLL_CAP, sleep=0, first=None):
        c("bounded poll: lanes whose granules carry the tag stop reloading")
        a("s_mov_b32 s60, 0\nv_mov_b32 v63, 0")
        if first:
            for txt, _ in loads: a(txt)
            first(len(loads))
            a(f"s_branch {name}_chk")
        a(f"{name}:")
        for txt, _ in loads: a(txt)
        if first: a(f"{name}_chk:")
        for k, (_, r) in enumerate(loads):
            a(f"s_waitcnt vmcnt({len(loads) - 1 - k})"); chk_tags(62, r, k == 0)
        a(f"""v_cmp_ne_u32_sdwa vcc, v62, v63 src0_sel:BYTE_0 src1_sel:DWORD
              s_and_b64 exec, vcc, vcc
              s_cbranch_scc0 {name}_ok
              s_add_u32 s60, s60, 1
              s_cmp_lt_u32 s60, {cap}""")
        if sleep: a(f"s_sleep {sleep}")
        a(f"s_cbranch_scc1 {name}\n{name}_ok:\ns_mov_b64 exec, -1")
    def lds_wait(name, off, vz, vt, sleep):
        a(f"""s_mov_b32 s60, 0
              {name}:
              ds_read_b32 v{vt}, v{vz} offset:{off}
              s_waitcnt lgkmcnt(0)
              v_readfirstlane_b32 s52, v{vt}
              s_cmp_eq_u32 s52, s44
              s_cbranch_scc1 {name}_ok
              s_sleep {sleep}
              s_add_u32 s60, s60, 1
              s_cmp_lt_u32 s60, {POLL_CAP}
              s_cbranch_scc1 {name}
              {name}_ok:""")
    def row_allreduce(op, rs):
        for mode in ("quad_perm:[1,0,3,2]", "quad_perm:[2,3,0,1]", "row_half_mirror", "row_mirror"):
            for r in rs: a(f"{op}_dpp v{r}, v{r}, v{r} {mode} {DPPF}")
    def cross_rows(op, rs, tmps):
        for sw in ("v_permlane16_swap_b32", "v_permlane32_swap_b32"):
            for r, t in zip(rs, tmps): a(f"v_mov_b32 v{t}, v{r}")
            for r, t in zip(rs, tmps): a(f"{sw} v{t}, v{r}")
            for r, t in zip(rs, tmps): a(f"{op} v{r}, v{r}, v{t}")
    def sel_masks(m, t0, t1, t2):
        c("selector masks: A row m keeps element m of its k slab (rows 8..15 stay zero)")
        a(f"""v_bfe_u32 v{t0}, v0, 1, 3
              v_and_b32 v{t1}, 1, v0
              v_lshlrev_b32 v{t1}, 4, v{t1}
              v_mov_b32 v{t2}, 0xffff
              v_lshlrev_b32 v{t1}, v{t1}, v{t2}""")
        for r in range(4):
            a(f"v_cmp_eq_u32 vcc, {r}, v{t0}\nv_cndmask_b32 v{m + r}, 0, v{t1}, vcc")
    def unpack(lo, hi, src):
        a(f"v_and_b32 v{hi}, 0xffff0000, v{src}\nv_lshlrev_b32 v{lo}, 16, v{src}")
    def rbf(r): a(f"v_cvt_pk_bf16_f32 v{r}, v{r}, v{r}\nv_and_b32 v{r}, 0xffff0000, v{r}")
    def bitmasks():
        a("""s_mov_b32 s54, 0xcccccccc
             s_mov_b32 s55, 0xcccccccc
             s_mov_b32 s56, 0xaaaaaaaa
             s_mov_b32 s57, 0xaaaaaaaa""")
    def ffn_role():
        c("s62 = FFN slice, s63 = 1 for FFN workgroups, s67 = first slice of the group, s69 = slices of the group")
        a(f"""s_lshr_b32 s52, s28, 1
              s_mul_i32 s67, s52, {NFE}
              s_mul_i32 s53, s52, {NFO}
              s_add_u32 s53, s53, {4 * NFE}
              s_bitcmp1_b32 s28, 0
              s_cselect_b32 s67, s53, s67
              s_cselect_b32 s69, {NFO}, {NFE}
              s_sub_u32 s52, s29, 16
              s_add_u32 s62, s67, s52
              s_cmp_lt_u32 s52, s69
              s_cselect_b32 s53, 1, 0
              s_cmp_lt_u32 s62, 86
              s_cselect_b32 s63, s53, 0""")
    def stream():
        c("tile t = 16 keys; the four waves of a role interleave at 1 KB")
        for t in range(32):
            if t: a("s_add_u32 s52, s52, 4096")
            a(f"buffer_load_dwordx4 v[{KB + 4 * t}:{KB + 4 * t + 3}], v2, s[32:35], s52 offen nt")
    def prefetch_ffn():
        c("wave 3: 32 rows of the gate / up column window of this group into L2 (whole lines, one dword each)")
        l = a.label("L_pf")
        a(f"""s_cmp_eq_u32 s3, 3
              s_cbranch_scc0 {l}
              v_and_b32 v100, 7, v0
              v_lshlrev_b32 v100, 7, v100
              s_lshl_b32 s52, s69, 5
              s_sub_u32 s52, s52, 4
              v_min_u32 v100, s52, v100
              v_lshrrev_b32 v102, 3, v0
              v_mul_u32_u24 v102, 2752, v102
              v_add_u32 v100, v100, v102
              s_sub_u32 s52, s29, 16
              s_mul_i32 s52, s52, {32 * 2752}
              s_lshl_b32 s53, s67, 5
              s_add_u32 s53, s53, s52""")
        for lo, hi in (("s16", "s17"), ("s18", "s19")):
            srd(40, lo, hi, str(512 * 2752))
            for u in range(4):
                a(f"s_add_u32 s52, s53, {u * 8 * 2752}\nbuffer_load_dword v101, v100, s[40:43], s52 offen")
        a(f"{l}:")

    a(f"""s_cmp_ge_u32 s2, 256
          s_cbranch_scc1 L_end
          s_load_dwordx16 s[4:19], s[0:1], 0""")
    if P["stamps"]:
        a("s_memrealtime s[70:71]")
        for n in range(1, 12): a(f"s_mov_b64 s[{70 + 2 * n}:{71 + 2 * n}], 0")
    if P["pad_to"]: a("s_memrealtime s[98:99]")
    if P["jitter"]:
        a("""s_memtime s[96:97]
             s_waitcnt lgkmcnt(0)
             v_readfirstlane_b32 s97, v0
             s_mul_i32 s97, s97, 0x1b873593
             s_mul_i32 s98, s2, 0x85ebca6b
             s_add_u32 s96, s96, s97
             s_add_u32 s96, s96, s98
             s_mul_i32 s96, s96, 0x9e3779b1""")
    c("s3 = wave, s28 = group, s29 = idx, s30 = head, s31 = key split, s61 = wave & 3, v0 = lane")
    a(f"""v_lshrrev_b32 v1, 6, v0
          v_and_b32 v0, 63, v0
          s_and_b32 s28, s2, 7
          v_readfirstlane_b32 s3, v1
          s_lshr_b32 s29, s2, 3
          s_lshr_b32 s30, s29, 3
          s_lshl_b32 s52, s28, 2
          s_add_u32 s30, s30, s52
          s_and_b32 s31, s29, 7
          v_lshlrev_b32 v2, 4, v0
          s_and_b32 s61, s3, 3
          s_mov_b32 s35, 0x20000
          s_cmp_lt_u32 s3, 4
          s_cbranch_scc0 L_KV""")
    c("H waves: x (whole and one element per lane) and 16 rows x 128 columns of wq")
    a(f"""s_load_dwordx8 s[20:27], s[0:1], 64
          s_setprio 3
          v_lshrrev_b32 v3, 4, v0
          v_and_b32 v4, 15, v0
          v_and_b32 v5, 3, v0
          v_lshl_add_u32 v5, v5, 2, v3
          s_lshl_b32 s52, s31, 2
          s_add_u32 s52, s52, s61
          s_lshl_b32 s53, s52, 4
          v_add_u32 v5, s53, v5
          v_lshlrev_b32 v5, 1, v5
          v_lshlrev_b32 v6, 13, v3
          v_lshl_add_u32 v6, v4, 4, v6
          s_lshl_b32 s52, s52, 17
          s_lshl_b32 s53, s30, 8
          s_add_u32 s52, s52, s53
          s_mov_b32 s34, 0x400000
          s_mov_b32 s42, 1024
          s_mov_b32 s43, 0x20000
          s_waitcnt lgkmcnt(0)
          s_load_dword s44, s[26:27], 0
          s_mov_b32 s40, s4
          s_and_b32 s41, s5, 0xffff
          s_mov_b32 s32, s10
          s_and_b32 s33, s11, 0xffff
          buffer_load_dwordx4 v[8:11], v2, s[40:43], 0 offen
          buffer_load_ushort v12, v5, s[40:43], 0 offen""")
    for t in range(4):
        a(f"buffer_load_dwordx4 v[{16 + 4 * t}:{19 + 4 * t}], v6, s[32:35], s52 offen nt")
        if t < 3: a("s_add_u32 s52, s52, 0x8000")
    stamp(1)
    a(f"""s_branch L_H
          L_KV:
          s_lshl_b32 s54, s30, 20
          s_lshl_b32 s53, s31, 17
          s_add_u32 s54, s54, s53
          s_lshl_b32 s52, s61, 10
          s_mov_b32 s34, 0x20000
          s_cmp_lt_u32 s3, 8
          s_cbranch_scc0 L_V""")

    sec("K waves: scores and local softmax")
    a("""s_setprio 2
         s_waitcnt lgkmcnt(0)
         s_add_u32 s32, s6, s54
         s_addc_u32 s33, s7, 0
         s_and_b32 s33, s33, 0xffff""")
    stamp(1)
    stream()
    a("s_load_dwordx8 s[20:27], s[0:1], 64\ns_waitcnt lgkmcnt(0)\ns_load_dword s44, s[26:27], 0")
    stamp(2)
    ws_srd(); bitmasks()
    a(f"""v_and_b32 v8, 15, v0
          v_lshlrev_b32 v8, 4, v8
          v_mov_b32 v9, 0
          s_waitcnt lgkmcnt(0)""")
    tag_setup()
    c("wait for q (bf16, in LDS)")
    lds_wait("L_K_wait", L_FLAG, 9, 3, 1)
    a(f"""ds_read_b128 v[4:7], v8 offset:{L_Q}
          s_waitcnt lgkmcnt(0)""")
    stamp(3)
    for b in range(2):
        R = lambda t, k=0: KB + 4 * (16 * b + t) + k
        c(f"tiles {16 * b}..{16 * b + 15}: per-lane dot products, then a transposing sum over the 16 lanes of a key")
        for t in range(16):
            a(f"s_waitcnt vmcnt({31 - (16 * b + t)})")
            a(f"v_dot2_f32_bf16 v{R(t)}, v{R(t)}, v4, 0")
            for k in range(1, 4): a(f"v_dot2_f32_bf16 v{R(t)}, v{R(t, k)}, v{4 + k}, v{R(t)}")
        for u in range(8):
            a(f"v_add_f32_dpp v{R(u, 1)}, v{R(u)}, v{R(u)} row_ror:8 row_mask:0xf bank_mask:0x3")
        for u in range(8):
            a(f"v_add_f32_dpp v{R(u, 1)}, v{R(u + 8)}, v{R(u + 8)} row_ror:8 row_mask:0xf bank_mask:0xc")
        for u in range(4):
            a(f"v_add_f32_dpp v{R(u, 2)}, v{R(u, 1)}, v{R(u, 1)} row_shl:4 row_mask:0xf bank_mask:0x5")
        for u in range(4):
            a(f"v_add_f32_dpp v{R(u, 2)}, v{R(u + 4, 1)}, v{R(u + 4, 1)} row_shr:4 row_mask:0xf bank_mask:0xa")
        for u in range(4):
            a(f"v_add_f32_dpp v{R(u, 3)}, v{R(u, 2)}, v{R(u, 2)} quad_perm:[2,3,0,1] {DPPF}")
        for u in range(2):
            a(f"v_cndmask_b32 v{R(u + 4, 3)}, v{R(u, 3)}, v{R(u + 2, 3)}, s[54:55]")
        for u in range(2):
            a(f"v_add_f32_dpp v{R(u + 6, 3)}, v{R(u + 4, 3)}, v{R(u + 4, 3)} quad_perm:[1,0,3,2] {DPPF}")
        a(f"v_cndmask_b32 v{10 + b}, v{R(6, 3)}, v{R(7, 3)}, s[56:57]")
    stamp(4)
    c("scores rounded to bf16, scaled, rounded again (as the reference does); max, exp, sum of this wave's keys")
    a(f"v_cvt_pk_bf16_f32 v12, v10, v11")
    unpack(10, 11, 12)
    a(f"""v_mul_f32 v10, {SCALE}, v10
          v_mul_f32 v11, {SCALE}, v11
          v_cvt_pk_bf16_f32 v12, v10, v11""")
    unpack(10, 11, 12)
    a("v_max_f32 v13, v10, v11")
    row_allreduce("v_max_f32", [13]); cross_rows("v_max_f32", [13], [14])
    a(f"""v_sub_f32 v10, v10, v13
          v_sub_f32 v11, v11, v13
          v_mul_f32 v10, {LOG2E}, v10
          v_mul_f32 v11, {LOG2E}, v11
          v_exp_f32 v10, v10
          v_exp_f32 v11, v11
          s_lshl_b32 s53, s61, 9
          v_lshl_add_u32 v8, v0, 3, s53
          v_add_f32 v14, v10, v11
          v_cvt_pk_bf16_f32 v16, v10, v10
          v_cvt_pk_bf16_f32 v17, v11, v11
          ds_write_b64 v8, v[16:17] offset:{L_P}""")
    row_allreduce("v_add_f32", [14]); cross_rows("v_add_f32", [14], [15])
    a(f"""s_lshl_b32 s53, s61, 3
          v_mov_b32 v9, s53
          v_mov_b32 v18, v13
          v_mov_b32 v19, v14
          s_mov_b64 exec, 1
          ds_write_b64 v9, v[18:19] offset:{L_ST}
          s_mov_b64 exec, -1
          s_waitcnt lgkmcnt(0)""")
    stamp(5)
    a("s_branch L_T")

    sec("V waves: P.V, publication of the partial, later tail duties")
    a("""L_V:
         s_load_dwordx8 s[20:27], s[0:1], 64
         s_waitcnt lgkmcnt(0)
         s_load_dword s44, s[26:27], 0
         s_add_u32 s32, s8, s54
         s_addc_u32 s33, s9, 0
         s_and_b32 s33, s33, 0xffff""")
    ws_srd(); perm_sel()
    sel_masks(36, 3, 4, 5)
    ffn_role()
    a(f"""s_mov_b32 s40, s20
          s_and_b32 s41, s21, 0xffff
          s_mov_b32 s42, {hex(1376 * 1024)}
          s_mov_b32 s43, 0x20000
          s_lshl_b32 s64, s62, 14
          s_lshl_b32 s52, s61, 8
          s_add_u32 s64, s64, s52
          v_lshrrev_b32 v3, 4, v0
          v_and_b32 v4, 15, v0
          v_lshlrev_b32 v1, 10, v3
          v_lshl_add_u32 v1, v4, 4, v1
          v_lshlrev_b32 v5, 4, v3
          v_lshl_add_u32 v19, v4, 5, v5
          s_mul_i32 s59, s61, {R_STRIDE}
          v_add_u32 v19, s59, v19
          s_lshl_b32 s53, s61, 9
          v_lshl_add_u32 v6, v0, 3, s53
          s_lshl_b32 s53, s61, 3
          v_mov_b32 v7, s53
          v_mov_b32 v3, 0
          s_lshl_b32 s66, s28, 5
          s_add_u32 s66, s66, s29
          s_mul_i32 s66, s66, {O_STRIDE}
          s_add_u32 s66, s66, {hex(WS_O)}
          s_waitcnt lgkmcnt(0)""")
    tag_setup()
    a("s_lshl_b32 s52, s61, 10")
    stamp(1); stream(); stamp(2)
    c("B1: probabilities and wave statistics are in LDS")
    a("s_barrier")
    stamp(3)
    a(f"""s_setprio 3
          ds_read_b64 v[4:5], v6 offset:{L_P}
          ds_read_b128 v[8:11], v3 offset:{L_ST}
          ds_read_b128 v[12:15], v3 offset:{L_ST + 16}
          ds_read_b64 v[16:17], v7 offset:{L_ST}
          ds_read_b32 v18, v3 offset:{L_MODE}
          s_waitcnt lgkmcnt(0)
          v_readfirstlane_b32 s65, v18
          v_max3_f32 v8, v8, v10, v12
          v_max_f32 v8, v8, v14
          v_sub_f32 v18, v16, v8
          v_mul_f32 v18, {LOG2E}, v18
          v_exp_f32 v18, v18
          s_cmp_eq_u32 s61, 0
          s_cselect_b64 vcc, -1, 0
          v_cndmask_b32 v20, 0, v8, vcc
          v_mul_f32 v21, v18, v17
          v_mov_b32 v22, 0
          v_mov_b32 v23, 0
          v_mov_b32 v7, s59
          v_mov_b32 v3, s44
          s_mov_b64 exec, 1
          ds_write_b128 v7, v[20:23] offset:{L_R + 512}
          s_mov_b64 exec, -1""")
    c("one MFMA per 4 keys: A = probability on the diagonal, B = the V rows as loaded")
    for t in range(32):
        A = 28 + 4 * (t & 1)
        for r in range(4):
            a(f"v_and_b32_dpp v{A + r}, v{4 + (t >> 4)}, v{36 + r} row_newbcast:{t & 15} {DPPF}")
        a(f"s_waitcnt vmcnt({31 - t})")
        a(f"v_mfma_f32_16x16x32_bf16 v[24:27], v[{A}:{A + 3}], v[{KB + 4 * t}:{KB + 4 * t + 3}], {'0' if t == 0 else 'v[24:27]'}")
    stamp(4, True)
    for r in range(4): a(f"v_mul_f32 v{24 + r}, v18, v{24 + r}")
    setexec(0xffffffff)
    a(f"""ds_write_b128 v19, v[24:27] offset:{L_R}
          s_mov_b64 exec, -1
          s_waitcnt lgkmcnt(0)""")
    c("B2: the four wave partials are in LDS; V0 sums and publishes 128 values + (max, sum)")
    a("s_barrier")
    stamp(5)
    a(f"""s_cmp_lg_u32 s61, 0
          s_cbranch_scc1 L_V_nopub""")
    setexec((1 << 33) - 1)
    for k in range(4): a(f"ds_read_b128 v[{56 + 4 * k}:{59 + 4 * k}], v2 offset:{L_R + k * R_STRIDE}")
    a("s_waitcnt lgkmcnt(2)")
    for r in range(4): a(f"v_add_f32 v{56 + r}, v{56 + r}, v{60 + r}")
    a("s_waitcnt lgkmcnt(0)")
    for r in range(4): a(f"v_add_f32 v{64 + r}, v{64 + r}, v{68 + r}")
    for r in range(4): a(f"v_add_f32 v{56 + r}, v{56 + r}, v{64 + r}")
    put_tags(56, 3)
    a(f"""s_cmp_eq_u32 s65, s44
          s_cbranch_scc0 L_V_safe
          buffer_store_dwordx4 v[56:59], v2, s[36:39], s66 offen
          L_V_pubd:
          s_mov_b64 exec, -1""")
    stamp(6)
    if P["stamps"] == 1: a("s_cmp_eq_u32 s65, s44\ns_cselect_b32 s92, 1, 2")
    c("output-projection workgroups: V0 / V1 sum the eight wave partials of 32 columns each after B3")
    a(f"""L_V_nopub:
          s_cmp_lt_u32 s29, 16
          s_cbranch_scc0 L_V_nowo
          s_cmp_lt_u32 s61, 2
          s_cbranch_scc0 L_exit
          v_and_b32 v4, 7, v0
          v_lshrrev_b32 v5, 3, v0
          v_mul_u32_u24 v4, 272, v4
          v_lshl_add_u32 v4, v5, 4, v4
          s_lshl_b32 s53, s61, 7
          v_add_u32 v4, s53, v4
          v_lshlrev_b32 v5, 4, v5
          s_lshl_b32 s52, s28, 1
          s_lshr_b32 s54, s29, 3
          s_add_u32 s52, s52, s54
          s_mul_i32 s52, s52, {A_STRIDE}
          s_add_u32 s52, s52, s53
          s_lshl_b32 s53, s31, 8
          s_add_u32 s52, s52, s53
          s_add_u32 s52, s52, {hex(WS_A)}
          v_bfe_u32 v6, v0, 2, 1
          v_bfe_u32 v7, v0, 1, 1
          v_lshl_add_u32 v7, v6, 1, v7
          v_lshl_add_u32 v6, v7, 2, v5
          v_add_u32 v7, 0x07060500, v7
          s_mov_b32 s54, 0xcccccccc
          s_mov_b32 s55, 0xcccccccc
          s_barrier
          ds_read_b128 v[56:59], v4 offset:{L_A}
          s_waitcnt lgkmcnt(0)""")
    stamp(9)
    for u in range(2): a(f"v_add_f32_dpp v{60 + u}, v{56 + u}, v{56 + u} row_shl:4 row_mask:0xf bank_mask:0x5")
    for u in range(2): a(f"v_add_f32_dpp v{60 + u}, v{58 + u}, v{58 + u} row_shr:4 row_mask:0xf bank_mask:0xa")
    for u in range(2): a(f"v_add_f32_dpp v{60 + u}, v{60 + u}, v{60 + u} quad_perm:[2,3,0,1] {DPPF}")
    a(f"""v_cndmask_b32 v60, v60, v61, s[54:55]
          v_add_f32_dpp v60, v60, v60 quad_perm:[1,0,3,2] {DPPF}
          v_perm_b32 v60, v60, v3, v7""")
    setexec(0x5555555555555555)
    a("buffer_store_dword v60, v6, s[36:39], s52 offen sc1")
    stamp(10)
    a(f"""s_branch L_exit
          L_V_safe:
          buffer_store_dwordx4 v[56:59], v2, s[36:39], s66 offen sc1
          s_branch L_V_pubd
          L_V_nowo:
          s_cmp_eq_u32 s63, 1
          s_cbranch_scc0 L_exit""")
    c("FFN workgroups: 16 rows of w_down, 128 columns per wave")
    for u in range(4):
        a(f"s_add_u32 s52, s64, {u * 4096}")
        a(f"buffer_load_dwordx4 v[{KB + 4 * u}:{KB + 4 * u + 3}], v1, s[40:43], s52 offen")
    a(f"""s_barrier
          v_lshrrev_b32 v4, 4, v0
          v_and_b32 v5, 3, v0
          v_lshl_add_u32 v4, v5, 2, v4
          v_mul_u32_u24 v4, 40, v4
          v_bfe_u32 v5, v0, 2, 2
          v_lshl_add_u32 v4, v5, 3, v4
          v_and_b32 v5, 15, v0
          v_lshlrev_b32 v5, 5, v5
          v_lshrrev_b32 v6, 4, v0
          v_lshl_add_u32 v5, v6, 4, v5
          s_mul_i32 s52, s62, {F_STRIDE}
          s_lshl_b32 s53, s61, 9
          s_add_u32 s52, s52, s53
          s_add_u32 s52, s52, {hex(WS_F)}
          v_mov_b32 v20, {f32(GC2)}
          v_mov_b32 v21, {f32(GC1)}
          v_bfe_u32 v6, v0, 2, 2
          v_lshlrev_b32 v6, 3, v6
          v_mov_b32 v7, 0
          s_waitcnt vmcnt(0)""")
    c("B5: partials of h.Wg, h.Wu, column sums of Wg / Wu, sum(h^2), sum(h)")
    a(f"""s_barrier
          ds_read_b64 v[16:17], v6 offset:{L_G + 65 * 40}
          ds_read_b64 v[18:19], v6 offset:{L_G + 64 * 40}
          ds_read_b32 v22, v7 offset:{L_G + 65 * 40}
          ds_read_b64 v[8:9], v4 offset:{L_G}
          ds_read_b64 v[10:11], v4 offset:{L_G + 640}
          ds_read_b64 v[12:13], v4 offset:{L_G + 1280}
          ds_read_b64 v[14:15], v4 offset:{L_G + 1920}
          s_waitcnt lgkmcnt(4)""")
    stamp(7)
    if P["robust"]:
        c("moments about the mean of wave 0's 64 values, so that a large common offset cancels before the sums")
        a(f"""v_mul_f32 v23, {f32(-1 / 64)}, v16
              v_mul_f32 v28, {f32(-1 / 64)}, v17
              v_fmac_f32 v18, v23, v16
              v_fmac_f32 v19, v28, v17
              v_sub_f32 v16, v16, v22
              v_sub_f32 v17, v17, v22
              v_mul_f32 v23, {f32(1 / 64)}, v16
              v_mul_f32 v28, {f32(1 / 64)}, v17
              v_fmac_f32 v18, v23, v16
              v_fmac_f32 v19, v28, v17""")
    a(f"""v_add_f32 v16, v16, v17
          v_add_f32 v18, v18, v19
          s_waitcnt lgkmcnt(0)
          v_add_f32 v8, v8, v9
          v_add_f32 v10, v10, v11
          v_add_f32 v12, v12, v13
          v_add_f32 v14, v14, v15""")
    for mode in ("row_ror:4", "row_ror:8"):
        for r in (16, 18, 8, 10, 12, 14): a(f"v_add_f32_dpp v{r}, v{r}, v{r} {mode} {DPPF}")
    c("gate = (h.W - mean * colsum(W)) / sqrt(var + eps), likewise up")
    a(f"""v_mul_f32 v16, {f32(1 / 512)}, v16
          v_mul_f32 v18, {f32(1 / 512)}, v18
          v_fma_f32 v18, -v16, v16, v18""")
    if P["robust"]: a(f"v_fmac_f32 v16, {f32(1 / 64)}, v22")
    a(f"""v_max_f32 v18, 0, v18
          v_cvt_pk_bf16_f32 v17, v16, v18""")
    unpack(16, 18, 17)
    a(f"""v_add_f32 v18, {EPS}, v18
          v_fma_f32 v8, -v16, v12, v8
          v_cvt_pk_bf16_f32 v18, v18, v18
          v_fma_f32 v10, -v16, v14, v10
          v_and_b32 v18, 0xffff0000, v18
          v_sqrt_f32 v18, v18""")
    rbf(18)
    a(f"""v_rcp_f32 v18, v18
          v_mul_f32 v8, v8, v18
          v_mul_f32 v10, v10, v18
          v_cvt_pk_bf16_f32 v12, v8, v10""")
    unpack(8, 10, 12)
    c("tanh GELU written as g / (1 + exp(-2 sqrt(2/pi) (g + 0.044715 g^3)))")
    a(f"""v_mul_f32 v9, v8, v8
          v_fma_f32 v9, v9, v20, v21
          v_mul_f32 v9, v9, v8
          v_exp_f32 v9, v9
          v_add_f32 v9, 1.0, v9
          v_rcp_f32 v9, v9
          v_mul_f32 v9, v9, v8""")
    rbf(9)
    a(f"""v_mul_f32 v9, v9, v10
          v_cvt_pk_bf16_f32 v4, v9, v9""")
    for t in range(4):
        A = 28 + 4 * (t & 1)
        for r in range(4):
            a(f"v_and_b32_dpp v{A + r}, v4, v{36 + r} row_newbcast:{t} {DPPF}")
        a(f"v_mfma_f32_16x16x32_bf16 v[24:27], v[{A}:{A + 3}], v[{KB + 4 * t}:{KB + 4 * t + 3}], {'0' if t == 0 else 'v[24:27]'}")
    setexec(0xffffffff)
    put_tags(24, 3)
    a("buffer_store_dwordx4 v[24:27], v5, s[36:39], s52 offen sc1")
    stamp(8)
    a("s_branch L_exit")

    sec("H waves: LN(x), query projection, early exchanges")
    a("L_H:")
    ws_srd()
    a("s_cmp_eq_u32 s3, 1\ns_cbranch_scc0 L_H_notok")
    c("H1 announces the XCC id of this workgroup with a plain store")
    perm_sel()
    a(f"""s_getreg_b32 s67, hwreg(HW_REG_XCC_ID, 0, 4)
          s_lshl_b32 s67, s67, 8
          s_lshl_b32 s66, s28, 12
          s_add_u32 s66, s66, {hex(WS_X)}
          s_lshl_b32 s52, s29, 7
          s_add_u32 s52, s52, s66
          v_mov_b32 v104, s67
          v_mov_b32 v105, s67
          v_mov_b32 v106, s67
          v_mov_b32 v107, s67
          v_mov_b32 v108, 0
          s_waitcnt lgkmcnt(0)
          s_add_u32 s53, s44, {hex(TAG_STEP)}
          v_mov_b32 v109, s53""")
    put_tags(104, 109)
    a("""s_mov_b64 exec, 1
         buffer_store_dwordx4 v[104:107], v108, s[36:39], s52 offen
         s_mov_b64 exec, -1
         s_mov_b32 s64, 1
         s_branch L_H_tok
         L_H_notok:
         s_mov_b32 s64, 0
         L_H_tok:""")
    sel_masks(88, 13, 14, 15)
    a("""s_cmp_eq_u32 s64, 1
         s_cbranch_scc1 L_H_w1
         s_waitcnt vmcnt(4)
         s_branch L_H_w2
         L_H_w1:
         s_waitcnt vmcnt(5)
         L_H_w2:""")
    c("layer norm of x with the reference's bf16 roundings")
    for k in range(4): unpack(80 + 2 * k, 81 + 2 * k, 8 + k)
    a("""v_add_f32 v8, v80, v81
         v_add_f32 v9, v82, v83
         v_add_f32 v10, v84, v85
         v_add_f32 v11, v86, v87
         v_add_f32 v8, v8, v9
         v_add_f32 v10, v10, v11
         v_add_f32 v8, v8, v10""")
    row_allreduce("v_add_f32", [8]); cross_rows("v_add_f32", [8], [9])
    a(f"v_mul_f32 v8, {f32(1 / 512)}, v8")
    for k in range(8): a(f"v_sub_f32 v{80 + k}, v{80 + k}, v8")
    a("v_mul_f32 v9, v80, v80")
    for k in range(1, 8): a(f"v_fmac_f32 v9, v{80 + k}, v{80 + k}")
    row_allreduce("v_add_f32", [9]); cross_rows("v_add_f32", [9], [10])
    a(f"""v_mul_f32 v9, {f32(1 / 512)}, v9
          v_cvt_pk_bf16_f32 v10, v8, v9""")
    unpack(8, 9, 10)
    a(f"v_add_f32 v9, {EPS}, v9")
    rbf(9)
    a(f"""v_sqrt_f32 v9, v9
          v_lshlrev_b32 v12, 16, v12
          v_sub_f32 v12, v12, v8""")
    rbf(9); rbf(12)
    a(f"""v_rcp_f32 v10, v9
          v_mul_f32 v11, v12, v10
          v_fma_f32 v13, -v11, v9, v12
          v_fma_f32 v11, v13, v10, v11
          v_cvt_pk_bf16_f32 v12, v11, v11
          s_cmp_eq_u32 s64, 1
          s_cbranch_scc1 L_H_w3
          s_waitcnt vmcnt(0)
          s_branch L_H_w4
          L_H_w3:
          s_waitcnt vmcnt(1)
          L_H_w4:""")
    stamp(2)
    for t in range(4):
        A = 96 + 4 * (t & 1)
        for r in range(4):
            a(f"v_and_b32_dpp v{A + r}, v12, v{88 + r} row_newbcast:{t} {DPPF}")
        a(f"v_mfma_f32_16x16x32_bf16 v[92:95], v[{A}:{A + 3}], v[{16 + 4 * t}:{19 + 4 * t}], {'0' if t == 0 else 'v[92:95]'}")
    a("s_waitcnt lgkmcnt(0)")
    tag_setup()
    c("H1..H3 hand their partial q to H0 through LDS")
    a(f"""s_cmp_eq_u32 s3, 0
          s_cbranch_scc1 L_H0
          s_lshl_b32 s52, s61, 9
          v_add_u32 v5, s52, v2
          s_lshl_b32 s52, s61, 2
          v_mov_b32 v6, s52
          v_mov_b32 v7, s44""")
    setexec(0xffffffff)
    a(f"""ds_write_b128 v5, v[92:95] offset:{L_HQ - 512}
          s_waitcnt lgkmcnt(0)
          s_mov_b64 exec, 1
          ds_write_b32 v6, v7 offset:{L_HF}
          s_mov_b64 exec, -1
          s_branch L_H123
          L_H0:
          v_lshlrev_b32 v4, 6, v4
          v_lshl_add_u32 v4, v3, 5, v4
          s_lshl_b32 s53, s30, 13
          s_add_u32 s53, s53, {hex(WS_Q)}
          s_lshl_b32 s58, s31, 10
          s_add_u32 s58, s58, s53
          v_mov_b32 v5, 0
          s_mov_b32 s60, 0
          L_H0_join:
          ds_read_b128 v[8:11], v5 offset:{L_HF}
          s_waitcnt lgkmcnt(0)
          v_xor_b32 v9, s44, v9
          v_bitop3_b32 v9, v9, v10, s44 bitop3:0xf6
          v_bitop3_b32 v9, v9, v11, s44 bitop3:0xf6
          v_cmp_ne_u32 vcc, 0, v9
          s_cbranch_vccz L_H0_joined
          s_add_u32 s60, s60, 1
          s_cmp_lt_u32 s60, {POLL_CAP}
          s_cbranch_scc1 L_H0_join
          L_H0_joined:""")
    for k in range(3): a(f"ds_read_b128 v[{16 + 4 * k}:{19 + 4 * k}], v2 offset:{L_HQ + 512 * k}")
    a(f"""v_mov_b32 v9, s44
          v_mov_b32 v11, s44
          v_mov_b32 v13, s44
          v_mov_b32 v15, s44
          s_waitcnt lgkmcnt(0)""")
    for r in range(4): a(f"v_add_f32 v{92 + r}, v{92 + r}, v{16 + r}\nv_add_f32 v{20 + r}, v{20 + r}, v{24 + r}")
    for r in range(4): a(f"v_add_f32 v{8 + 2 * r}, v{92 + r}, v{20 + r}")
    c("publish the partial q as {fp32, tag} pairs with plain stores; repeated write-through if the group is not on one XCD")
    setexec(0xffffffff)
    a(f"""buffer_store_dwordx4 v[8:11], v4, s[36:39], s58 offen
          buffer_store_dwordx4 v[12:15], v4, s[36:39], s58 offen offset:16
          s_mov_b64 exec, -1
          s_mov_b32 s65, 0""")
    def republish():
        l = a.label("L_rep")
        a(f"""s_cmp_eq_u32 s65, 1
              s_cbranch_scc1 {l}
              ds_read_b64 v[6:7], v5 offset:{L_MODE}
              s_waitcnt lgkmcnt(0)
              v_readfirstlane_b32 s64, v7
              v_readfirstlane_b32 s59, v6
              s_cmp_eq_u32 s64, s44
              s_cbranch_scc0 {l}
              s_mov_b32 s65, 1
              s_cmp_eq_u32 s59, s44
              s_cbranch_scc1 {l}""")
        setexec(0xffffffff)
        a(f"""buffer_store_dwordx4 v[8:11], v4, s[36:39], s58 offen sc1
              buffer_store_dwordx4 v[12:15], v4, s[36:39], s58 offen offset:16 sc1
              s_mov_b64 exec, -1
              {l}:""")
    stamp(3)
    a(f"""s_add_u32 s52, s53, 4096
          s_mov_b32 s60, 0""")
    c("back-off before the first poll: a failed pass costs the stream eight load slots")
    if P["q_sleep"]: a(f"s_sleep {P['q_sleep']}")
    a("L_H0_poll:")
    for p in range(8):
        a(f"buffer_load_dwordx4 v[{16 + 4 * p}:{19 + 4 * p}], v2, s[36:39], {'s53' if p < 4 else 's52'} offen offset:{(p & 3) * 1024} sc1")
    for p in range(8):
        a(f"s_waitcnt vmcnt({7 - p})")
        if p == 0: a(f"v_xor_b32 v62, s44, v17")
        else: a(f"v_bitop3_b32 v62, v62, v{17 + 4 * p}, s44 bitop3:0xf6")
        a(f"v_bitop3_b32 v62, v62, v{19 + 4 * p}, s44 bitop3:0xf6")
    a(f"""v_cmp_ne_u32 vcc, 0, v62
          s_cbranch_vccz L_H0_got""")
    republish()
    a(f"""s_add_u32 s60, s60, 1
          s_cmp_lt_u32 s60, {POLL_CAP}
          s_sleep 4
          s_cbranch_scc1 L_H0_poll
          L_H0_got:""")
    note(5, "s60")
    for p in range(1, 8):
        a(f"v_add_f32 v16, v16, v{16 + 4 * p}\nv_add_f32 v18, v18, v{18 + 4 * p}")
    a(f"""v_cvt_pk_bf16_f32 v16, v16, v18
          v_lshlrev_b32 v3, 2, v0
          v_mov_b32 v6, s44
          ds_write_b32 v3, v16 offset:{L_Q}
          s_waitcnt lgkmcnt(0)
          s_mov_b64 exec, 1
          ds_write_b32 v5, v6 offset:{L_FLAG}
          s_mov_b64 exec, -1
          s_waitcnt lgkmcnt(0)""")
    stamp(4)
    lds_wait("L_H0_mode", L_MFLAG, 5, 6, 4)
    republish()
    a("s_branch L_T")

    a("""L_H123:
         s_cmp_eq_u32 s3, 1
         s_cbranch_scc0 L_T""")
    c("H1: plain stores are allowed only if all 32 members are seen with this workgroup's own XCC id")
    a("""v_and_b32 v3, 31, v0
         v_lshlrev_b32 v3, 7, v3""")
    if P["x_sleep"]: a(f"s_sleep {P['x_sleep']}")
    poll("L_H1_poll", [("buffer_load_dwordx4 v[4:7], v3, s[36:39], s66 offen sc1", 4)], cap=12, sleep=8)
    a(f"""s_cmp_lt_u32 s60, 12
          s_cselect_b32 s67, s67, -1
          v_cmp_ne_u32 vcc, s67, v4
          s_cmp_eq_u64 vcc, 0
          s_cselect_b32 s52, s44, 0""")
    if P["force_safe"]: a("s_mov_b32 s52, 0")
    a(f"""v_mov_b32 v4, s52
          v_mov_b32 v5, s44
          v_mov_b32 v9, 0
          s_mov_b64 exec, 1
          ds_write_b64 v9, v[4:5] offset:{L_MODE}
          s_mov_b64 exec, -1
          s_waitcnt lgkmcnt(0)""")
    stamp(3)

    sec("T waves (H and K): tail roles")
    a("L_T:\ns_setprio 0")
    ffn_role(); bitmasks()
    a(f"""v_lshrrev_b32 v3, 4, v0
          v_lshrrev_b32 v4, 3, v0
          v_and_b32 v5, 7, v0
          v_bfe_u32 v7, v0, 2, 2
          v_lshl_add_u32 v7, v7, 2, v3
          v_lshlrev_b32 v7, 6, v7
          v_and_b32 v8, 3, v0
          v_lshl_add_u32 v7, v8, 3, v7
          s_lshl_b32 s61, s3, 12
          s_add_u32 s61, s61, {L_W}
          v_add_u32 v7, s61, v7
          v_lshrrev_b32 v9, 2, v0
          s_cmp_lt_u32 s29, 16
          s_cbranch_scc1 L_T_wo
          s_cmp_eq_u32 s63, 1
          s_cbranch_scc1 L_T_ffn
          s_sub_u32 s52, s29, {16 + NFO}
          s_cmp_lt_u32 s52, 8
          s_cselect_b32 s53, 1, 0
          s_bitcmp1_b32 s28, 0
          s_cselect_b32 s53, s53, 0
          s_cmp_lt_u32 s3, 2
          s_cselect_b32 s53, s53, 0
          s_cmp_eq_u32 s53, 1
          s_cbranch_scc1 L_T_fin""")
    def b12(at_b1=None, pf=False):
        a("s_barrier"); stamp(6)
        if at_b1: at_b1()
        a("s_barrier"); stamp(7)
        if pf: prefetch_ffn()
    b12(pf=True)
    a("s_branch L_exit")

    sec("output projection: two heads x 64 columns, 32 rows per wave")
    a(f"""L_T_wo:
          v_lshlrev_b32 v10, 10, v4
          v_lshl_add_u32 v10, v5, 4, v10
          s_lshl_b32 s52, s28, 1
          s_lshr_b32 s53, s29, 3
          s_add_u32 s52, s52, s53
          s_lshl_b32 s58, s52, 3
          s_add_u32 s58, s58, s3
          s_lshl_b32 s64, s58, 15
          s_lshl_b32 s53, s31, 7
          s_add_u32 s64, s64, s53
          v_bfe_u32 v7, v0, 2, 2
          v_lshl_add_u32 v7, v7, 2, v3
          v_lshlrev_b32 v7, 7, v7
          v_lshl_add_u32 v7, v8, 3, v7
          v_add_u32 v7, s61, v7
          v_mul_u32_u24 v11, {O_STRIDE}, v4
          v_lshl_add_u32 v12, v5, 4, v11
          s_lshr_b32 s58, s58, 2
          s_mul_i32 s58, s58, {8 * O_STRIDE}
          s_add_u32 s58, s58, {hex(WS_O)}
          s_and_b32 s53, s3, 3
          s_lshl_b32 s53, s53, 7
          s_add_u32 s59, s53, s58
          v_lshlrev_b32 v13, 2, v0
          s_mul_i32 s53, s3, 272
          v_add_u32 v13, s53, v13""")
    def wo_dma():
        c("wo tile into LDS, queued behind the V stream")
        srd(40, "s12", "s13", "0x400000")
        for t in range(4):
            a(f"""s_add_u32 m0, s61, {t * 1024}
                  s_add_u32 s53, s64, {t * 8192}
                  buffer_load_dwordx4 v10, s[40:43], s53 offen lds""")
    b12(at_b1=wo_dma)
    def tr_wo(n):
        a(f"s_waitcnt vmcnt({n})")
        for nt in range(4):
            for hf in range(2):
                r = 16 + 4 * nt + 2 * hf
                a(f"ds_read_b64_tr_b16 v[{r}:{r + 1}], v7 offset:{nt * 32 + hf * 2048}")
        stamp(11)
    poll("L_wo_poll", [("buffer_load_dwordx4 v[32:35], v11, s[36:39], s58 offen offset:512 sc1", 32),
                       ("buffer_load_dwordx4 v[36:39], v12, s[36:39], s59 offen sc1", 36)], first=tr_wo)
    stamp(8)
    note(10, "s60")
    c("softmax combine over the eight key splits (true max), o rounded to bf16")
    a(f"v_max_f32_dpp v34, v32, v32 row_ror:8 {DPPF}")
    cross_rows("v_max_f32", [34], [35])
    a(f"""v_sub_f32 v32, v32, v34
          v_mul_f32 v32, {LOG2E}, v32
          v_exp_f32 v32, v32
          v_mul_f32 v33, v32, v33""")
    for r in range(4): a(f"v_mul_f32 v{36 + r}, v32, v{36 + r}")
    a(f"""v_add_f32_dpp v33, v33, v33 row_ror:8 {DPPF}
          v_add_f32_dpp v44, v36, v36 row_ror:8 row_mask:0xf bank_mask:0x3
          v_add_f32_dpp v45, v37, v37 row_ror:8 row_mask:0xf bank_mask:0x3
          v_mov_b32 v34, v33
          v_add_f32_dpp v44, v38, v38 row_ror:8 row_mask:0xf bank_mask:0xc
          v_add_f32_dpp v45, v39, v39 row_ror:8 row_mask:0xf bank_mask:0xc
          v_permlane16_swap_b32 v34, v33
          v_permlane16_swap_b32 v44, v45
          v_add_f32 v33, v33, v34
          v_add_f32 v44, v44, v45
          v_mov_b32 v34, v33
          v_mov_b32 v45, v44
          v_permlane32_swap_b32 v34, v33
          v_permlane32_swap_b32 v45, v44
          v_add_f32 v33, v33, v34
          v_add_f32 v44, v44, v45
          v_rcp_f32 v33, v33
          v_mul_f32 v44, v44, v33
          v_mov_b32_dpp v45, v44 quad_perm:[1,0,3,2] {DPPF}
          v_cvt_pk_bf16_f32 v45, v44, v45""")
    for r in range(4): a(f"v_mov_b32_dpp v{48 + r}, v45 row_newbcast:{2 * r} row_mask:0x3 bank_mask:0xf")
    for r in range(4): a(f"v_mov_b32_dpp v{48 + r}, v45 row_newbcast:{8 + 2 * r} row_mask:0xc bank_mask:0xf")
    a("s_waitcnt lgkmcnt(0)")
    D = [56, 64, 68, 72]
    for nt in range(4):
        a(f"v_mfma_f32_16x16x32_bf16 v[{D[nt]}:{D[nt] + 3}], v[48:51], v[{16 + 4 * nt}:{19 + 4 * nt}], 0")
    a(f"""s_mov_b32 s54, 0xffff0000
          s_mov_b32 s55, 0xffff0000
          s_mov_b32 s56, 0
          s_mov_b32 s57, -1
          v_cndmask_b32 v56, v56, v64, s[54:55]
          v_cndmask_b32 v68, v68, v72, s[54:55]
          v_cndmask_b32 v56, v56, v68, s[56:57]
          ds_write_b32 v13, v56 offset:{L_A}
          s_waitcnt lgkmcnt(0)
          s_barrier
          s_branch L_exit""")

    sec("FFN gate / up: 16 + 16 columns, 64 rows per wave")
    a(f"""L_T_ffn:
          s_lshl_b32 s52, s3, 6
          v_add_u32 v10, s52, v9
          v_mul_u32_u24 v10, 2752, v10
          v_and_b32 v14, 1, v0
          v_lshl_add_u32 v10, v14, 4, v10
          s_lshl_b32 s52, s62, 5
          v_add_u32 v10, s52, v10
          v_mov_b32 v72, s16
          v_mov_b32 v73, s17
          v_mov_b32 v14, s18
          v_mov_b32 v15, s19
          v_cndmask_b32 v72, v72, v14, s[54:55]
          v_cndmask_b32 v73, v73, v15, s[54:55]
          v_add_co_u32 v72, vcc, v72, v10
          v_addc_co_u32 v73, vcc, 0, v73, vcc
          v_and_b32 v14, 15, v0
          v_lshl_add_u32 v14, v14, 2, v3
          v_lshlrev_b32 v14, 1, v14
          s_lshl_b32 s52, s3, 7
          v_add_u32 v14, s52, v14""")
    srd(40, "s4", "s5", "1024")
    a(f"""buffer_load_ushort v68, v14, s[40:43], 0 offen
          v_lshlrev_b32 v70, 4, v5
          v_mul_u32_u24 v10, {A_STRIDE}, v4
          v_add_u32 v70, v70, v10
          s_lshl_b32 s52, s3, 8
          v_add_u32 v70, s52, v70
          v_mul_u32_u24 v71, 40, v0
          s_lshl_b32 s52, s3, 2
          v_add_u32 v71, s52, v71
          v_bfe_u32 v74, v0, 3, 1
          v_mul_u32_u24 v74, 40, v74
          v_add_u32 v74, s52, v74""")
    c("rows 8..15 of the A operand hold ones: they deliver the column sums and sum(h)")
    for r in range(8): a(f"v_mov_b32 v{48 + r}, 0x3f803f80")
    b12(pf=True)
    c("the narrow gate / up slices are staged once this workgroup's share of the prefetch has landed")
    a(f"""s_cmp_eq_u32 s3, 3
          s_cbranch_scc0 L_ffn_go
          s_waitcnt vmcnt(0)
          L_ffn_go:
          s_barrier""")
    stamp(8)
    for t in range(4):
        a(f"s_add_u32 m0, s61, {t * 1024}\nglobal_load_lds_dwordx4 v[72:73], off")
        if t < 3: a("v_add_co_u32 v72, vcc, 44032, v72\nv_addc_co_u32 v73, vcc, 0, v73, vcc")
    a(f"s_mov_b32 s58, {hex(WS_A)}\ns_mov_b32 s59, {hex(WS_A + 8 * A_STRIDE)}")
    def tr_ffn(n):
        a(f"s_waitcnt vmcnt({n})")
        for s_ in range(2):
            for nt in range(2):
                for hf in range(2):
                    r = 16 + 8 * s_ + 4 * nt + 2 * hf
                    a(f"ds_read_b64_tr_b16 v[{r}:{r + 1}], v7 offset:{s_ * 2048 + nt * 32 + hf * 1024}")
        stamp(9)
    poll("L_ffn_poll", [("buffer_load_dwordx4 v[36:39], v70, s[36:39], s58 offen sc1", 36),
                        ("buffer_load_dwordx4 v[40:43], v70, s[36:39], s58 offen offset:128 sc1", 40),
                        ("buffer_load_dwordx4 v[80:83], v70, s[36:39], s59 offen sc1", 80),
                        ("buffer_load_dwordx4 v[84:87], v70, s[36:39], s59 offen offset:128 sc1", 84)], first=tr_ffn)
    c("h = bf16(x + bf16(sum of the 16 partials)), one column per lane")
    a("v_lshlrev_b32 v68, 16, v68")
    for r in range(4): a(f"v_pk_add_f32 v[{36 + 2 * r}:{37 + 2 * r}], v[{36 + 2 * r}:{37 + 2 * r}], v[{80 + 2 * r}:{81 + 2 * r}]")
    stamp(10)
    note(1, "s60")
    for u in range(4): a(f"v_add_f32_dpp v{44 + u}, v{36 + u}, v{36 + u} row_ror:8 row_mask:0xf bank_mask:0x3")
    for u in range(4): a(f"v_add_f32_dpp v{44 + u}, v{40 + u}, v{40 + u} row_ror:8 row_mask:0xf bank_mask:0xc")
    a("""v_permlane16_swap_b32 v44, v45
         v_permlane16_swap_b32 v46, v47
         v_add_f32 v44, v44, v45
         v_add_f32 v46, v46, v47
         v_permlane32_swap_b32 v44, v46
         v_add_f32 v44, v44, v46""")
    rbf(44)
    a(f"""v_add_f32 v44, v44, v68
          v_mov_b32_dpp v45, v44 quad_perm:[1,0,3,2] {DPPF}
          v_cvt_pk_bf16_f32 v45, v44, v45""")
    for s_ in range(2):
        for r in range(4): a(f"v_mov_b32_dpp v{48 + 4 * s_ + r}, v45 row_newbcast:{8 * s_ + 2 * r} row_mask:0xf bank_mask:0x3")
    a(f"""s_waitcnt lgkmcnt(0)
          v_mfma_f32_16x16x32_bf16 v[56:59], v[48:51], v[16:19], 0
          v_mfma_f32_16x16x32_bf16 v[64:67], v[48:51], v[20:23], 0
          v_mfma_f32_16x16x32_bf16 v[76:79], v[48:51], v[48:51], 0
          v_mfma_f32_16x16x32_bf16 v[56:59], v[52:55], v[24:27], v[56:59]
          v_mfma_f32_16x16x32_bf16 v[64:67], v[52:55], v[28:31], v[64:67]
          v_mfma_f32_16x16x32_bf16 v[76:79], v[52:55], v[52:55], v[76:79]
          s_mov_b32 s54, 0xffff0000
          s_mov_b32 s55, 0xffff0000
          v_cndmask_b32 v56, v56, v64, s[54:55]
          ds_write_b32 v71, v56 offset:{L_G}""")
    setexec(0x101)
    a(f"""ds_write_b32 v74, v76 offset:{L_G + 64 * 40}
          s_waitcnt lgkmcnt(0)
          s_barrier
          s_branch L_exit""")

    sec("final reduction: 8 output columns per wave")
    a(f"""L_T_fin:
          s_lshr_b32 s53, s28, 1
          s_lshl_b32 s53, s53, 3
          s_add_u32 s52, s52, s53
          s_lshl_b32 s52, s52, 1
          s_add_u32 s64, s52, s3
          v_and_b32 v4, 1, v0
          v_lshlrev_b32 v5, 3, v4
          s_lshl_b32 s52, s64, 4
          v_add_u32 v5, s52, v5""")
    srd(40, "s4", "s5", "1024")
    a(f"""buffer_load_dwordx2 v[8:9], v5, s[40:43], 0 offen
          v_lshlrev_b32 v6, 1, v5
          v_bfe_u32 v7, v0, 1, 3
          v_mul_u32_u24 v7, {A_STRIDE}, v7
          v_add_u32 v10, v7, v6
          v_lshrrev_b32 v7, 1, v0
          v_mul_u32_u24 v7, {F_STRIDE}, v7
          v_add_u32 v11, v7, v6
          v_lshl_add_u32 v5, v3, 1, v5
          v_mov_b32 v44, 0
          v_mov_b32 v45, 0
          v_mov_b32 v46, 0
          v_mov_b32 v47, 0""")
    b12()
    a(f"s_mov_b32 s58, {hex(WS_A)}\ns_mov_b32 s59, {hex(WS_A + 8 * A_STRIDE)}\ns_waitcnt vmcnt(0)")
    unpack(16, 17, 8); unpack(18, 19, 9)
    srd(40, "s22", "s23", "1024")
    poll("L_fin_poll1", [("buffer_load_dwordx4 v[20:23], v10, s[36:39], s58 offen sc1", 20),
                         ("buffer_load_dwordx4 v[24:27], v10, s[36:39], s59 offen sc1", 24)], sleep=2)
    for r in range(4): a(f"v_add_f32 v{20 + r}, v{20 + r}, v{24 + r}")
    stamp(8)
    def fin_dpp(rs):
        for mode in ("quad_perm:[2,3,0,1]", "row_ror:4", "row_ror:8"):
            for r in rs: a(f"v_add_f32_dpp v{r}, v{r}, v{r} {mode} {DPPF}")
    fin_dpp([20, 21, 22, 23])
    a("v_cvt_pk_bf16_f32 v24, v20, v21\nv_cvt_pk_bf16_f32 v25, v22, v23")
    unpack(20, 21, 24); unpack(22, 23, 25)
    for r in range(4): a(f"v_add_f32 v{20 + r}, v{20 + r}, v{16 + r}")
    a(f"""v_cmp_eq_u32 vcc, 1, v3
          v_cndmask_b32 v20, v20, v21, vcc
          v_cmp_eq_u32 vcc, 2, v3
          v_cndmask_b32 v20, v20, v22, vcc
          v_cmp_eq_u32 vcc, 3, v3
          v_cndmask_b32 v20, v20, v23, vcc""")
    rbf(20)
    a(f"""s_mov_b32 s58, {hex(WS_F)}
          s_mov_b32 s59, {hex(WS_F + 32 * F_STRIDE)}
          s_mov_b32 s53, {hex(WS_F + 64 * F_STRIDE)}
          v_mov_b32 v63, 0
          s_mov_b32 s60, 0
          s_mov_b32 s54, -1
          s_mov_b32 s55, 0xfff""")
    c("back-off for the length of the FFN stage: a poll that races the producers' stores slows both down")
    if P["fin_sleep"]: a(f"s_sleep {P['fin_sleep']}")
    a(f"""L_fin_poll2:
          buffer_load_dwordx4 v[36:39], v11, s[36:39], s58 offen sc1
          buffer_load_dwordx4 v[40:43], v11, s[36:39], s59 offen sc1
          s_mov_b64 s[56:57], exec
          s_and_b64 exec, exec, s[54:55]
          s_cbranch_scc0 L_fin_no3
          buffer_load_dwordx4 v[44:47], v11, s[36:39], s53 offen sc1
          L_fin_no3:
          s_waitcnt vmcnt(0)
          s_mov_b64 exec, s[56:57]""")
    chk_tags(62, 36, True); chk_tags(62, 40, False)
    a("s_and_b64 exec, exec, s[54:55]")
    chk_tags(62, 44, False)
    a(f"""s_mov_b64 exec, s[56:57]
          v_cmp_ne_u32_sdwa vcc, v62, v63 src0_sel:BYTE_0 src1_sel:DWORD
          s_and_b64 exec, vcc, vcc
          s_cbranch_scc0 L_fin_got2
          s_add_u32 s60, s60, 1
          s_cmp_lt_u32 s60, {POLL_CAP}
          s_cbranch_scc1 L_fin_poll2
          L_fin_got2:
          s_mov_b64 exec, -1""")
    stamp(9)
    for r in range(4): a(f"v_add_f32 v{36 + r}, v{36 + r}, v{40 + r}")
    for r in range(4): a(f"v_add_f32 v{36 + r}, v{36 + r}, v{44 + r}")
    fin_dpp([36, 37, 38, 39])
    a(f"""v_permlane16_swap_b32 v36, v37
          v_permlane16_swap_b32 v38, v39
          v_add_f32 v36, v36, v37
          v_add_f32 v38, v38, v39
          v_permlane32_swap_b32 v36, v38
          v_add_f32 v36, v36, v38""")
    rbf(36)
    a(f"""v_add_f32 v36, v36, v20
          v_cvt_pk_bf16_f32 v36, v36, v36""")
    setexec(0x0003000300030003)
    a(f"""buffer_store_short v36, v5, s[40:43], 0 offen
          s_cmp_lg_u32 s64, 0
          s_cbranch_scc1 L_fin_done""")
    c("every wave of the grid has read d_ws[0] by now: leave this launch's tag there")
    a(f"""s_mov_b64 exec, 1
          v_mov_b32 v4, s44
          v_mov_b32 v6, 0
          buffer_store_dword v4, v6, s[36:39], 0 offen
          L_fin_done:""")
    if P["pad_to"]:
        a(f"""s_mov_b32 s60, 0
              L_pad:
              s_memrealtime s[66:67]
              s_waitcnt lgkmcnt(0)
              s_sub_u32 s66, s66, s98
              s_add_u32 s60, s60, 1
              s_cmp_gt_u32 s60, 100000
              s_cbranch_scc1 L_padd
              s_cmp_lt_u32 s66, {P['pad_to']}
              s_cbranch_scc1 L_pad
              L_padd:""")
    stamp(10, True)

    a("L_exit:")
    if P["stamps"]:
        a(f"""s_mov_b64 exec, 1
              s_mul_i32 s52, s2, 12
              s_add_u32 s52, s52, s3
              s_lshl_b32 s52, s52, 6
              s_add_u32 s52, s52, {hex(WS_STAMP)}
              v_mov_b32 v3, 0
              s_waitcnt lgkmcnt(0)""")
        for q in range(3):
            for k in range(4): a(f"v_mov_b32 v{4 + 4 * q + k}, s{70 + 2 * (4 * q + k)}")
            a(f"buffer_store_dwordx4 v[{4 + 4 * q}:{7 + 4 * q}], v3, s[36:39], s52 offen offset:{16 * q}")
    a("L_end:\ns_endpgm")

    if P["jitter"]:
        src, a.lines = a.lines, []
        for l in src:
            t = l.strip()
            if t.startswith(("s_barrier", "buffer_store", "ds_write")) or t in ("L_H:", "L_V:", "L_T:"):
                if t.endswith(":"): a(t); jit(); continue
                jit(); a(t)
                if t.startswith("s_barrier"): jit()
            else: a.lines.append(l)
    lines, nops = fix_hazards(a.lines)
    hdr = HEADER + f"""; @launch grid=(256,1,1) block=(768,1,1) lds={P['lds']}
.amdgcn_target "amdgcn-amd-amdhsa--gfx950"
.text
.globl {NAME}
.p2align 8
.type {NAME},@function
{NAME}:
"""
    ftr = f"""
    .fill 32, 4, 0xbf800000
.section .rodata,"a"
.p2align 6
.amdhsa_kernel {NAME}
  .amdhsa_next_free_vgpr 168
  .amdhsa_next_free_sgpr {100 if P['jitter'] or P['pad_to'] else (96 if P['stamps'] else 72)}
  .amdhsa_accum_offset 168
  .amdhsa_group_segment_fixed_size 0
  .amdhsa_kernarg_size 96
  .amdhsa_user_sgpr_count 2
  .amdhsa_user_sgpr_kernarg_segment_ptr 1
  .amdhsa_system_sgpr_workgroup_id_x 1
  .amdhsa_float_denorm_mode_32 3
.end_amdhsa_kernel
"""
    return hdr + "\n".join(lines) + ftr, nops

if __name__ == "__main__":
    out = sys.argv[1]
    kw = {}
    for x in sys.argv[2:]:
        k, v = x.split("="); kw[k] = int(v)
    s, n = build(**kw)
    open(out, "w").write(s)
    print("wrote", out, "lines", s.count("\n"), "nop states inserted", n)
```

```python
import sys, struct
from asmlib import Asm, fix_hazards

NAME = "sequential_preLN__mha_block_cached__geglu_ffn__decode_kernel"
def f32(x): return "0x%08x" % struct.unpack("<I", struct.pack("<f", x))[0]

WS_X, WS_Q, WS_O, WS_A, WS_F, WS_STAMP, WS_SIZE = 0x1000, 0x10000, 0x50000, 0x90000, 0xA0000, 0x100000, 0x200000
O_STRIDE, A_STRIDE, F_STRIDE = 640, 2176, 2176
L_Q, L_FLAG, L_MODE, L_MFLAG, L_ST, L_P, L_R, L_A, L_G, L_HF, L_HQ, L_W, LDS_SIZE = \
    0, 256, 264, 268, 288, 512, 2560, 4736, 4736, 6272, 6400, 8192, 40960
R_STRIDE = 528
TAG_STEP = 0x9E3779B1
SCALE = f32(128 ** -0.5)
LOG2E = f32(1.4426950408889634)
EPS = f32(1e-5)
GC1 = -2.0 * 0.7978845608028654 * 1.4426950408889634
GC2 = GC1 * 0.044715
DPPF = "row_mask:0xf bank_mask:0xf"
POLL_CAP = 1000000
NFE, NFO = 16, 6
KB = 40

FL = ["", " nt", " sc0 nt"]
DEF = dict(stamps=0, jitter=0, force_safe=0, q_sleep=25, x_sleep=16, fin_sleep=44, lds=LDS_SIZE, pad_to=0, robust=1, kvf=1, wqf=1)

HEADER = """\
;
"""

def build(**kw):
    P = dict(DEF); P.update(kw)
    a = Asm()
    def c(text): a.lines.append("    ; " + text)
    def sec(text): a.lines.append(""); a.lines.append("; ---- " + text)

    def stamp(n, key=False):
        if P["stamps"] == 1 or (P["stamps"] == 2 and key): a(f"s_memrealtime s[{70 + 2 * n}:{71 + 2 * n}]")
    def note(n, sreg):
        if P["stamps"] == 1: a(f"s_mov_b32 s{70 + 2 * n}, {sreg}")
    def jit():
        l = a.label("L_jit")
        a(f"""s_mul_i32 s96, s96, 1664525
              s_add_u32 s96, s96, 1013904223
              s_lshr_b32 s97, s96, 30
              s_cmp_lg_u32 s97, 0
              s_cbranch_scc1 {l}d
              s_lshr_b32 s97, s96, 20
              s_and_b32 s97, s97, 255
              {l}:
              s_sleep 1
              s_sub_u32 s97, s97, 1
              s_cmp_gt_i32 s97, 0
              s_cbranch_scc1 {l}
              {l}d:""")
    def srd(d, lo, hi, size):
        a(f"s_mov_b32 s{d}, {lo}\ns_and_b32 s{d + 1}, {hi}, 0xffff\ns_mov_b32 s{d + 2}, {size}\ns_mov_b32 s{d + 3}, 0x20000")
    def ws_srd(): srd(36, "s26", "s27", hex(WS_SIZE))
    def tag_setup():
        c("s44 = tag of this launch; s68, s45, s46, s47 = its four bytes")
        a(f"""s_add_u32 s44, s44, {hex(TAG_STEP)}
              s_and_b32 s68, s44, 0xff
              s_bfe_u32 s45, s44, 0x80008
              s_bfe_u32 s46, s44, 0x80010
              s_lshr_b32 s47, s44, 24""")
    def perm_sel():
        for k in range(4): a(f"s_mov_b32 s{48 + k}, {hex(0x07060500 + k)}")
    def put_tags(r, vtag):
        for k in range(4): a(f"v_perm_b32 v{r + k}, v{r + k}, v{vtag}, s{48 + k}")
    def chk_tags(acc, r, first):
        for k in range(4): a(f"v_xor_b32 v{r + k}, s{(68, 45, 46, 47)[k]}, v{r + k}")
        if first: a(f"v_or_b32 v{acc}, v{r}, v{r + 1}")
        else: a(f"v_or3_b32 v{acc}, v{acc}, v{r}, v{r + 1}")
        a(f"v_or3_b32 v{acc}, v{acc}, v{r + 2}, v{r + 3}")
    def setexec(mask):
        if mask == -1: a("s_mov_b64 exec, -1")
        elif mask < 64: a(f"s_mov_b64 exec, {mask}")
        else: a(f"s_mov_b32 exec_lo, {hex(mask & 0xffffffff)}\ns_mov_b32 exec_hi, {hex(mask >> 32)}")
    def poll(name, loads, cap=POLL_CAP, sleep=0, first=None):
        c("bounded poll: lanes whose granules carry the tag stop reloading")
        a("s_mov_b32 s60, 0\nv_mov_b32 v63, 0")
        if first:
            for txt, _ in loads: a(txt)
            first(len(loads))
            a(f"s_branch {name}_chk")
        a(f"{name}:")
        for txt, _ in loads: a(txt)
        if first: a(f"{name}_chk:")
        for k, (_, r) in enumerate(loads):
            a(f"s_waitcnt vmcnt({len(loads) - 1 - k})"); chk_tags(62, r, k == 0)
        a(f"""v_cmp_ne_u32_sdwa vcc, v62, v63 src0_sel:BYTE_0 src1_sel:DWORD
              s_and_b64 exec, vcc, vcc
              s_cbranch_scc0 {name}_ok
              s_add_u32 s60, s60, 1
              s_cmp_lt_u32 s60, {cap}""")
        if sleep: a(f"s_sleep {sleep}")
        a(f"s_cbranch_scc1 {name}\n{name}_ok:\ns_mov_b64 exec, -1")
    def lds_wait(name, off, vz, vt, sleep):
        a(f"""s_mov_b32 s60, 0
              {name}:
              ds_read_b32 v{vt}, v{vz} offset:{off}
              s_waitcnt lgkmcnt(0)
              v_readfirstlane_b32 s52, v{vt}
              s_cmp_eq_u32 s52, s44
              s_cbranch_scc1 {name}_ok
              s_sleep {sleep}
              s_add_u32 s60, s60, 1
              s_cmp_lt_u32 s60, {POLL_CAP}
              s_cbranch_scc1 {name}
              {name}_ok:""")
    def row_allreduce(op, rs):
        for mode in ("quad_perm:[1,0,3,2]", "quad_perm:[2,3,0,1]", "row_half_mirror", "row_mirror"):
            for r in rs: a(f"{op}_dpp v{r}, v{r}, v{r} {mode} {DPPF}")
    def cross_rows(op, rs, tmps):
        for sw in ("v_permlane16_swap_b32", "v_permlane32_swap_b32"):
            for r, t in zip(rs, tmps): a(f"v_mov_b32 v{t}, v{r}")
            for r, t in zip(rs, tmps): a(f"{sw} v{t}, v{r}")
            for r, t in zip(rs, tmps): a(f"{op} v{r}, v{r}, v{t}")
    def sel_masks(m, t0, t1, t2):
        c("selector masks: A row m keeps element m of its k slab (rows 8..15 stay zero)")
        a(f"""v_bfe_u32 v{t0}, v0, 1, 3
              v_and_b32 v{t1}, 1, v0
              v_lshlrev_b32 v{t1}, 4, v{t1}
              v_mov_b32 v{t2}, 0xffff
              v_lshlrev_b32 v{t1}, v{t1}, v{t2}""")
        for r in range(4):
            a(f"v_cmp_eq_u32 vcc, {r}, v{t0}\nv_cndmask_b32 v{m + r}, 0, v{t1}, vcc")
    def unpack(lo, hi, src):
        a(f"v_and_b32 v{hi}, 0xffff0000, v{src}\nv_lshlrev_b32 v{lo}, 16, v{src}")
    def rbf(r): a(f"v_cvt_pk_bf16_f32 v{r}, v{r}, v{r}\nv_and_b32 v{r}, 0xffff0000, v{r}")
    def bitmasks():
        a("""s_mov_b32 s54, 0xcccccccc
             s_mov_b32 s55, 0xcccccccc
             s_mov_b32 s56, 0xaaaaaaaa
             s_mov_b32 s57, 0xaaaaaaaa""")
    def ffn_role():
        c("s62 = FFN slice, s63 = 1 for FFN workgroups, s67 = first slice of the group, s69 = slices of the group")
        a(f"""s_lshr_b32 s52, s28, 1
              s_mul_i32 s67, s52, {NFE}
              s_mul_i32 s53, s52, {NFO}
              s_add_u32 s53, s53, {4 * NFE}
              s_bitcmp1_b32 s28, 0
              s_cselect_b32 s67, s53, s67
              s_cselect_b32 s69, {NFO}, {NFE}
              s_sub_u32 s52, s29, 16
              s_add_u32 s62, s67, s52
              s_cmp_lt_u32 s52, s69
              s_cselect_b32 s53, 1, 0
              s_cmp_lt_u32 s62, 86
              s_cselect_b32 s63, s53, 0""")
    def stream():
        c("tile t = 16 keys; the four waves of a role interleave at 1 KB")
        for t in range(32):
            if t: a("s_add_u32 s52, s52, 4096")
            a(f"buffer_load_dwordx4 v[{KB + 4 * t}:{KB + 4 * t + 3}], v2, s[32:35], s52 offen{FL[P['kvf']]}")
    def prefetch_ffn():
        c("wave 3: 32 rows of the gate / up column window of this group into L2 (whole lines, one dword each)")
        l = a.label("L_pf")
        a(f"""s_cmp_eq_u32 s3, 3
              s_cbranch_scc0 {l}
              v_and_b32 v100, 7, v0
              v_lshlrev_b32 v100, 7, v100
              s_lshl_b32 s52, s69, 5
              s_sub_u32 s52, s52, 4
              v_min_u32 v100, s52, v100
              v_lshrrev_b32 v102, 3, v0
              v_mul_u32_u24 v102, 2752, v102
              v_add_u32 v100, v100, v102
              s_sub_u32 s52, s29, 16
              s_mul_i32 s52, s52, {32 * 2752}
              s_lshl_b32 s53, s67, 5
              s_add_u32 s53, s53, s52""")
        for lo, hi in (("s16", "s17"), ("s18", "s19")):
            srd(40, lo, hi, str(512 * 2752))
            for u in range(4):
                a(f"s_add_u32 s52, s53, {u * 8 * 2752}\nbuffer_load_dword v101, v100, s[40:43], s52 offen")
        a(f"{l}:")

    a(f"""s_cmp_ge_u32 s2, 256
          s_cbranch_scc1 L_end
          s_load_dwordx16 s[4:19], s[0:1], 0""")
    if P["stamps"]:
        a("s_memrealtime s[70:71]")
        for n in range(1, 12): a(f"s_mov_b64 s[{70 + 2 * n}:{71 + 2 * n}], 0")
    if P["pad_to"]: a("s_memrealtime s[98:99]")
    if P["jitter"]:
        a("""s_memtime s[96:97]
             s_waitcnt lgkmcnt(0)
             v_readfirstlane_b32 s97, v0
             s_mul_i32 s97, s97, 0x1b873593
             s_mul_i32 s98, s2, 0x85ebca6b
             s_add_u32 s96, s96, s97
             s_add_u32 s96, s96, s98
             s_mul_i32 s96, s96, 0x9e3779b1""")
    c("s3 = wave, s28 = group, s29 = idx, s30 = head, s31 = key split, s61 = wave & 3, v0 = lane")
    a(f"""v_lshrrev_b32 v1, 6, v0
          v_and_b32 v0, 63, v0
          s_and_b32 s28, s2, 7
          v_readfirstlane_b32 s3, v1
          s_lshr_b32 s29, s2, 3
          s_lshr_b32 s30, s29, 3
          s_lshl_b32 s52, s28, 2
          s_add_u32 s30, s30, s52
          s_and_b32 s31, s29, 7
          v_lshlrev_b32 v2, 4, v0
          s_and_b32 s61, s3, 3
          s_mov_b32 s35, 0x20000
          s_cmp_lt_u32 s3, 4
          s_cbranch_scc0 L_KV""")
    c("H waves: x (whole and one element per lane) and 16 rows x 128 columns of wq")
    a(f"""s_load_dwordx8 s[20:27], s[0:1], 64
          s_setprio 3
          v_lshrrev_b32 v3, 4, v0
          v_and_b32 v4, 15, v0
          v_and_b32 v5, 3, v0
          v_lshl_add_u32 v5, v5, 2, v3
          s_lshl_b32 s52, s31, 2
          s_add_u32 s52, s52, s61
          s_lshl_b32 s53, s52, 4
          v_add_u32 v5, s53, v5
          v_lshlrev_b32 v5, 1, v5
          v_lshlrev_b32 v6, 13, v3
          v_lshl_add_u32 v6, v4, 4, v6
          s_lshl_b32 s52, s52, 17
          s_lshl_b32 s53, s30, 8
          s_add_u32 s52, s52, s53
          s_mov_b32 s34, 0x400000
          s_mov_b32 s42, 1024
          s_mov_b32 s43, 0x20000
          s_waitcnt lgkmcnt(0)
          s_load_dword s44, s[26:27], 0
          s_mov_b32 s40, s4
          s_and_b32 s41, s5, 0xffff
          s_mov_b32 s32, s10
          s_and_b32 s33, s11, 0xffff
          buffer_load_dwordx4 v[8:11], v2, s[40:43], 0 offen
          buffer_load_ushort v12, v5, s[40:43], 0 offen""")
    for t in range(4):
        a(f"buffer_load_dwordx4 v[{16 + 4 * t}:{19 + 4 * t}], v6, s[32:35], s52 offen{FL[P['wqf']]}")
        if t < 3: a("s_add_u32 s52, s52, 0x8000")
    stamp(1)
    a(f"""s_branch L_H
          L_KV:
          s_lshl_b32 s54, s30, 20
          s_lshl_b32 s53, s31, 17
          s_add_u32 s54, s54, s53
          s_lshl_b32 s52, s61, 10
          s_mov_b32 s34, 0x20000
          s_cmp_lt_u32 s3, 8
          s_cbranch_scc0 L_V""")

    sec("K waves: scores and local softmax")
    a("""s_setprio 2
         s_waitcnt lgkmcnt(0)
         s_add_u32 s32, s6, s54
         s_addc_u32 s33, s7, 0
         s_and_b32 s33, s33, 0xffff""")
    stamp(1)
    stream()
    a("s_load_dwordx8 s[20:27], s[0:1], 64\ns_waitcnt lgkmcnt(0)\ns_load_dword s44, s[26:27], 0")
    stamp(2)
    ws_srd(); bitmasks()
    a(f"""v_and_b32 v8, 15, v0
          v_lshlrev_b32 v8, 4, v8
          v_mov_b32 v9, 0
          s_waitcnt lgkmcnt(0)""")
    tag_setup()
    c("wait for q (bf16, in LDS)")
    lds_wait("L_K_wait", L_FLAG, 9, 3, 1)
    a(f"""ds_read_b128 v[4:7], v8 offset:{L_Q}
          s_waitcnt lgkmcnt(0)""")
    stamp(3)
    for b in range(2):
        R = lambda t, k=0: KB + 4 * (16 * b + t) + k
        c(f"tiles {16 * b}..{16 * b + 15}: per-lane dot products, then a transposing sum over the 16 lanes of a key")
        for t in range(16):
            a(f"s_waitcnt vmcnt({31 - (16 * b + t)})")
            a(f"v_dot2_f32_bf16 v{R(t)}, v{R(t)}, v4, 0")
            for k in range(1, 4): a(f"v_dot2_f32_bf16 v{R(t)}, v{R(t, k)}, v{4 + k}, v{R(t)}")
        for u in range(8):
            a(f"v_add_f32_dpp v{R(u, 1)}, v{R(u)}, v{R(u)} row_ror:8 row_mask:0xf bank_mask:0x3")
        for u in range(8):
            a(f"v_add_f32_dpp v{R(u, 1)}, v{R(u + 8)}, v{R(u + 8)} row_ror:8 row_mask:0xf bank_mask:0xc")
        for u in range(4):
            a(f"v_add_f32_dpp v{R(u, 2)}, v{R(u, 1)}, v{R(u, 1)} row_shl:4 row_mask:0xf bank_mask:0x5")
        for u in range(4):
            a(f"v_add_f32_dpp v{R(u, 2)}, v{R(u + 4, 1)}, v{R(u + 4, 1)} row_shr:4 row_mask:0xf bank_mask:0xa")
        for u in range(4):
            a(f"v_add_f32_dpp v{R(u, 3)}, v{R(u, 2)}, v{R(u, 2)} quad_perm:[2,3,0,1] {DPPF}")
        for u in range(2):
            a(f"v_cndmask_b32 v{R(u + 4, 3)}, v{R(u, 3)}, v{R(u + 2, 3)}, s[54:55]")
        for u in range(2):
            a(f"v_add_f32_dpp v{R(u + 6, 3)}, v{R(u + 4, 3)}, v{R(u + 4, 3)} quad_perm:[1,0,3,2] {DPPF}")
        a(f"v_cndmask_b32 v{10 + b}, v{R(6, 3)}, v{R(7, 3)}, s[56:57]")
    stamp(4)
    c("scores rounded to bf16, scaled, rounded again (as the reference does); max, exp, sum of this wave's keys")
    a(f"v_cvt_pk_bf16_f32 v12, v10, v11")
    unpack(10, 11, 12)
    a(f"""v_mul_f32 v10, {SCALE}, v10
          v_mul_f32 v11, {SCALE}, v11
          v_cvt_pk_bf16_f32 v12, v10, v11""")
    unpack(10, 11, 12)
    a("v_max_f32 v13, v10, v11")
    row_allreduce("v_max_f32", [13]); cross_rows("v_max_f32", [13], [14])
    a(f"""v_sub_f32 v10, v10, v13
          v_sub_f32 v11, v11, v13
          v_mul_f32 v10, {LOG2E}, v10
          v_mul_f32 v11, {LOG2E}, v11
          v_exp_f32 v10, v10
          v_exp_f32 v11, v11
          s_lshl_b32 s53, s61, 9
          v_lshl_add_u32 v8, v0, 3, s53
          v_add_f32 v14, v10, v11
          v_cvt_pk_bf16_f32 v16, v10, v10
          v_cvt_pk_bf16_f32 v17, v11, v11
          ds_write_b64 v8, v[16:17] offset:{L_P}""")
    row_allreduce("v_add_f32", [14]); cross_rows("v_add_f32", [14], [15])
    a(f"""s_lshl_b32 s53, s61, 3
          v_mov_b32 v9, s53
          v_mov_b32 v18, v13
          v_mov_b32 v19, v14
          s_mov_b64 exec, 1
          ds_write_b64 v9, v[18:19] offset:{L_ST}
          s_mov_b64 exec, -1
          s_waitcnt lgkmcnt(0)""")
    stamp(5)
    a("s_branch L_T")

    sec("V waves: P.V, publication of the partial, later tail duties")
    a("""L_V:
         s_load_dwordx8 s[20:27], s[0:1], 64
         s_waitcnt lgkmcnt(0)
         s_load_dword s44, s[26:27], 0
         s_add_u32 s32, s8, s54
         s_addc_u32 s33, s9, 0
         s_and_b32 s33, s33, 0xffff""")
    ws_srd(); perm_sel()
    sel_masks(36, 3, 4, 5)
    ffn_role()
    a(f"""s_mov_b32 s40, s20
          s_and_b32 s41, s21, 0xffff
          s_mov_b32 s42, {hex(1376 * 1024)}
          s_mov_b32 s43, 0x20000
          s_lshl_b32 s64, s62, 14
          s_lshl_b32 s52, s61, 8
          s_add_u32 s64, s64, s52
          v_lshrrev_b32 v3, 4, v0
          v_and_b32 v4, 15, v0
          v_lshlrev_b32 v1, 10, v3
          v_lshl_add_u32 v1, v4, 4, v1
          v_lshlrev_b32 v5, 4, v3
          v_lshl_add_u32 v19, v4, 5, v5
          s_mul_i32 s59, s61, {R_STRIDE}
          v_add_u32 v19, s59, v19
          s_lshl_b32 s53, s61, 9
          v_lshl_add_u32 v6, v0, 3, s53
          s_lshl_b32 s53, s61, 3
          v_mov_b32 v7, s53
          v_mov_b32 v3, 0
          s_lshl_b32 s66, s28, 5
          s_add_u32 s66, s66, s29
          s_mul_i32 s66, s66, {O_STRIDE}
          s_add_u32 s66, s66, {hex(WS_O)}
          s_waitcnt lgkmcnt(0)""")
    tag_setup()
    a("s_lshl_b32 s52, s61, 10")
    stamp(1); stream(); stamp(2)
    c("B1: probabilities and wave statistics are in LDS")
    a("s_barrier")
    stamp(3)
    a(f"""s_setprio 3
          ds_read_b64 v[4:5], v6 offset:{L_P}
          ds_read_b128 v[8:11], v3 offset:{L_ST}
          ds_read_b128 v[12:15], v3 offset:{L_ST + 16}
          ds_read_b64 v[16:17], v7 offset:{L_ST}
          ds_read_b32 v18, v3 offset:{L_MODE}
          s_waitcnt lgkmcnt(0)
          v_readfirstlane_b32 s65, v18
          v_max3_f32 v8, v8, v10, v12
          v_max_f32 v8, v8, v14
          v_sub_f32 v18, v16, v8
          v_mul_f32 v18, {LOG2E}, v18
          v_exp_f32 v18, v18
          s_cmp_eq_u32 s61, 0
          s_cselect_b64 vcc, -1, 0
          v_cndmask_b32 v20, 0, v8, vcc
          v_mul_f32 v21, v18, v17
          v_mov_b32 v22, 0
          v_mov_b32 v23, 0
          v_mov_b32 v7, s59
          v_mov_b32 v3, s44
          s_mov_b64 exec, 1
          ds_write_b128 v7, v[20:23] offset:{L_R + 512}
          s_mov_b64 exec, -1""")
    c("one MFMA per 4 keys: A = probability on the diagonal, B = the V rows as loaded")
    for t in range(32):
        A = 28 + 4 * (t & 1)
        for r in range(4):
            a(f"v_and_b32_dpp v{A + r}, v{4 + (t >> 4)}, v{36 + r} row_newbcast:{t & 15} {DPPF}")
        a(f"s_waitcnt vmcnt({31 - t})")
        a(f"v_mfma_f32_16x16x32_bf16 v[24:27], v[{A}:{A + 3}], v[{KB + 4 * t}:{KB + 4 * t + 3}], {'0' if t == 0 else 'v[24:27]'}")
    stamp(4, True)
    for r in range(4): a(f"v_mul_f32 v{24 + r}, v18, v{24 + r}")
    setexec(0xffffffff)
    a(f"""ds_write_b128 v19, v[24:27] offset:{L_R}
          s_mov_b64 exec, -1
          s_waitcnt lgkmcnt(0)""")
    c("B2: the four wave partials are in LDS; V0 sums and publishes 128 values + (max, sum)")
    a("s_barrier")
    stamp(5)
    a(f"""s_cmp_lg_u32 s61, 0
          s_cbranch_scc1 L_V_nopub""")
    setexec((1 << 33) - 1)
    for k in range(4): a(f"ds_read_b128 v[{56 + 4 * k}:{59 + 4 * k}], v2 offset:{L_R + k * R_STRIDE}")
    a("s_waitcnt lgkmcnt(2)")
    for r in range(4): a(f"v_add_f32 v{56 + r}, v{56 + r}, v{60 + r}")
    a("s_waitcnt lgkmcnt(0)")
    for r in range(4): a(f"v_add_f32 v{64 + r}, v{64 + r}, v{68 + r}")
    for r in range(4): a(f"v_add_f32 v{56 + r}, v{56 + r}, v{64 + r}")
    put_tags(56, 3)
    a(f"""s_cmp_eq_u32 s65, s44
          s_cbranch_scc0 L_V_safe
          buffer_store_dwordx4 v[56:59], v2, s[36:39], s66 offen
          L_V_pubd:
          s_mov_b64 exec, -1""")
    stamp(6)
    if P["stamps"] == 1: a("s_cmp_eq_u32 s65, s44\ns_cselect_b32 s92, 1, 2")
    c("output-projection workgroups: V0 / V1 sum the eight wave partials of 32 columns each after B3")
    a(f"""L_V_nopub:
          s_cmp_lt_u32 s29, 16
          s_cbranch_scc0 L_V_nowo
          s_cmp_lt_u32 s61, 2
          s_cbranch_scc0 L_exit
          v_and_b32 v4, 7, v0
          v_lshrrev_b32 v5, 3, v0
          v_mul_u32_u24 v4, 272, v4
          v_lshl_add_u32 v4, v5, 4, v4
          s_lshl_b32 s53, s61, 7
          v_add_u32 v4, s53, v4
          v_lshlrev_b32 v5, 4, v5
          s_lshl_b32 s52, s28, 1
          s_lshr_b32 s54, s29, 3
          s_add_u32 s52, s52, s54
          s_mul_i32 s52, s52, {A_STRIDE}
          s_add_u32 s52, s52, s53
          s_lshl_b32 s53, s31, 8
          s_add_u32 s52, s52, s53
          s_add_u32 s52, s52, {hex(WS_A)}
          v_bfe_u32 v6, v0, 2, 1
          v_bfe_u32 v7, v0, 1, 1
          v_lshl_add_u32 v7, v6, 1, v7
          v_lshl_add_u32 v6, v7, 2, v5
          v_add_u32 v7, 0x07060500, v7
          s_mov_b32 s54, 0xcccccccc
          s_mov_b32 s55, 0xcccccccc
          s_barrier
          ds_read_b128 v[56:59], v4 offset:{L_A}
          s_waitcnt lgkmcnt(0)""")
    stamp(9)
    for u in range(2): a(f"v_add_f32_dpp v{60 + u}, v{56 + u}, v{56 + u} row_shl:4 row_mask:0xf bank_mask:0x5")
    for u in range(2): a(f"v_add_f32_dpp v{60 + u}, v{58 + u}, v{58 + u} row_shr:4 row_mask:0xf bank_mask:0xa")
    for u in range(2): a(f"v_add_f32_dpp v{60 + u}, v{60 + u}, v{60 + u} quad_perm:[2,3,0,1] {DPPF}")
    a(f"""v_cndmask_b32 v60, v60, v61, s[54:55]
          v_add_f32_dpp v60, v60, v60 quad_perm:[1,0,3,2] {DPPF}
          v_perm_b32 v60, v60, v3, v7""")
    setexec(0x5555555555555555)
    a("buffer_store_dword v60, v6, s[36:39], s52 offen sc1")
    stamp(10)
    a(f"""s_branch L_exit
          L_V_safe:
          buffer_store_dwordx4 v[56:59], v2, s[36:39], s66 offen sc1
          s_branch L_V_pubd
          L_V_nowo:
          s_cmp_eq_u32 s63, 1
          s_cbranch_scc0 L_exit""")
    c("FFN workgroups: 16 rows of w_down, 128 columns per wave")
    for u in range(4):
        a(f"s_add_u32 s52, s64, {u * 4096}")
        a(f"buffer_load_dwordx4 v[{KB + 4 * u}:{KB + 4 * u + 3}], v1, s[40:43], s52 offen")
    a(f"""s_barrier
          v_lshrrev_b32 v4, 4, v0
          v_and_b32 v5, 3, v0
          v_lshl_add_u32 v4, v5, 2, v4
          v_mul_u32_u24 v4, 40, v4
          v_bfe_u32 v5, v0, 2, 2
          v_lshl_add_u32 v4, v5, 3, v4
          v_and_b32 v5, 15, v0
          v_lshlrev_b32 v5, 5, v5
          v_lshrrev_b32 v6, 4, v0
          v_lshl_add_u32 v5, v6, 4, v5
          s_mul_i32 s52, s62, {F_STRIDE}
          s_lshl_b32 s53, s61, 9
          s_add_u32 s52, s52, s53
          s_add_u32 s52, s52, {hex(WS_F)}
          v_mov_b32 v20, {f32(GC2)}
          v_mov_b32 v21, {f32(GC1)}
          v_bfe_u32 v6, v0, 2, 2
          v_lshlrev_b32 v6, 3, v6
          v_mov_b32 v7, 0
          s_waitcnt vmcnt(0)""")
    c("B5: partials of h.Wg, h.Wu, column sums of Wg / Wu, sum(h^2), sum(h)")
    a(f"""s_barrier
          ds_read_b64 v[16:17], v6 offset:{L_G + 65 * 40}
          ds_read_b64 v[18:19], v6 offset:{L_G + 64 * 40}
          ds_read_b32 v22, v7 offset:{L_G + 65 * 40}
          ds_read_b64 v[8:9], v4 offset:{L_G}
          ds_read_b64 v[10:11], v4 offset:{L_G + 640}
          ds_read_b64 v[12:13], v4 offset:{L_G + 1280}
          ds_read_b64 v[14:15], v4 offset:{L_G + 1920}
          s_waitcnt lgkmcnt(4)""")
    stamp(7)
    if P["robust"]:
        c("moments about the mean of wave 0's 64 values, so that a large common offset cancels before the sums")
        a(f"""v_mul_f32 v23, {f32(-1 / 64)}, v16
              v_mul_f32 v28, {f32(-1 / 64)}, v17
              v_fmac_f32 v18, v23, v16
              v_fmac_f32 v19, v28, v17
              v_sub_f32 v16, v16, v22
              v_sub_f32 v17, v17, v22
              v_mul_f32 v23, {f32(1 / 64)}, v16
              v_mul_f32 v28, {f32(1 / 64)}, v17
              v_fmac_f32 v18, v23, v16
              v_fmac_f32 v19, v28, v17""")
    a(f"""v_add_f32 v16, v16, v17
          v_add_f32 v18, v18, v19
          s_waitcnt lgkmcnt(0)
          v_add_f32 v8, v8, v9
          v_add_f32 v10, v10, v11
          v_add_f32 v12, v12, v13
          v_add_f32 v14, v14, v15""")
    for mode in ("row_ror:4", "row_ror:8"):
        for r in (16, 18, 8, 10, 12, 14): a(f"v_add_f32_dpp v{r}, v{r}, v{r} {mode} {DPPF}")
    c("gate = (h.W - mean * colsum(W)) / sqrt(var + eps), likewise up")
    a(f"""v_mul_f32 v16, {f32(1 / 512)}, v16
          v_mul_f32 v18, {f32(1 / 512)}, v18
          v_fma_f32 v18, -v16, v16, v18""")
    if P["robust"]: a(f"v_fmac_f32 v16, {f32(1 / 64)}, v22")
    a(f"""v_max_f32 v18, 0, v18
          v_cvt_pk_bf16_f32 v17, v16, v18""")
    unpack(16, 18, 17)
    a(f"""v_add_f32 v18, {EPS}, v18
          v_fma_f32 v8, -v16, v12, v8
          v_cvt_pk_bf16_f32 v18, v18, v18
          v_fma_f32 v10, -v16, v14, v10
          v_and_b32 v18, 0xffff0000, v18
          v_sqrt_f32 v18, v18""")
    rbf(18)
    a(f"""v_rcp_f32 v18, v18
          v_mul_f32 v8, v8, v18
          v_mul_f32 v10, v10, v18
          v_cvt_pk_bf16_f32 v12, v8, v10""")
    unpack(8, 10, 12)
    c("tanh GELU written as g / (1 + exp(-2 sqrt(2/pi) (g + 0.044715 g^3)))")
    a(f"""v_mul_f32 v9, v8, v8
          v_fma_f32 v9, v9, v20, v21
          v_mul_f32 v9, v9, v8
          v_exp_f32 v9, v9
          v_add_f32 v9, 1.0, v9
          v_rcp_f32 v9, v9
          v_mul_f32 v9, v9, v8""")
    rbf(9)
    a(f"""v_mul_f32 v9, v9, v10
          v_cvt_pk_bf16_f32 v4, v9, v9""")
    for t in range(4):
        A = 28 + 4 * (t & 1)
        for r in range(4):
            a(f"v_and_b32_dpp v{A + r}, v4, v{36 + r} row_newbcast:{t} {DPPF}")
        a(f"v_mfma_f32_16x16x32_bf16 v[24:27], v[{A}:{A + 3}], v[{KB + 4 * t}:{KB + 4 * t + 3}], {'0' if t == 0 else 'v[24:27]'}")
    setexec(0xffffffff)
    put_tags(24, 3)
    a("buffer_store_dwordx4 v[24:27], v5, s[36:39], s52 offen sc1")
    stamp(8)
    a("s_branch L_exit")

    sec("H waves: LN(x), query projection, early exchanges")
    a("L_H:")
    ws_srd()
    a("s_cmp_eq_u32 s3, 1\ns_cbranch_scc0 L_H_notok")
    c("H1 announces the XCC id of this workgroup with a plain store")
    perm_sel()
    a(f"""s_getreg_b32 s67, hwreg(HW_REG_XCC_ID, 0, 4)
          s_lshl_b32 s67, s67, 8
          s_lshl_b32 s66, s28, 12
          s_add_u32 s66, s66, {hex(WS_X)}
          s_lshl_b32 s52, s29, 7
          s_add_u32 s52, s52, s66
          v_mov_b32 v104, s67
          v_mov_b32 v105, s67
          v_mov_b32 v106, s67
          v_mov_b32 v107, s67
          v_mov_b32 v108, 0
          s_waitcnt lgkmcnt(0)
          s_add_u32 s53, s44, {hex(TAG_STEP)}
          v_mov_b32 v109, s53""")
    put_tags(104, 109)
    a("""s_mov_b64 exec, 1
         buffer_store_dwordx4 v[104:107], v108, s[36:39], s52 offen
         s_mov_b64 exec, -1
         s_mov_b32 s64, 1
         s_branch L_H_tok
         L_H_notok:
         s_mov_b32 s64, 0
         L_H_tok:""")
    sel_masks(88, 13, 14, 15)
    a("""s_cmp_eq_u32 s64, 1
         s_cbranch_scc1 L_H_w1
         s_waitcnt vmcnt(4)
         s_branch L_H_w2
         L_H_w1:
         s_waitcnt vmcnt(5)
         L_H_w2:""")
    c("layer norm of x with the reference's bf16 roundings")
    for k in range(4): unpack(80 + 2 * k, 81 + 2 * k, 8 + k)
    a("""v_add_f32 v8, v80, v81
         v_add_f32 v9, v82, v83
         v_add_f32 v10, v84, v85
         v_add_f32 v11, v86, v87
         v_add_f32 v8, v8, v9
         v_add_f32 v10, v10, v11
         v_add_f32 v8, v8, v10""")
    row_allreduce("v_add_f32", [8]); cross_rows("v_add_f32", [8], [9])
    a(f"v_mul_f32 v8, {f32(1 / 512)}, v8")
    for k in range(8): a(f"v_sub_f32 v{80 + k}, v{80 + k}, v8")
    a("v_mul_f32 v9, v80, v80")
    for k in range(1, 8): a(f"v_fmac_f32 v9, v{80 + k}, v{80 + k}")
    row_allreduce("v_add_f32", [9]); cross_rows("v_add_f32", [9], [10])
    a(f"""v_mul_f32 v9, {f32(1 / 512)}, v9
          v_cvt_pk_bf16_f32 v10, v8, v9""")
    unpack(8, 9, 10)
    a(f"v_add_f32 v9, {EPS}, v9")
    rbf(9)
    a(f"""v_sqrt_f32 v9, v9
          v_lshlrev_b32 v12, 16, v12
          v_sub_f32 v12, v12, v8""")
    rbf(9); rbf(12)
    a(f"""v_rcp_f32 v10, v9
          v_mul_f32 v11, v12, v10
          v_fma_f32 v13, -v11, v9, v12
          v_fma_f32 v11, v13, v10, v11
          v_cvt_pk_bf16_f32 v12, v11, v11
          s_cmp_eq_u32 s64, 1
          s_cbranch_scc1 L_H_w3
          s_waitcnt vmcnt(0)
          s_branch L_H_w4
          L_H_w3:
          s_waitcnt vmcnt(1)
          L_H_w4:""")
    stamp(2)
    for t in range(4):
        A = 96 + 4 * (t & 1)
        for r in range(4):
            a(f"v_and_b32_dpp v{A + r}, v12, v{88 + r} row_newbcast:{t} {DPPF}")
        a(f"v_mfma_f32_16x16x32_bf16 v[92:95], v[{A}:{A + 3}], v[{16 + 4 * t}:{19 + 4 * t}], {'0' if t == 0 else 'v[92:95]'}")
    a("s_waitcnt lgkmcnt(0)")
    tag_setup()
    c("H1..H3 hand their partial q to H0 through LDS")
    a(f"""s_cmp_eq_u32 s3, 0
          s_cbranch_scc1 L_H0
          s_lshl_b32 s52, s61, 9
          v_add_u32 v5, s52, v2
          s_lshl_b32 s52, s61, 2
          v_mov_b32 v6, s52
          v_mov_b32 v7, s44""")
    setexec(0xffffffff)
    a(f"""ds_write_b128 v5, v[92:95] offset:{L_HQ - 512}
          s_waitcnt lgkmcnt(0)
          s_mov_b64 exec, 1
          ds_write_b32 v6, v7 offset:{L_HF}
          s_mov_b64 exec, -1
          s_branch L_H123
          L_H0:
          v_lshlrev_b32 v4, 6, v4
          v_lshl_add_u32 v4, v3, 5, v4
          s_lshl_b32 s53, s30, 13
          s_add_u32 s53, s53, {hex(WS_Q)}
          s_lshl_b32 s58, s31, 10
          s_add_u32 s58, s58, s53
          v_mov_b32 v5, 0
          s_mov_b32 s60, 0
          L_H0_join:
          ds_read_b128 v[8:11], v5 offset:{L_HF}
          s_waitcnt lgkmcnt(0)
          v_xor_b32 v9, s44, v9
          v_bitop3_b32 v9, v9, v10, s44 bitop3:0xf6
          v_bitop3_b32 v9, v9, v11, s44 bitop3:0xf6
          v_cmp_ne_u32 vcc, 0, v9
          s_cbranch_vccz L_H0_joined
          s_add_u32 s60, s60, 1
          s_cmp_lt_u32 s60, {POLL_CAP}
          s_cbranch_scc1 L_H0_join
          L_H0_joined:""")
    for k in range(3): a(f"ds_read_b128 v[{16 + 4 * k}:{19 + 4 * k}], v2 offset:{L_HQ + 512 * k}")
    a(f"""v_mov_b32 v9, s44
          v_mov_b32 v11, s44
          v_mov_b32 v13, s44
          v_mov_b32 v15, s44
          s_waitcnt lgkmcnt(0)""")
    for r in range(4): a(f"v_add_f32 v{92 + r}, v{92 + r}, v{16 + r}\nv_add_f32 v{20 + r}, v{20 + r}, v{24 + r}")
    for r in range(4): a(f"v_add_f32 v{8 + 2 * r}, v{92 + r}, v{20 + r}")
    c("publish the partial q as {fp32, tag} pairs with plain stores; repeated write-through if the group is not on one XCD")
    setexec(0xffffffff)
    a(f"""buffer_store_dwordx4 v[8:11], v4, s[36:39], s58 offen
          buffer_store_dwordx4 v[12:15], v4, s[36:39], s58 offen offset:16
          s_mov_b64 exec, -1
          s_mov_b32 s65, 0""")
    def republish():
        l = a.label("L_rep")
        a(f"""s_cmp_eq_u32 s65, 1
              s_cbranch_scc1 {l}
              ds_read_b64 v[6:7], v5 offset:{L_MODE}
              s_waitcnt lgkmcnt(0)
              v_readfirstlane_b32 s64, v7
              v_readfirstlane_b32 s59, v6
              s_cmp_eq_u32 s64, s44
              s_cbranch_scc0 {l}
              s_mov_b32 s65, 1
              s_cmp_eq_u32 s59, s44
              s_cbranch_scc1 {l}""")
        setexec(0xffffffff)
        a(f"""buffer_store_dwordx4 v[8:11], v4, s[36:39], s58 offen sc1
              buffer_store_dwordx4 v[12:15], v4, s[36:39], s58 offen offset:16 sc1
              s_mov_b64 exec, -1
              {l}:""")
    stamp(3)
    a(f"""s_add_u32 s52, s53, 4096
          s_mov_b32 s60, 0""")
    c("back-off before the first poll: a failed pass costs the stream eight load slots")
    if P["q_sleep"]: a(f"s_sleep {P['q_sleep']}")
    a("L_H0_poll:")
    for p in range(8):
        a(f"buffer_load_dwordx4 v[{16 + 4 * p}:{19 + 4 * p}], v2, s[36:39], {'s53' if p < 4 else 's52'} offen offset:{(p & 3) * 1024} sc1")
    for p in range(8):
        a(f"s_waitcnt vmcnt({7 - p})")
        if p == 0: a(f"v_xor_b32 v62, s44, v17")
        else: a(f"v_bitop3_b32 v62, v62, v{17 + 4 * p}, s44 bitop3:0xf6")
        a(f"v_bitop3_b32 v62, v62, v{19 + 4 * p}, s44 bitop3:0xf6")
    a(f"""v_cmp_ne_u32 vcc, 0, v62
          s_cbranch_vccz L_H0_got""")
    republish()
    a(f"""s_add_u32 s60, s60, 1
          s_cmp_lt_u32 s60, {POLL_CAP}
          s_sleep 4
          s_cbranch_scc1 L_H0_poll
          L_H0_got:""")
    note(5, "s60")
    for p in range(1, 8):
        a(f"v_add_f32 v16, v16, v{16 + 4 * p}\nv_add_f32 v18, v18, v{18 + 4 * p}")
    a(f"""v_cvt_pk_bf16_f32 v16, v16, v18
          v_lshlrev_b32 v3, 2, v0
          v_mov_b32 v6, s44
          ds_write_b32 v3, v16 offset:{L_Q}
          s_waitcnt lgkmcnt(0)
          s_mov_b64 exec, 1
          ds_write_b32 v5, v6 offset:{L_FLAG}
          s_mov_b64 exec, -1
          s_waitcnt lgkmcnt(0)""")
    stamp(4)
    lds_wait("L_H0_mode", L_MFLAG, 5, 6, 4)
    republish()
    a("s_branch L_T")

    a("""L_H123:
         s_cmp_eq_u32 s3, 1
         s_cbranch_scc0 L_T""")
    c("H1: plain stores are allowed only if all 32 members are seen with this workgroup's own XCC id")
    a("""v_and_b32 v3, 31, v0
         v_lshlrev_b32 v3, 7, v3""")
    if P["x_sleep"]: a(f"s_sleep {P['x_sleep']}")
    poll("L_H1_poll", [("buffer_load_dwordx4 v[4:7], v3, s[36:39], s66 offen sc1", 4)], cap=12, sleep=8)
    a(f"""s_cmp_lt_u32 s60, 12
          s_cselect_b32 s67, s67, -1
          v_cmp_ne_u32 vcc, s67, v4
          s_cmp_eq_u64 vcc, 0
          s_cselect_b32 s52, s44, 0""")
    if P["force_safe"]: a("s_mov_b32 s52, 0")
    a(f"""v_mov_b32 v4, s52
          v_mov_b32 v5, s44
          v_mov_b32 v9, 0
          s_mov_b64 exec, 1
          ds_write_b64 v9, v[4:5] offset:{L_MODE}
          s_mov_b64 exec, -1
          s_waitcnt lgkmcnt(0)""")
    stamp(3)

    sec("T waves (H and K): tail roles")
    a("L_T:\ns_setprio 0")
    ffn_role(); bitmasks()
    a(f"""v_lshrrev_b32 v3, 4, v0
          v_lshrrev_b32 v4, 3, v0
          v_and_b32 v5, 7, v0
          v_bfe_u32 v7, v0, 2, 2
          v_lshl_add_u32 v7, v7, 2, v3
          v_lshlrev_b32 v7, 6, v7
          v_and_b32 v8, 3, v0
          v_lshl_add_u32 v7, v8, 3, v7
          s_lshl_b32 s61, s3, 12
          s_add_u32 s61, s61, {L_W}
          v_add_u32 v7, s61, v7
          v_lshrrev_b32 v9, 2, v0
          s_cmp_lt_u32 s29, 16
          s_cbranch_scc1 L_T_wo
          s_cmp_eq_u32 s63, 1
          s_cbranch_scc1 L_T_ffn
          s_sub_u32 s52, s29, {16 + NFO}
          s_cmp_lt_u32 s52, 8
          s_cselect_b32 s53, 1, 0
          s_bitcmp1_b32 s28, 0
          s_cselect_b32 s53, s53, 0
          s_cmp_lt_u32 s3, 2
          s_cselect_b32 s53, s53, 0
          s_cmp_eq_u32 s53, 1
          s_cbranch_scc1 L_T_fin""")
    def b12(at_b1=None, pf=False):
        a("s_barrier"); stamp(6)
        if at_b1: at_b1()
        a("s_barrier"); stamp(7)
        if pf: prefetch_ffn()
    b12(pf=True)
    a("s_branch L_exit")

    sec("output projection: two heads x 64 columns, 32 rows per wave")
    a(f"""L_T_wo:
          v_lshlrev_b32 v10, 10, v4
          v_lshl_add_u32 v10, v5, 4, v10
          s_lshl_b32 s52, s28, 1
          s_lshr_b32 s53, s29, 3
          s_add_u32 s52, s52, s53
          s_lshl_b32 s58, s52, 3
          s_add_u32 s58, s58, s3
          s_lshl_b32 s64, s58, 15
          s_lshl_b32 s53, s31, 7
          s_add_u32 s64, s64, s53
          v_bfe_u32 v7, v0, 2, 2
          v_lshl_add_u32 v7, v7, 2, v3
          v_lshlrev_b32 v7, 7, v7
          v_lshl_add_u32 v7, v8, 3, v7
          v_add_u32 v7, s61, v7
          v_mul_u32_u24 v11, {O_STRIDE}, v4
          v_lshl_add_u32 v12, v5, 4, v11
          s_lshr_b32 s58, s58, 2
          s_mul_i32 s58, s58, {8 * O_STRIDE}
          s_add_u32 s58, s58, {hex(WS_O)}
          s_and_b32 s53, s3, 3
          s_lshl_b32 s53, s53, 7
          s_add_u32 s59, s53, s58
          v_lshlrev_b32 v13, 2, v0
          s_mul_i32 s53, s3, 272
          v_add_u32 v13, s53, v13""")
    def wo_dma():
        c("wo tile into LDS, queued behind the V stream")
        srd(40, "s12", "s13", "0x400000")
        for t in range(4):
            a(f"""s_add_u32 m0, s61, {t * 1024}
                  s_add_u32 s53, s64, {t * 8192}
                  buffer_load_dwordx4 v10, s[40:43], s53 offen lds""")
    b12(at_b1=wo_dma)
    def tr_wo(n):
        a(f"s_waitcnt vmcnt({n})")
        for nt in range(4):
            for hf in range(2):
                r = 16 + 4 * nt + 2 * hf
                a(f"ds_read_b64_tr_b16 v[{r}:{r + 1}], v7 offset:{nt * 32 + hf * 2048}")
        stamp(11)
    poll("L_wo_poll", [("buffer_load_dwordx4 v[32:35], v11, s[36:39], s58 offen offset:512 sc1", 32),
                       ("buffer_load_dwordx4 v[36:39], v12, s[36:39], s59 offen sc1", 36)], first=tr_wo)
    stamp(8)
    note(10, "s60")
    c("softmax combine over the eight key splits (true max), o rounded to bf16")
    a(f"v_max_f32_dpp v34, v32, v32 row_ror:8 {DPPF}")
    cross_rows("v_max_f32", [34], [35])
    a(f"""v_sub_f32 v32, v32, v34
          v_mul_f32 v32, {LOG2E}, v32
          v_exp_f32 v32, v32
          v_mul_f32 v33, v32, v33""")
    for r in range(4): a(f"v_mul_f32 v{36 + r}, v32, v{36 + r}")
    a(f"""v_add_f32_dpp v33, v33, v33 row_ror:8 {DPPF}
          v_add_f32_dpp v44, v36, v36 row_ror:8 row_mask:0xf bank_mask:0x3
          v_add_f32_dpp v45, v37, v37 row_ror:8 row_mask:0xf bank_mask:0x3
          v_mov_b32 v34, v33
          v_add_f32_dpp v44, v38, v38 row_ror:8 row_mask:0xf bank_mask:0xc
          v_add_f32_dpp v45, v39, v39 row_ror:8 row_mask:0xf bank_mask:0xc
          v_permlane16_swap_b32 v34, v33
          v_permlane16_swap_b32 v44, v45
          v_add_f32 v33, v33, v34
          v_add_f32 v44, v44, v45
          v_mov_b32 v34, v33
          v_mov_b32 v45, v44
          v_permlane32_swap_b32 v34, v33
          v_permlane32_swap_b32 v45, v44
          v_add_f32 v33, v33, v34
          v_add_f32 v44, v44, v45
          v_rcp_f32 v33, v33
          v_mul_f32 v44, v44, v33
          v_mov_b32_dpp v45, v44 quad_perm:[1,0,3,2] {DPPF}
          v_cvt_pk_bf16_f32 v45, v44, v45""")
    for r in range(4): a(f"v_mov_b32_dpp v{48 + r}, v45 row_newbcast:{2 * r} row_mask:0x3 bank_mask:0xf")
    for r in range(4): a(f"v_mov_b32_dpp v{48 + r}, v45 row_newbcast:{8 + 2 * r} row_mask:0xc bank_mask:0xf")
    a("s_waitcnt lgkmcnt(0)")
    D = [56, 64, 68, 72]
    for nt in range(4):
        a(f"v_mfma_f32_16x16x32_bf16 v[{D[nt]}:{D[nt] + 3}], v[48:51], v[{16 + 4 * nt}:{19 + 4 * nt}], 0")
    a(f"""s_mov_b32 s54, 0xffff0000
          s_mov_b32 s55, 0xffff0000
          s_mov_b32 s56, 0
          s_mov_b32 s57, -1
          v_cndmask_b32 v56, v56, v64, s[54:55]
          v_cndmask_b32 v68, v68, v72, s[54:55]
          v_cndmask_b32 v56, v56, v68, s[56:57]
          ds_write_b32 v13, v56 offset:{L_A}
          s_waitcnt lgkmcnt(0)
          s_barrier
          s_branch L_exit""")

    sec("FFN gate / up: 16 + 16 columns, 64 rows per wave")
    a(f"""L_T_ffn:
          s_lshl_b32 s52, s3, 6
          v_add_u32 v10, s52, v9
          v_mul_u32_u24 v10, 2752, v10
          v_and_b32 v14, 1, v0
          v_lshl_add_u32 v10, v14, 4, v10
          s_lshl_b32 s52, s62, 5
          v_add_u32 v10, s52, v10
          v_mov_b32 v72, s16
          v_mov_b32 v73, s17
          v_mov_b32 v14, s18
          v_mov_b32 v15, s19
          v_cndmask_b32 v72, v72, v14, s[54:55]
          v_cndmask_b32 v73, v73, v15, s[54:55]
          v_add_co_u32 v72, vcc, v72, v10
          v_addc_co_u32 v73, vcc, 0, v73, vcc
          v_and_b32 v14, 15, v0
          v_lshl_add_u32 v14, v14, 2, v3
          v_lshlrev_b32 v14, 1, v14
          s_lshl_b32 s52, s3, 7
          v_add_u32 v14, s52, v14""")
    srd(40, "s4", "s5", "1024")
    a(f"""buffer_load_ushort v68, v14, s[40:43], 0 offen
          v_lshlrev_b32 v70, 4, v5
          v_mul_u32_u24 v10, {A_STRIDE}, v4
          v_add_u32 v70, v70, v10
          s_lshl_b32 s52, s3, 8
          v_add_u32 v70, s52, v70
          v_mul_u32_u24 v71, 40, v0
          s_lshl_b32 s52, s3, 2
          v_add_u32 v71, s52, v71
          v_bfe_u32 v74, v0, 3, 1
          v_mul_u32_u24 v74, 40, v74
          v_add_u32 v74, s52, v74""")
    c("rows 8..15 of the A operand hold ones: they deliver the column sums and sum(h)")
    for r in range(8): a(f"v_mov_b32 v{48 + r}, 0x3f803f80")
    b12(pf=True)
    c("the narrow gate / up slices are staged once this workgroup's share of the prefetch has landed")
    a(f"""s_cmp_eq_u32 s3, 3
          s_cbranch_scc0 L_ffn_go
          s_waitcnt vmcnt(0)
          L_ffn_go:
          s_barrier""")
    stamp(8)
    for t in range(4):
        a(f"s_add_u32 m0, s61, {t * 1024}\nglobal_load_lds_dwordx4 v[72:73], off")
        if t < 3: a("v_add_co_u32 v72, vcc, 44032, v72\nv_addc_co_u32 v73, vcc, 0, v73, vcc")
    a(f"s_mov_b32 s58, {hex(WS_A)}\ns_mov_b32 s59, {hex(WS_A + 8 * A_STRIDE)}")
    def tr_ffn(n):
        a(f"s_waitcnt vmcnt({n})")
        for s_ in range(2):
            for nt in range(2):
                for hf in range(2):
                    r = 16 + 8 * s_ + 4 * nt + 2 * hf
                    a(f"ds_read_b64_tr_b16 v[{r}:{r + 1}], v7 offset:{s_ * 2048 + nt * 32 + hf * 1024}")
        stamp(9)
    poll("L_ffn_poll", [("buffer_load_dwordx4 v[36:39], v70, s[36:39], s58 offen sc1", 36),
                        ("buffer_load_dwordx4 v[40:43], v70, s[36:39], s58 offen offset:128 sc1", 40),
                        ("buffer_load_dwordx4 v[80:83], v70, s[36:39], s59 offen sc1", 80),
                        ("buffer_load_dwordx4 v[84:87], v70, s[36:39], s59 offen offset:128 sc1", 84)], first=tr_ffn)
    c("h = bf16(x + bf16(sum of the 16 partials)), one column per lane")
    a("v_lshlrev_b32 v68, 16, v68")
    for r in range(4): a(f"v_pk_add_f32 v[{36 + 2 * r}:{37 + 2 * r}], v[{36 + 2 * r}:{37 + 2 * r}], v[{80 + 2 * r}:{81 + 2 * r}]")
    stamp(10)
    note(1, "s60")
    for u in range(4): a(f"v_add_f32_dpp v{44 + u}, v{36 + u}, v{36 + u} row_ror:8 row_mask:0xf bank_mask:0x3")
    for u in range(4): a(f"v_add_f32_dpp v{44 + u}, v{40 + u}, v{40 + u} row_ror:8 row_mask:0xf bank_mask:0xc")
    a("""v_permlane16_swap_b32 v44, v45
         v_permlane16_swap_b32 v46, v47
         v_add_f32 v44, v44, v45
         v_add_f32 v46, v46, v47
         v_permlane32_swap_b32 v44, v46
         v_add_f32 v44, v44, v46""")
    rbf(44)
    a(f"""v_add_f32 v44, v44, v68
          v_mov_b32_dpp v45, v44 quad_perm:[1,0,3,2] {DPPF}
          v_cvt_pk_bf16_f32 v45, v44, v45""")
    for s_ in range(2):
        for r in range(4): a(f"v_mov_b32_dpp v{48 + 4 * s_ + r}, v45 row_newbcast:{8 * s_ + 2 * r} row_mask:0xf bank_mask:0x3")
    a(f"""s_waitcnt lgkmcnt(0)
          v_mfma_f32_16x16x32_bf16 v[56:59], v[48:51], v[16:19], 0
          v_mfma_f32_16x16x32_bf16 v[64:67], v[48:51], v[20:23], 0
          v_mfma_f32_16x16x32_bf16 v[76:79], v[48:51], v[48:51], 0
          v_mfma_f32_16x16x32_bf16 v[56:59], v[52:55], v[24:27], v[56:59]
          v_mfma_f32_16x16x32_bf16 v[64:67], v[52:55], v[28:31], v[64:67]
          v_mfma_f32_16x16x32_bf16 v[76:79], v[52:55], v[52:55], v[76:79]
          s_mov_b32 s54, 0xffff0000
          s_mov_b32 s55, 0xffff0000
          v_cndmask_b32 v56, v56, v64, s[54:55]
          ds_write_b32 v71, v56 offset:{L_G}""")
    setexec(0x101)
    a(f"""ds_write_b32 v74, v76 offset:{L_G + 64 * 40}
          s_waitcnt lgkmcnt(0)
          s_barrier
          s_branch L_exit""")

    sec("final reduction: 8 output columns per wave")
    a(f"""L_T_fin:
          s_lshr_b32 s53, s28, 1
          s_lshl_b32 s53, s53, 3
          s_add_u32 s52, s52, s53
          s_lshl_b32 s52, s52, 1
          s_add_u32 s64, s52, s3
          v_and_b32 v4, 1, v0
          v_lshlrev_b32 v5, 3, v4
          s_lshl_b32 s52, s64, 4
          v_add_u32 v5, s52, v5""")
    srd(40, "s4", "s5", "1024")
    a(f"""buffer_load_dwordx2 v[8:9], v5, s[40:43], 0 offen
          v_lshlrev_b32 v6, 1, v5
          v_bfe_u32 v7, v0, 1, 3
          v_mul_u32_u24 v7, {A_STRIDE}, v7
          v_add_u32 v10, v7, v6
          v_lshrrev_b32 v7, 1, v0
          v_mul_u32_u24 v7, {F_STRIDE}, v7
          v_add_u32 v11, v7, v6
          v_lshl_add_u32 v5, v3, 1, v5
          v_mov_b32 v44, 0
          v_mov_b32 v45, 0
          v_mov_b32 v46, 0
          v_mov_b32 v47, 0""")
    b12()
    a(f"s_mov_b32 s58, {hex(WS_A)}\ns_mov_b32 s59, {hex(WS_A + 8 * A_STRIDE)}\ns_waitcnt vmcnt(0)")
    unpack(16, 17, 8); unpack(18, 19, 9)
    srd(40, "s22", "s23", "1024")
    poll("L_fin_poll1", [("buffer_load_dwordx4 v[20:23], v10, s[36:39], s58 offen sc1", 20),
                         ("buffer_load_dwordx4 v[24:27], v10, s[36:39], s59 offen sc1", 24)], sleep=2)
    for r in range(4): a(f"v_add_f32 v{20 + r}, v{20 + r}, v{24 + r}")
    stamp(8)
    def fin_dpp(rs):
        for mode in ("quad_perm:[2,3,0,1]", "row_ror:4", "row_ror:8"):
            for r in rs: a(f"v_add_f32_dpp v{r}, v{r}, v{r} {mode} {DPPF}")
    fin_dpp([20, 21, 22, 23])
    a("v_cvt_pk_bf16_f32 v24, v20, v21\nv_cvt_pk_bf16_f32 v25, v22, v23")
    unpack(20, 21, 24); unpack(22, 23, 25)
    for r in range(4): a(f"v_add_f32 v{20 + r}, v{20 + r}, v{16 + r}")
    a(f"""v_cmp_eq_u32 vcc, 1, v3
          v_cndmask_b32 v20, v20, v21, vcc
          v_cmp_eq_u32 vcc, 2, v3
          v_cndmask_b32 v20, v20, v22, vcc
          v_cmp_eq_u32 vcc, 3, v3
          v_cndmask_b32 v20, v20, v23, vcc""")
    rbf(20)
    a(f"""s_mov_b32 s58, {hex(WS_F)}
          s_mov_b32 s59, {hex(WS_F + 32 * F_STRIDE)}
          s_mov_b32 s53, {hex(WS_F + 64 * F_STRIDE)}
          v_mov_b32 v63, 0
          s_mov_b32 s60, 0
          s_mov_b32 s54, -1
          s_mov_b32 s55, 0xfff""")
    c("back-off for the length of the FFN stage: a poll that races the producers' stores slows both down")
    if P["fin_sleep"]: a(f"s_sleep {P['fin_sleep']}")
    a(f"""L_fin_poll2:
          buffer_load_dwordx4 v[36:39], v11, s[36:39], s58 offen sc1
          buffer_load_dwordx4 v[40:43], v11, s[36:39], s59 offen sc1
          s_mov_b64 s[56:57], exec
          s_and_b64 exec, exec, s[54:55]
          s_cbranch_scc0 L_fin_no3
          buffer_load_dwordx4 v[44:47], v11, s[36:39], s53 offen sc1
          L_fin_no3:
          s_waitcnt vmcnt(0)
          s_mov_b64 exec, s[56:57]""")
    chk_tags(62, 36, True); chk_tags(62, 40, False)
    a("s_and_b64 exec, exec, s[54:55]")
    chk_tags(62, 44, False)
    a(f"""s_mov_b64 exec, s[56:57]
          v_cmp_ne_u32_sdwa vcc, v62, v63 src0_sel:BYTE_0 src1_sel:DWORD
          s_and_b64 exec, vcc, vcc
          s_cbranch_scc0 L_fin_got2
          s_add_u32 s60, s60, 1
          s_cmp_lt_u32 s60, {POLL_CAP}
          s_cbranch_scc1 L_fin_poll2
          L_fin_got2:
          s_mov_b64 exec, -1""")
    stamp(9)
    for r in range(4): a(f"v_add_f32 v{36 + r}, v{36 + r}, v{40 + r}")
    for r in range(4): a(f"v_add_f32 v{36 + r}, v{36 + r}, v{44 + r}")
    fin_dpp([36, 37, 38, 39])
    a(f"""v_permlane16_swap_b32 v36, v37
          v_permlane16_swap_b32 v38, v39
          v_add_f32 v36, v36, v37
          v_add_f32 v38, v38, v39
          v_permlane32_swap_b32 v36, v38
          v_add_f32 v36, v36, v38""")
    rbf(36)
    a(f"""v_add_f32 v36, v36, v20
          v_cvt_pk_bf16_f32 v36, v36, v36""")
    setexec(0x0003000300030003)
    a(f"""buffer_store_short v36, v5, s[40:43], 0 offen
          s_cmp_lg_u32 s64, 0
          s_cbranch_scc1 L_fin_done""")
    c("every wave of the grid has read d_ws[0] by now: leave this launch's tag there")
    a(f"""s_mov_b64 exec, 1
          v_mov_b32 v4, s44
          v_mov_b32 v6, 0
          buffer_store_dword v4, v6, s[36:39], 0 offen
          L_fin_done:""")
    if P["pad_to"]:
        a(f"""s_mov_b32 s60, 0
              L_pad:
              s_memrealtime s[66:67]
              s_waitcnt lgkmcnt(0)
              s_sub_u32 s66, s66, s98
              s_add_u32 s60, s60, 1
              s_cmp_gt_u32 s60, 100000
              s_cbranch_scc1 L_padd
              s_cmp_lt_u32 s66, {P['pad_to']}
              s_cbranch_scc1 L_pad
              L_padd:""")
    stamp(10, True)

    a("L_exit:")
    if P["stamps"]:
        a(f"""s_mov_b64 exec, 1
              s_mul_i32 s52, s2, 12
              s_add_u32 s52, s52, s3
              s_lshl_b32 s52, s52, 6
              s_add_u32 s52, s52, {hex(WS_STAMP)}
              v_mov_b32 v3, 0
              s_waitcnt lgkmcnt(0)""")
        for q in range(3):
            for k in range(4): a(f"v_mov_b32 v{4 + 4 * q + k}, s{70 + 2 * (4 * q + k)}")
            a(f"buffer_store_dwordx4 v[{4 + 4 * q}:{7 + 4 * q}], v3, s[36:39], s52 offen offset:{16 * q}")
    a("L_end:\ns_endpgm")

    if P["jitter"]:
        src, a.lines = a.lines, []
        for l in src:
            t = l.strip()
            if t.startswith(("s_barrier", "buffer_store", "ds_write")) or t in ("L_H:", "L_V:", "L_T:"):
                if t.endswith(":"): a(t); jit(); continue
                jit(); a(t)
                if t.startswith("s_barrier"): jit()
            else: a.lines.append(l)
    lines, nops = fix_hazards(a.lines)
    hdr = HEADER + f"""; @launch grid=(256,1,1) block=(768,1,1) lds={P['lds']}
.amdgcn_target "amdgcn-amd-amdhsa--gfx950"
.text
.globl {NAME}
.p2align 8
.type {NAME},@function
{NAME}:
"""
    ftr = f"""
    .fill 32, 4, 0xbf800000
.section .rodata,"a"
.p2align 6
.amdhsa_kernel {NAME}
  .amdhsa_next_free_vgpr 168
  .amdhsa_next_free_sgpr {100 if P['jitter'] or P['pad_to'] else (96 if P['stamps'] else 72)}
  .amdhsa_accum_offset 168
  .amdhsa_group_segment_fixed_size 0
  .amdhsa_kernarg_size 96
  .amdhsa_user_sgpr_count 2
  .amdhsa_user_sgpr_kernarg_segment_ptr 1
  .amdhsa_system_sgpr_workgroup_id_x 1
  .amdhsa_float_denorm_mode_32 3
.end_amdhsa_kernel
"""
    return hdr + "\n".join(lines) + ftr, nops

if __name__ == "__main__":
    out = sys.argv[1]
    kw = {}
    for x in sys.argv[2:]:
        k, v = x.split("="); kw[k] = int(v)
    s, n = build(**kw)
    open(out, "w").write(s)
    print("wrote", out, "lines", s.count("\n"), "nop states inserted", n)
```

```python
import sys, struct
from asmlib import Asm, fix_hazards

NAME = "sequential_preLN__mha_block_cached__geglu_ffn__decode_kernel"
def f32(x): return "0x%08x" % struct.unpack("<I", struct.pack("<f", x))[0]

WS_X, WS_Q, WS_O, WS_A, WS_F, WS_STAMP, WS_SIZE = 0x1000, 0x10000, 0x50000, 0x90000, 0xA0000, 0x100000, 0x200000
O_STRIDE, A_STRIDE, F_STRIDE = 640, 2176, 2176
L_Q, L_FLAG, L_MODE, L_MFLAG, L_ST, L_P, L_R, L_A, L_G, L_HF, L_HQ, L_W, LDS_SIZE = \
    0, 256, 264, 268, 288, 512, 2560, 4736, 4736, 6272, 6400, 8192, 40960
R_STRIDE = 528
TAG_STEP = 0x9E3779B1
SCALE = f32(128 ** -0.5)
LOG2E = f32(1.4426950408889634)
EPS = f32(1e-5)
GC1 = -2.0 * 0.7978845608028654 * 1.4426950408889634
GC2 = GC1 * 0.044715
DPPF = "row_mask:0xf bank_mask:0xf"
POLL_CAP = 1000000
NFE, NFO = 16, 6
KB = 40

FL = ["", " nt", " sc0 nt"]
DEF = dict(stamps=0, jitter=0, force_safe=0, q_sleep=25, x_sleep=16, fin_sleep=44, lds=LDS_SIZE, pad_to=0, robust=1, kvf=1, wqf=1, tlb=0, b0k=3)

HEADER = """\
;
"""

def build(**kw):
    P = dict(DEF); P.update(kw)
    a = Asm()
    def c(text): a.lines.append("    ; " + text)
    def sec(text): a.lines.append(""); a.lines.append("; ---- " + text)

    def stamp(n, key=False):
        if P["stamps"] == 1 or (P["stamps"] == 2 and key): a(f"s_memrealtime s[{70 + 2 * n}:{71 + 2 * n}]")
    def note(n, sreg):
        if P["stamps"] == 1: a(f"s_mov_b32 s{70 + 2 * n}, {sreg}")
    def jit():
        l = a.label("L_jit")
        a(f"""s_mul_i32 s96, s96, 1664525
              s_add_u32 s96, s96, 1013904223
              s_lshr_b32 s97, s96, 30
              s_cmp_lg_u32 s97, 0
              s_cbranch_scc1 {l}d
              s_lshr_b32 s97, s96, 20
              s_and_b32 s97, s97, 255
              {l}:
              s_sleep 1
              s_sub_u32 s97, s97, 1
              s_cmp_gt_i32 s97, 0
              s_cbranch_scc1 {l}
              {l}d:""")
    def srd(d, lo, hi, size):
        a(f"s_mov_b32 s{d}, {lo}\ns_and_b32 s{d + 1}, {hi}, 0xffff\ns_mov_b32 s{d + 2}, {size}\ns_mov_b32 s{d + 3}, 0x20000")
    def ws_srd(): srd(36, "s26", "s27", hex(WS_SIZE))
    def tag_setup():
        c("s44 = tag of this launch; s68, s45, s46, s47 = its four bytes")
        a(f"""s_add_u32 s44, s44, {hex(TAG_STEP)}
              s_and_b32 s68, s44, 0xff
              s_bfe_u32 s45, s44, 0x80008
              s_bfe_u32 s46, s44, 0x80010
              s_lshr_b32 s47, s44, 24""")
    def perm_sel():
        for k in range(4): a(f"s_mov_b32 s{48 + k}, {hex(0x07060500 + k)}")
    def put_tags(r, vtag):
        for k in range(4): a(f"v_perm_b32 v{r + k}, v{r + k}, v{vtag}, s{48 + k}")
    def chk_tags(acc, r, first):
        for k in range(4): a(f"v_xor_b32 v{r + k}, s{(68, 45, 46, 47)[k]}, v{r + k}")
        if first: a(f"v_or_b32 v{acc}, v{r}, v{r + 1}")
        else: a(f"v_or3_b32 v{acc}, v{acc}, v{r}, v{r + 1}")
        a(f"v_or3_b32 v{acc}, v{acc}, v{r + 2}, v{r + 3}")
    def setexec(mask):
        if mask == -1: a("s_mov_b64 exec, -1")
        elif mask < 64: a(f"s_mov_b64 exec, {mask}")
        else: a(f"s_mov_b32 exec_lo, {hex(mask & 0xffffffff)}\ns_mov_b32 exec_hi, {hex(mask >> 32)}")
    def poll(name, loads, cap=POLL_CAP, sleep=0, first=None):
        c("bounded poll: lanes whose granules carry the tag stop reloading")
        a("s_mov_b32 s60, 0\nv_mov_b32 v63, 0")
        if first:
            for txt, _ in loads: a(txt)
            first(len(loads))
            a(f"s_branch {name}_chk")
        a(f"{name}:")
        for txt, _ in loads: a(txt)
        if first: a(f"{name}_chk:")
        for k, (_, r) in enumerate(loads):
            a(f"s_waitcnt vmcnt({len(loads) - 1 - k})"); chk_tags(62, r, k == 0)
        a(f"""v_cmp_ne_u32_sdwa vcc, v62, v63 src0_sel:BYTE_0 src1_sel:DWORD
              s_and_b64 exec, vcc, vcc
              s_cbranch_scc0 {name}_ok
              s_add_u32 s60, s60, 1
              s_cmp_lt_u32 s60, {cap}""")
        if sleep: a(f"s_sleep {sleep}")
        a(f"s_cbranch_scc1 {name}\n{name}_ok:\ns_mov_b64 exec, -1")
    def lds_wait(name, off, vz, vt, sleep):
        a(f"""s_mov_b32 s60, 0
              {name}:
              ds_read_b32 v{vt}, v{vz} offset:{off}
              s_waitcnt lgkmcnt(0)
              v_readfirstlane_b32 s52, v{vt}
              s_cmp_eq_u32 s52, 1
              s_cbranch_scc1 {name}_ok
              s_sleep {sleep}
              s_add_u32 s60, s60, 1
              s_cmp_lt_u32 s60, {POLL_CAP}
              s_cbranch_scc1 {name}
              {name}_ok:""")
    def row_allreduce(op, rs):
        for mode in ("quad_perm:[1,0,3,2]", "quad_perm:[2,3,0,1]", "row_half_mirror", "row_mirror"):
            for r in rs: a(f"{op}_dpp v{r}, v{r}, v{r} {mode} {DPPF}")
    def cross_rows(op, rs, tmps):
        for sw in ("v_permlane16_swap_b32", "v_permlane32_swap_b32"):
            for r, t in zip(rs, tmps): a(f"v_mov_b32 v{t}, v{r}")
            for r, t in zip(rs, tmps): a(f"{sw} v{t}, v{r}")
            for r, t in zip(rs, tmps): a(f"{op} v{r}, v{r}, v{t}")
    def sel_masks(m, t0, t1, t2):
        c("selector masks: A row m keeps element m of its k slab (rows 8..15 stay zero)")
        a(f"""v_bfe_u32 v{t0}, v0, 1, 3
              v_and_b32 v{t1}, 1, v0
              v_lshlrev_b32 v{t1}, 4, v{t1}
              v_mov_b32 v{t2}, 0xffff
              v_lshlrev_b32 v{t1}, v{t1}, v{t2}""")
        for r in range(4):
            a(f"v_cmp_eq_u32 vcc, {r}, v{t0}\nv_cndmask_b32 v{m + r}, 0, v{t1}, vcc")
    def unpack(lo, hi, src):
        a(f"v_and_b32 v{hi}, 0xffff0000, v{src}\nv_lshlrev_b32 v{lo}, 16, v{src}")
    def rbf(r): a(f"v_cvt_pk_bf16_f32 v{r}, v{r}, v{r}\nv_and_b32 v{r}, 0xffff0000, v{r}")
    def bitmasks():
        a("""s_mov_b32 s54, 0xcccccccc
             s_mov_b32 s55, 0xcccccccc
             s_mov_b32 s56, 0xaaaaaaaa
             s_mov_b32 s57, 0xaaaaaaaa""")
    def ffn_role():
        c("s62 = FFN slice, s63 = 1 for FFN workgroups, s67 = first slice of the group, s69 = slices of the group")
        a(f"""s_lshr_b32 s52, s28, 1
              s_mul_i32 s67, s52, {NFE}
              s_mul_i32 s53, s52, {NFO}
              s_add_u32 s53, s53, {4 * NFE}
              s_bitcmp1_b32 s28, 0
              s_cselect_b32 s67, s53, s67
              s_cselect_b32 s69, {NFO}, {NFE}
              s_sub_u32 s52, s29, 16
              s_add_u32 s62, s67, s52
              s_cmp_lt_u32 s52, s69
              s_cselect_b32 s53, 1, 0
              s_cmp_lt_u32 s62, 86
              s_cselect_b32 s63, s53, 0""")
    def stream(bar=0):
        c("tile t = 16 keys; the four waves of a role interleave at 1 KB")
        for t in range(32):
            if bar and t == bar: c("B0"); a("s_barrier")
            if t: a("s_add_u32 s52, s52, 4096")
            a(f"buffer_load_dwordx4 v[{KB + 4 * t}:{KB + 4 * t + 3}], v2, s[32:35], s52 offen{FL[P['kvf']]}")
    def prefetch_ffn():
        c("wave 3: 32 rows of the gate / up column window of this group into L2 (whole lines, one dword each)")
        l = a.label("L_pf")
        a(f"""s_cmp_eq_u32 s3, 3
              s_cbranch_scc0 {l}
              v_and_b32 v100, 7, v0
              v_lshlrev_b32 v100, 7, v100
              s_lshl_b32 s52, s69, 5
              s_sub_u32 s52, s52, 4
              v_min_u32 v100, s52, v100
              v_lshrrev_b32 v102, 3, v0
              v_mul_u32_u24 v102, 2752, v102
              v_add_u32 v100, v100, v102
              s_sub_u32 s52, s29, 16
              s_mul_i32 s52, s52, {32 * 2752}
              s_lshl_b32 s53, s67, 5
              s_add_u32 s53, s53, s52""")
        for lo, hi in (("s16", "s17"), ("s18", "s19")):
            srd(40, lo, hi, str(512 * 2752))
            for u in range(4):
                a(f"s_add_u32 s52, s53, {u * 8 * 2752}\nbuffer_load_dword v101, v100, s[40:43], s52 offen")
        a(f"{l}:")

    a(f"""s_cmp_ge_u32 s2, 256
          s_cbranch_scc1 L_end
          s_load_dwordx16 s[4:19], s[0:1], 0
          s_load_dwordx8 s[20:27], s[0:1], 64""")
    if P["stamps"]:
        a("s_memrealtime s[70:71]")
        for n in range(1, 12): a(f"s_mov_b64 s[{70 + 2 * n}:{71 + 2 * n}], 0")
    if P["pad_to"]: a("s_memrealtime s[98:99]")
    if P["jitter"]:
        a("""s_memtime s[96:97]
             s_waitcnt lgkmcnt(0)
             v_readfirstlane_b32 s97, v0
             s_mul_i32 s97, s97, 0x1b873593
             s_mul_i32 s98, s2, 0x85ebca6b
             s_add_u32 s96, s96, s97
             s_add_u32 s96, s96, s98
             s_mul_i32 s96, s96, 0x9e3779b1""")
    c("s3 = wave, s28 = group, s29 = idx, s30 = head, s31 = key split, s61 = wave & 3, v0 = lane")
    a(f"""v_lshrrev_b32 v1, 6, v0
          v_and_b32 v0, 63, v0
          s_and_b32 s28, s2, 7
          v_readfirstlane_b32 s3, v1
          s_lshr_b32 s29, s2, 3
          s_lshr_b32 s30, s29, 3
          s_lshl_b32 s52, s28, 2
          s_add_u32 s30, s30, s52
          s_and_b32 s31, s29, 7
          v_lshlrev_b32 v2, 4, v0
          s_and_b32 s61, s3, 3
          s_mov_b32 s35, 0x20000
          s_cmp_lt_u32 s3, 4
          s_cbranch_scc0 L_KV""")
    c("H waves: x (whole and one element per lane) and 16 rows x 128 columns of wq")
    a(f"""s_setprio 3
          v_lshrrev_b32 v3, 4, v0
          v_and_b32 v4, 15, v0
          v_and_b32 v5, 3, v0
          v_lshl_add_u32 v5, v5, 2, v3
          s_lshl_b32 s52, s31, 2
          s_add_u32 s52, s52, s61
          s_lshl_b32 s53, s52, 4
          v_add_u32 v5, s53, v5
          v_lshlrev_b32 v5, 1, v5
          v_lshlrev_b32 v6, 13, v3
          v_lshl_add_u32 v6, v4, 4, v6
          s_lshl_b32 s52, s52, 17
          s_lshl_b32 s53, s30, 8
          s_add_u32 s52, s52, s53
          s_mov_b32 s34, 0x400000
          s_mov_b32 s42, 1024
          s_mov_b32 s43, 0x20000
          s_waitcnt lgkmcnt(0)
          {"s_barrier" if P["b0k"] == 0 else ""}
          s_load_dword s44, s[26:27], 0
          s_mov_b32 s40, s4
          s_and_b32 s41, s5, 0xffff
          s_mov_b32 s32, s10
          s_and_b32 s33, s11, 0xffff
          buffer_load_dwordx4 v[8:11], v2, s[40:43], 0 offen
          buffer_load_ushort v12, v5, s[40:43], 0 offen""")
    for t in range(4):
        a(f"buffer_load_dwordx4 v[{16 + 4 * t}:{19 + 4 * t}], v6, s[32:35], s52 offen{FL[P['wqf']]}")
        if t < 3: a("s_add_u32 s52, s52, 0x8000")
    if P["b0k"]: a("s_barrier")
    stamp(1)
    a(f"""s_branch L_H
          L_KV:
          s_cmp_eq_u32 s3, 11
          s_cbranch_scc0 L_noclr""")
    c("the LDS flags are cleared here; barrier B0 (passed by every wave before it sets or reads one) orders the clear")
    a(f"""v_mov_b32 v4, 0
          v_mov_b32 v5, 0
          v_mov_b32 v6, 0
          v_mov_b32 v7, 0
          s_mov_b64 exec, 1
          ds_write_b128 v4, v[4:7] offset:{L_FLAG}
          ds_write_b128 v4, v[4:7] offset:{L_HF}
          s_mov_b64 exec, -1
          L_noclr:
          s_lshl_b32 s54, s30, 20
          s_lshl_b32 s53, s31, 17
          s_add_u32 s54, s54, s53
          s_lshl_b32 s52, s61, 10
          s_mov_b32 s34, 0x20000
          s_waitcnt lgkmcnt(0)
          {"s_barrier" if P["b0k"] == 0 else ""}
          s_cmp_lt_u32 s3, 8
          s_cbranch_scc1 L_K
          {"s_barrier" if P["b0k"] else ""}
          s_branch L_V""")

    sec("K waves: scores and local softmax")
    a("""L_K:
         s_setprio 2
         s_add_u32 s32, s6, s54
         s_addc_u32 s33, s7, 0
         s_and_b32 s33, s33, 0xffff""")
    stamp(1)
    stream(P["b0k"])
    a("s_load_dword s44, s[26:27], 0")
    stamp(2)
    ws_srd(); bitmasks()
    a(f"""v_and_b32 v8, 15, v0
          v_lshlrev_b32 v8, 4, v8
          v_mov_b32 v9, 0
          s_waitcnt lgkmcnt(0)""")
    tag_setup()
    c("wait for q (bf16, in LDS)")
    lds_wait("L_K_wait", L_FLAG, 9, 3, 1)
    a(f"""ds_read_b128 v[4:7], v8 offset:{L_Q}
          s_waitcnt lgkmcnt(0)""")
    stamp(3)
    for b in range(2):
        R = lambda t, k=0: KB + 4 * (16 * b + t) + k
        c(f"tiles {16 * b}..{16 * b + 15}: per-lane dot products, then a transposing sum over the 16 lanes of a key")
        for t in range(16):
            a(f"s_waitcnt vmcnt({31 - (16 * b + t)})")
            a(f"v_dot2_f32_bf16 v{R(t)}, v{R(t)}, v4, 0")
            for k in range(1, 4): a(f"v_dot2_f32_bf16 v{R(t)}, v{R(t, k)}, v{4 + k}, v{R(t)}")
        for u in range(8):
            a(f"v_add_f32_dpp v{R(u, 1)}, v{R(u)}, v{R(u)} row_ror:8 row_mask:0xf bank_mask:0x3")
        for u in range(8):
            a(f"v_add_f32_dpp v{R(u, 1)}, v{R(u + 8)}, v{R(u + 8)} row_ror:8 row_mask:0xf bank_mask:0xc")
        for u in range(4):
            a(f"v_add_f32_dpp v{R(u, 2)}, v{R(u, 1)}, v{R(u, 1)} row_shl:4 row_mask:0xf bank_mask:0x5")
        for u in range(4):
            a(f"v_add_f32_dpp v{R(u, 2)}, v{R(u + 4, 1)}, v{R(u + 4, 1)} row_shr:4 row_mask:0xf bank_mask:0xa")
        for u in range(4):
            a(f"v_add_f32_dpp v{R(u, 3)}, v{R(u, 2)}, v{R(u, 2)} quad_perm:[2,3,0,1] {DPPF}")
        for u in range(2):
            a(f"v_cndmask_b32 v{R(u + 4, 3)}, v{R(u, 3)}, v{R(u + 2, 3)}, s[54:55]")
        for u in range(2):
            a(f"v_add_f32_dpp v{R(u + 6, 3)}, v{R(u + 4, 3)}, v{R(u + 4, 3)} quad_perm:[1,0,3,2] {DPPF}")
        a(f"v_cndmask_b32 v{10 + b}, v{R(6, 3)}, v{R(7, 3)}, s[56:57]")
    stamp(4)
    c("scores rounded to bf16, scaled, rounded again (as the reference does); max, exp, sum of this wave's keys")
    a(f"v_cvt_pk_bf16_f32 v12, v10, v11")
    unpack(10, 11, 12)
    a(f"""v_mul_f32 v10, {SCALE}, v10
          v_mul_f32 v11, {SCALE}, v11
          v_cvt_pk_bf16_f32 v12, v10, v11""")
    unpack(10, 11, 12)
    a("v_max_f32 v13, v10, v11")
    row_allreduce("v_max_f32", [13]); cross_rows("v_max_f32", [13], [14])
    a(f"""v_sub_f32 v10, v10, v13
          v_sub_f32 v11, v11, v13
          v_mul_f32 v10, {LOG2E}, v10
          v_mul_f32 v11, {LOG2E}, v11
          v_exp_f32 v10, v10
          v_exp_f32 v11, v11
          s_lshl_b32 s53, s61, 9
          v_lshl_add_u32 v8, v0, 3, s53
          v_add_f32 v14, v10, v11
          v_cvt_pk_bf16_f32 v16, v10, v10
          v_cvt_pk_bf16_f32 v17, v11, v11
          ds_write_b64 v8, v[16:17] offset:{L_P}""")
    row_allreduce("v_add_f32", [14]); cross_rows("v_add_f32", [14], [15])
    a(f"""s_lshl_b32 s53, s61, 3
          v_mov_b32 v9, s53
          v_mov_b32 v18, v13
          v_mov_b32 v19, v14
          s_mov_b64 exec, 1
          ds_write_b64 v9, v[18:19] offset:{L_ST}
          s_mov_b64 exec, -1
          s_waitcnt lgkmcnt(0)""")
    stamp(5)
    a("s_branch L_T")

    sec("V waves: P.V, publication of the partial, later tail duties")
    a("""L_V:
         s_load_dword s44, s[26:27], 0
         s_add_u32 s32, s8, s54
         s_addc_u32 s33, s9, 0
         s_and_b32 s33, s33, 0xffff""")
    ws_srd(); perm_sel()
    sel_masks(36, 3, 4, 5)
    ffn_role()
    a(f"""s_mov_b32 s40, s20
          s_and_b32 s41, s21, 0xffff
          s_mov_b32 s42, {hex(1376 * 1024)}
          s_mov_b32 s43, 0x20000
          s_lshl_b32 s64, s62, 14
          s_lshl_b32 s52, s61, 8
          s_add_u32 s64, s64, s52
          v_lshrrev_b32 v3, 4, v0
          v_and_b32 v4, 15, v0
          v_lshlrev_b32 v1, 10, v3
          v_lshl_add_u32 v1, v4, 4, v1
          v_lshlrev_b32 v5, 4, v3
          v_lshl_add_u32 v19, v4, 5, v5
          s_mul_i32 s59, s61, {R_STRIDE}
          v_add_u32 v19, s59, v19
          s_lshl_b32 s53, s61, 9
          v_lshl_add_u32 v6, v0, 3, s53
          s_lshl_b32 s53, s61, 3
          v_mov_b32 v7, s53
          v_mov_b32 v3, 0
          s_lshl_b32 s66, s28, 5
          s_add_u32 s66, s66, s29
          s_mul_i32 s66, s66, {O_STRIDE}
          s_add_u32 s66, s66, {hex(WS_O)}
          s_waitcnt lgkmcnt(0)""")
    tag_setup()
    a("s_lshl_b32 s52, s61, 10")
    if P["tlb"] & 1:
        a("""s_mov_b64 exec, 1
             buffer_load_dword v8, v2, s[32:35], s52 offen nt
             s_mov_b64 exec, -1""")
    if P["tlb"] & 4:
        a("""s_mov_b64 exec, 1
             buffer_load_dword v9, v3, s[40:43], s64 offen
             s_mov_b64 exec, -1""")
    stamp(1); stream(); stamp(2)
    c("B1: probabilities and wave statistics are in LDS")
    a("s_barrier")
    stamp(3)
    a(f"""s_setprio 3
          ds_read_b64 v[4:5], v6 offset:{L_P}
          ds_read_b128 v[8:11], v3 offset:{L_ST}
          ds_read_b128 v[12:15], v3 offset:{L_ST + 16}
          ds_read_b64 v[16:17], v7 offset:{L_ST}
          ds_read_b32 v18, v3 offset:{L_MODE}
          s_waitcnt lgkmcnt(0)
          v_readfirstlane_b32 s65, v18
          v_max3_f32 v8, v8, v10, v12
          v_max_f32 v8, v8, v14
          v_sub_f32 v18, v16, v8
          v_mul_f32 v18, {LOG2E}, v18
          v_exp_f32 v18, v18
          s_cmp_eq_u32 s61, 0
          s_cselect_b64 vcc, -1, 0
          v_cndmask_b32 v20, 0, v8, vcc
          v_mul_f32 v21, v18, v17
          v_mov_b32 v22, 0
          v_mov_b32 v23, 0
          v_mov_b32 v7, s59
          v_mov_b32 v3, s44
          s_mov_b64 exec, 1
          ds_write_b128 v7, v[20:23] offset:{L_R + 512}
          s_mov_b64 exec, -1""")
    c("one MFMA per 4 keys: A = probability on the diagonal, B = the V rows as loaded")
    for t in range(32):
        A = 28 + 4 * (t & 1)
        for r in range(4):
            a(f"v_and_b32_dpp v{A + r}, v{4 + (t >> 4)}, v{36 + r} row_newbcast:{t & 15} {DPPF}")
        a(f"s_waitcnt vmcnt({31 - t})")
        a(f"v_mfma_f32_16x16x32_bf16 v[24:27], v[{A}:{A + 3}], v[{KB + 4 * t}:{KB + 4 * t + 3}], {'0' if t == 0 else 'v[24:27]'}")
    stamp(4, True)
    for r in range(4): a(f"v_mul_f32 v{24 + r}, v18, v{24 + r}")
    setexec(0xffffffff)
    a(f"""ds_write_b128 v19, v[24:27] offset:{L_R}
          s_mov_b64 exec, -1
          s_waitcnt lgkmcnt(0)""")
    c("B2: the four wave partials are in LDS; V0 sums and publishes 128 values + (max, sum)")
    a("s_barrier")
    stamp(5)
    a(f"""s_cmp_lg_u32 s61, 0
          s_cbranch_scc1 L_V_nopub""")
    setexec((1 << 33) - 1)
    for k in range(4): a(f"ds_read_b128 v[{56 + 4 * k}:{59 + 4 * k}], v2 offset:{L_R + k * R_STRIDE}")
    a("s_waitcnt lgkmcnt(2)")
    for r in range(4): a(f"v_add_f32 v{56 + r}, v{56 + r}, v{60 + r}")
    a("s_waitcnt lgkmcnt(0)")
    for r in range(4): a(f"v_add_f32 v{64 + r}, v{64 + r}, v{68 + r}")
    for r in range(4): a(f"v_add_f32 v{56 + r}, v{56 + r}, v{64 + r}")
    put_tags(56, 3)
    a(f"""s_cmp_eq_u32 s65, 1
          s_cbranch_scc0 L_V_safe
          buffer_store_dwordx4 v[56:59], v2, s[36:39], s66 offen
          L_V_pubd:
          s_mov_b64 exec, -1""")
    stamp(6)
    if P["stamps"] == 1: a("s_cmp_eq_u32 s65, 1\ns_cselect_b32 s92, 1, 2")
    c("output-projection workgroups: V0 / V1 sum the eight wave partials of 32 columns each after B3")
    a(f"""L_V_nopub:
          s_cmp_lt_u32 s29, 16
          s_cbranch_scc0 L_V_nowo
          s_cmp_lt_u32 s61, 2
          s_cbranch_scc0 L_exit
          v_and_b32 v4, 7, v0
          v_lshrrev_b32 v5, 3, v0
          v_mul_u32_u24 v4, 272, v4
          v_lshl_add_u32 v4, v5, 4, v4
          s_lshl_b32 s53, s61, 7
          v_add_u32 v4, s53, v4
          v_lshlrev_b32 v5, 4, v5
          s_lshl_b32 s52, s28, 1
          s_lshr_b32 s54, s29, 3
          s_add_u32 s52, s52, s54
          s_mul_i32 s52, s52, {A_STRIDE}
          s_add_u32 s52, s52, s53
          s_lshl_b32 s53, s31, 8
          s_add_u32 s52, s52, s53
          s_add_u32 s52, s52, {hex(WS_A)}
          v_bfe_u32 v6, v0, 2, 1
          v_bfe_u32 v7, v0, 1, 1
          v_lshl_add_u32 v7, v6, 1, v7
          v_lshl_add_u32 v6, v7, 2, v5
          v_add_u32 v7, 0x07060500, v7
          s_mov_b32 s54, 0xcccccccc
          s_mov_b32 s55, 0xcccccccc
          s_barrier
          ds_read_b128 v[56:59], v4 offset:{L_A}
          s_waitcnt lgkmcnt(0)""")
    stamp(9)
    for u in range(2): a(f"v_add_f32_dpp v{60 + u}, v{56 + u}, v{56 + u} row_shl:4 row_mask:0xf bank_mask:0x5")
    for u in range(2): a(f"v_add_f32_dpp v{60 + u}, v{58 + u}, v{58 + u} row_shr:4 row_mask:0xf bank_mask:0xa")
    for u in range(2): a(f"v_add_f32_dpp v{60 + u}, v{60 + u}, v{60 + u} quad_perm:[2,3,0,1] {DPPF}")
    a(f"""v_cndmask_b32 v60, v60, v61, s[54:55]
          v_add_f32_dpp v60, v60, v60 quad_perm:[1,0,3,2] {DPPF}
          v_perm_b32 v60, v60, v3, v7""")
    setexec(0x5555555555555555)
    a("buffer_store_dword v60, v6, s[36:39], s52 offen sc1")
    stamp(10)
    a(f"""s_branch L_exit
          L_V_safe:
          buffer_store_dwordx4 v[56:59], v2, s[36:39], s66 offen sc1
          s_branch L_V_pubd
          L_V_nowo:
          s_cmp_eq_u32 s63, 1
          s_cbranch_scc0 L_exit""")
    c("FFN workgroups: 16 rows of w_down, 128 columns per wave")
    for u in range(4):
        a(f"s_add_u32 s52, s64, {u * 4096}")
        a(f"buffer_load_dwordx4 v[{KB + 4 * u}:{KB + 4 * u + 3}], v1, s[40:43], s52 offen")
    a(f"""s_barrier
          v_lshrrev_b32 v4, 4, v0
          v_and_b32 v5, 3, v0
          v_lshl_add_u32 v4, v5, 2, v4
          v_mul_u32_u24 v4, 40, v4
          v_bfe_u32 v5, v0, 2, 2
          v_lshl_add_u32 v4, v5, 3, v4
          v_and_b32 v5, 15, v0
          v_lshlrev_b32 v5, 5, v5
          v_lshrrev_b32 v6, 4, v0
          v_lshl_add_u32 v5, v6, 4, v5
          s_mul_i32 s52, s62, {F_STRIDE}
          s_lshl_b32 s53, s61, 9
          s_add_u32 s52, s52, s53
          s_add_u32 s52, s52, {hex(WS_F)}
          v_mov_b32 v20, {f32(GC2)}
          v_mov_b32 v21, {f32(GC1)}
          v_bfe_u32 v6, v0, 2, 2
          v_lshlrev_b32 v6, 3, v6
          v_mov_b32 v7, 0
          s_waitcnt vmcnt(0)""")
    c("B5: partials of h.Wg, h.Wu, column sums of Wg / Wu, sum(h^2), sum(h)")
    a(f"""s_barrier
          ds_read_b64 v[16:17], v6 offset:{L_G + 65 * 40}
          ds_read_b64 v[18:19], v6 offset:{L_G + 64 * 40}
          ds_read_b32 v22, v7 offset:{L_G + 65 * 40}
          ds_read_b64 v[8:9], v4 offset:{L_G}
          ds_read_b64 v[10:11], v4 offset:{L_G + 640}
          ds_read_b64 v[12:13], v4 offset:{L_G + 1280}
          ds_read_b64 v[14:15], v4 offset:{L_G + 1920}
          s_waitcnt lgkmcnt(4)""")
    stamp(7)
    if P["robust"]:
        c("moments about the mean of wave 0's 64 values, so that a large common offset cancels before the sums")
        a(f"""v_mul_f32 v23, {f32(-1 / 64)}, v16
              v_mul_f32 v28, {f32(-1 / 64)}, v17
              v_fmac_f32 v18, v23, v16
              v_fmac_f32 v19, v28, v17
              v_sub_f32 v16, v16, v22
              v_sub_f32 v17, v17, v22
              v_mul_f32 v23, {f32(1 / 64)}, v16
              v_mul_f32 v28, {f32(1 / 64)}, v17
              v_fmac_f32 v18, v23, v16
              v_fmac_f32 v19, v28, v17""")
    a(f"""v_add_f32 v16, v16, v17
          v_add_f32 v18, v18, v19
          s_waitcnt lgkmcnt(0)
          v_add_f32 v8, v8, v9
          v_add_f32 v10, v10, v11
          v_add_f32 v12, v12, v13
          v_add_f32 v14, v14, v15""")
    for mode in ("row_ror:4", "row_ror:8"):
        for r in (16, 18, 8, 10, 12, 14): a(f"v_add_f32_dpp v{r}, v{r}, v{r} {mode} {DPPF}")
    c("gate = (h.W - mean * colsum(W)) / sqrt(var + eps), likewise up")
    a(f"""v_mul_f32 v16, {f32(1 / 512)}, v16
          v_mul_f32 v18, {f32(1 / 512)}, v18
          v_fma_f32 v18, -v16, v16, v18""")
    if P["robust"]: a(f"v_fmac_f32 v16, {f32(1 / 64)}, v22")
    a(f"""v_max_f32 v18, 0, v18
          v_cvt_pk_bf16_f32 v17, v16, v18""")
    unpack(16, 18, 17)
    a(f"""v_add_f32 v18, {EPS}, v18
          v_fma_f32 v8, -v16, v12, v8
          v_cvt_pk_bf16_f32 v18, v18, v18
          v_fma_f32 v10, -v16, v14, v10
          v_and_b32 v18, 0xffff0000, v18
          v_sqrt_f32 v18, v18""")
    rbf(18)
    a(f"""v_rcp_f32 v18, v18
          v_mul_f32 v8, v8, v18
          v_mul_f32 v10, v10, v18
          v_cvt_pk_bf16_f32 v12, v8, v10""")
    unpack(8, 10, 12)
    c("tanh GELU written as g / (1 + exp(-2 sqrt(2/pi) (g + 0.044715 g^3)))")
    a(f"""v_mul_f32 v9, v8, v8
          v_fma_f32 v9, v9, v20, v21
          v_mul_f32 v9, v9, v8
          v_exp_f32 v9, v9
          v_add_f32 v9, 1.0, v9
          v_rcp_f32 v9, v9
          v_mul_f32 v9, v9, v8""")
    rbf(9)
    a(f"""v_mul_f32 v9, v9, v10
          v_cvt_pk_bf16_f32 v4, v9, v9""")
    for t in range(4):
        A = 28 + 4 * (t & 1)
        for r in range(4):
            a(f"v_and_b32_dpp v{A + r}, v4, v{36 + r} row_newbcast:{t} {DPPF}")
        a(f"v_mfma_f32_16x16x32_bf16 v[24:27], v[{A}:{A + 3}], v[{KB + 4 * t}:{KB + 4 * t + 3}], {'0' if t == 0 else 'v[24:27]'}")
    setexec(0xffffffff)
    put_tags(24, 3)
    a("buffer_store_dwordx4 v[24:27], v5, s[36:39], s52 offen sc1")
    stamp(8)
    a("s_branch L_exit")

    sec("H waves: LN(x), query projection, early exchanges")
    a("L_H:")
    ws_srd()
    a("s_cmp_eq_u32 s3, 1\ns_cbranch_scc0 L_H_notok")
    c("H1 announces the XCC id of this workgroup with a plain store")
    perm_sel()
    a(f"""s_getreg_b32 s67, hwreg(HW_REG_XCC_ID, 0, 4)
          s_lshl_b32 s67, s67, 8
          s_lshl_b32 s66, s28, 12
          s_add_u32 s66, s66, {hex(WS_X)}
          s_lshl_b32 s52, s29, 7
          s_add_u32 s52, s52, s66
          v_mov_b32 v104, s67
          v_mov_b32 v105, s67
          v_mov_b32 v106, s67
          v_mov_b32 v107, s67
          v_mov_b32 v108, 0
          s_waitcnt lgkmcnt(0)
          s_add_u32 s53, s44, {hex(TAG_STEP)}
          v_mov_b32 v109, s53""")
    put_tags(104, 109)
    a("""s_mov_b64 exec, 1
         buffer_store_dwordx4 v[104:107], v108, s[36:39], s52 offen
         s_mov_b64 exec, -1
         s_mov_b32 s64, 1
         s_branch L_H_tok
         L_H_notok:
         s_mov_b32 s64, 0
         L_H_tok:""")
    sel_masks(88, 13, 14, 15)
    a("""s_cmp_eq_u32 s64, 1
         s_cbranch_scc1 L_H_w1
         s_waitcnt vmcnt(4)
         s_branch L_H_w2
         L_H_w1:
         s_waitcnt vmcnt(5)
         L_H_w2:""")
    c("layer norm of x with the reference's bf16 roundings")
    for k in range(4): unpack(80 + 2 * k, 81 + 2 * k, 8 + k)
    a("""v_add_f32 v8, v80, v81
         v_add_f32 v9, v82, v83
         v_add_f32 v10, v84, v85
         v_add_f32 v11, v86, v87
         v_add_f32 v8, v8, v9
         v_add_f32 v10, v10, v11
         v_add_f32 v8, v8, v10""")
    row_allreduce("v_add_f32", [8]); cross_rows("v_add_f32", [8], [9])
    a(f"v_mul_f32 v8, {f32(1 / 512)}, v8")
    for k in range(8): a(f"v_sub_f32 v{80 + k}, v{80 + k}, v8")
    a("v_mul_f32 v9, v80, v80")
    for k in range(1, 8): a(f"v_fmac_f32 v9, v{80 + k}, v{80 + k}")
    row_allreduce("v_add_f32", [9]); cross_rows("v_add_f32", [9], [10])
    a(f"""v_mul_f32 v9, {f32(1 / 512)}, v9
          v_cvt_pk_bf16_f32 v10, v8, v9""")
    unpack(8, 9, 10)
    a(f"v_add_f32 v9, {EPS}, v9")
    rbf(9)
    a(f"""v_sqrt_f32 v9, v9
          v_lshlrev_b32 v12, 16, v12
          v_sub_f32 v12, v12, v8""")
    rbf(9); rbf(12)
    a(f"""v_rcp_f32 v10, v9
          v_mul_f32 v11, v12, v10
          v_fma_f32 v13, -v11, v9, v12
          v_fma_f32 v11, v13, v10, v11
          v_cvt_pk_bf16_f32 v12, v11, v11
          s_cmp_eq_u32 s64, 1
          s_cbranch_scc1 L_H_w3
          s_waitcnt vmcnt(0)
          s_branch L_H_w4
          L_H_w3:
          s_waitcnt vmcnt(1)
          L_H_w4:""")
    stamp(2)
    for t in range(4):
        A = 96 + 4 * (t & 1)
        for r in range(4):
            a(f"v_and_b32_dpp v{A + r}, v12, v{88 + r} row_newbcast:{t} {DPPF}")
        a(f"v_mfma_f32_16x16x32_bf16 v[92:95], v[{A}:{A + 3}], v[{16 + 4 * t}:{19 + 4 * t}], {'0' if t == 0 else 'v[92:95]'}")
    a("s_waitcnt lgkmcnt(0)")
    tag_setup()
    c("H1..H3 hand their partial q to H0 through LDS")
    a(f"""s_cmp_eq_u32 s3, 0
          s_cbranch_scc1 L_H0
          s_lshl_b32 s52, s61, 9
          v_add_u32 v5, s52, v2
          s_lshl_b32 s52, s61, 2
          v_mov_b32 v6, s52
          v_mov_b32 v7, 1""")
    setexec(0xffffffff)
    a(f"""ds_write_b128 v5, v[92:95] offset:{L_HQ - 512}
          s_waitcnt lgkmcnt(0)
          s_mov_b64 exec, 1
          ds_write_b32 v6, v7 offset:{L_HF}
          s_mov_b64 exec, -1
          s_branch L_H123
          L_H0:
          v_lshlrev_b32 v4, 6, v4
          v_lshl_add_u32 v4, v3, 5, v4
          s_lshl_b32 s53, s30, 13
          s_add_u32 s53, s53, {hex(WS_Q)}
          s_lshl_b32 s58, s31, 10
          s_add_u32 s58, s58, s53
          v_mov_b32 v5, 0
          s_mov_b32 s60, 0
          L_H0_join:
          ds_read_b128 v[8:11], v5 offset:{L_HF}
          s_waitcnt lgkmcnt(0)
          v_and_b32 v9, v9, v10
          v_and_b32 v9, v9, v11
          v_cmp_ne_u32 vcc, 1, v9
          s_cbranch_vccz L_H0_joined
          s_add_u32 s60, s60, 1
          s_cmp_lt_u32 s60, {POLL_CAP}
          s_cbranch_scc1 L_H0_join
          L_H0_joined:""")
    for k in range(3): a(f"ds_read_b128 v[{16 + 4 * k}:{19 + 4 * k}], v2 offset:{L_HQ + 512 * k}")
    a(f"""v_mov_b32 v9, s44
          v_mov_b32 v11, s44
          v_mov_b32 v13, s44
          v_mov_b32 v15, s44
          s_waitcnt lgkmcnt(0)""")
    for r in range(4): a(f"v_add_f32 v{92 + r}, v{92 + r}, v{16 + r}\nv_add_f32 v{20 + r}, v{20 + r}, v{24 + r}")
    for r in range(4): a(f"v_add_f32 v{8 + 2 * r}, v{92 + r}, v{20 + r}")
    c("publish the partial q as {fp32, tag} pairs with plain stores; repeated write-through if the group is not on one XCD")
    setexec(0xffffffff)
    a(f"""buffer_store_dwordx4 v[8:11], v4, s[36:39], s58 offen
          buffer_store_dwordx4 v[12:15], v4, s[36:39], s58 offen offset:16
          s_mov_b64 exec, -1
          s_mov_b32 s65, 0""")
    def republish():
        l = a.label("L_rep")
        a(f"""s_cmp_eq_u32 s65, 1
              s_cbranch_scc1 {l}
              ds_read_b64 v[6:7], v5 offset:{L_MODE}
              s_waitcnt lgkmcnt(0)
              v_readfirstlane_b32 s64, v7
              v_readfirstlane_b32 s59, v6
              s_cmp_eq_u32 s64, 1
              s_cbranch_scc0 {l}
              s_mov_b32 s65, 1
              s_cmp_eq_u32 s59, 1
              s_cbranch_scc1 {l}""")
        setexec(0xffffffff)
        a(f"""buffer_store_dwordx4 v[8:11], v4, s[36:39], s58 offen sc1
              buffer_store_dwordx4 v[12:15], v4, s[36:39], s58 offen offset:16 sc1
              s_mov_b64 exec, -1
              {l}:""")
    stamp(3)
    a(f"""s_add_u32 s52, s53, 4096
          s_mov_b32 s60, 0""")
    c("back-off before the first poll: a failed pass costs the stream eight load slots")
    if P["q_sleep"]: a(f"s_sleep {P['q_sleep']}")
    a("L_H0_poll:")
    for p in range(8):
        a(f"buffer_load_dwordx4 v[{16 + 4 * p}:{19 + 4 * p}], v2, s[36:39], {'s53' if p < 4 else 's52'} offen offset:{(p & 3) * 1024} sc1")
    for p in range(8):
        a(f"s_waitcnt vmcnt({7 - p})")
        if p == 0: a(f"v_xor_b32 v62, s44, v17")
        else: a(f"v_bitop3_b32 v62, v62, v{17 + 4 * p}, s44 bitop3:0xf6")
        a(f"v_bitop3_b32 v62, v62, v{19 + 4 * p}, s44 bitop3:0xf6")
    a(f"""v_cmp_ne_u32 vcc, 0, v62
          s_cbranch_vccz L_H0_got""")
    republish()
    a(f"""s_add_u32 s60, s60, 1
          s_cmp_lt_u32 s60, {POLL_CAP}
          s_sleep 4
          s_cbranch_scc1 L_H0_poll
          L_H0_got:""")
    note(5, "s60")
    for p in range(1, 8):
        a(f"v_add_f32 v16, v16, v{16 + 4 * p}\nv_add_f32 v18, v18, v{18 + 4 * p}")
    a(f"""v_cvt_pk_bf16_f32 v16, v16, v18
          v_lshlrev_b32 v3, 2, v0
          v_mov_b32 v6, 1
          ds_write_b32 v3, v16 offset:{L_Q}
          s_waitcnt lgkmcnt(0)
          s_mov_b64 exec, 1
          ds_write_b32 v5, v6 offset:{L_FLAG}
          s_mov_b64 exec, -1
          s_waitcnt lgkmcnt(0)""")
    stamp(4)
    lds_wait("L_H0_mode", L_MFLAG, 5, 6, 4)
    republish()
    a("s_branch L_T")

    a("L_H123:")
    if P["tlb"] & 4:
        a("""s_cmp_eq_u32 s3, 2
             s_cbranch_scc0 L_H_nt
             v_mov_b32 v100, 0
             s_mov_b64 exec, 1""")
        srd(40, "s12", "s13", "0x400000")
        a("s_lshl_b32 s52, s28, 19\nbuffer_load_dword v101, v100, s[40:43], s52 offen")
        for lo, hi in (("s16", "s17"), ("s18", "s19")):
            srd(40, lo, hi, str(512 * 2752))
            a("buffer_load_dword v101, v100, s[40:43], 0 offen")
        a("s_mov_b64 exec, -1\nL_H_nt:")
    a("""s_cmp_eq_u32 s3, 1
         s_cbranch_scc0 L_T""")
    c("H1: plain stores are allowed only if all 32 members are seen with this workgroup's own XCC id")
    a("""v_and_b32 v3, 31, v0
         v_lshlrev_b32 v3, 7, v3""")
    if P["x_sleep"]: a(f"s_sleep {P['x_sleep']}")
    poll("L_H1_poll", [("buffer_load_dwordx4 v[4:7], v3, s[36:39], s66 offen sc1", 4)], cap=12, sleep=8)
    a(f"""s_cmp_lt_u32 s60, 12
          s_cselect_b32 s67, s67, -1
          v_cmp_ne_u32 vcc, s67, v4
          s_cmp_eq_u64 vcc, 0
          s_cselect_b32 s52, 1, 0""")
    if P["force_safe"]: a("s_mov_b32 s52, 0")
    a(f"""v_mov_b32 v4, s52
          v_mov_b32 v5, 1
          v_mov_b32 v9, 0
          s_mov_b64 exec, 1
          ds_write_b64 v9, v[4:5] offset:{L_MODE}
          s_mov_b64 exec, -1
          s_waitcnt lgkmcnt(0)""")
    stamp(3)

    sec("T waves (H and K): tail roles")
    a("L_T:\ns_setprio 0")
    ffn_role(); bitmasks()
    a(f"""v_lshrrev_b32 v3, 4, v0
          v_lshrrev_b32 v4, 3, v0
          v_and_b32 v5, 7, v0
          v_bfe_u32 v7, v0, 2, 2
          v_lshl_add_u32 v7, v7, 2, v3
          v_lshlrev_b32 v7, 6, v7
          v_and_b32 v8, 3, v0
          v_lshl_add_u32 v7, v8, 3, v7
          s_lshl_b32 s61, s3, 12
          s_add_u32 s61, s61, {L_W}
          v_add_u32 v7, s61, v7
          v_lshrrev_b32 v9, 2, v0
          s_cmp_lt_u32 s29, 16
          s_cbranch_scc1 L_T_wo
          s_cmp_eq_u32 s63, 1
          s_cbranch_scc1 L_T_ffn
          s_sub_u32 s52, s29, {16 + NFO}
          s_cmp_lt_u32 s52, 8
          s_cselect_b32 s53, 1, 0
          s_bitcmp1_b32 s28, 0
          s_cselect_b32 s53, s53, 0
          s_cmp_lt_u32 s3, 2
          s_cselect_b32 s53, s53, 0
          s_cmp_eq_u32 s53, 1
          s_cbranch_scc1 L_T_fin""")
    def b12(at_b1=None, pf=False):
        a("s_barrier"); stamp(6)
        if at_b1: at_b1()
        a("s_barrier"); stamp(7)
        if pf: prefetch_ffn()
    b12(pf=True)
    a("s_branch L_exit")

    sec("output projection: two heads x 64 columns, 32 rows per wave")
    a(f"""L_T_wo:
          v_lshlrev_b32 v10, 10, v4
          v_lshl_add_u32 v10, v5, 4, v10
          s_lshl_b32 s52, s28, 1
          s_lshr_b32 s53, s29, 3
          s_add_u32 s52, s52, s53
          s_lshl_b32 s58, s52, 3
          s_add_u32 s58, s58, s3
          s_lshl_b32 s64, s58, 15
          s_lshl_b32 s53, s31, 7
          s_add_u32 s64, s64, s53
          v_bfe_u32 v7, v0, 2, 2
          v_lshl_add_u32 v7, v7, 2, v3
          v_lshlrev_b32 v7, 7, v7
          v_lshl_add_u32 v7, v8, 3, v7
          v_add_u32 v7, s61, v7
          v_mul_u32_u24 v11, {O_STRIDE}, v4
          v_lshl_add_u32 v12, v5, 4, v11
          s_lshr_b32 s58, s58, 2
          s_mul_i32 s58, s58, {8 * O_STRIDE}
          s_add_u32 s58, s58, {hex(WS_O)}
          s_and_b32 s53, s3, 3
          s_lshl_b32 s53, s53, 7
          s_add_u32 s59, s53, s58
          v_lshlrev_b32 v13, 2, v0
          s_mul_i32 s53, s3, 272
          v_add_u32 v13, s53, v13""")
    def wo_dma():
        c("wo tile into LDS, queued behind the V stream")
        srd(40, "s12", "s13", "0x400000")
        for t in range(4):
            a(f"""s_add_u32 m0, s61, {t * 1024}
                  s_add_u32 s53, s64, {t * 8192}
                  buffer_load_dwordx4 v10, s[40:43], s53 offen lds""")
    b12(at_b1=wo_dma)
    def tr_wo(n):
        a(f"s_waitcnt vmcnt({n})")
        for nt in range(4):
            for hf in range(2):
                r = 16 + 4 * nt + 2 * hf
                a(f"ds_read_b64_tr_b16 v[{r}:{r + 1}], v7 offset:{nt * 32 + hf * 2048}")
        stamp(11)
    poll("L_wo_poll", [("buffer_load_dwordx4 v[32:35], v11, s[36:39], s58 offen offset:512 sc1", 32),
                       ("buffer_load_dwordx4 v[36:39], v12, s[36:39], s59 offen sc1", 36)], first=tr_wo)
    stamp(8)
    note(10, "s60")
    c("softmax combine over the eight key splits (true max), o rounded to bf16")
    a(f"v_max_f32_dpp v34, v32, v32 row_ror:8 {DPPF}")
    cross_rows("v_max_f32", [34], [35])
    a(f"""v_sub_f32 v32, v32, v34
          v_mul_f32 v32, {LOG2E}, v32
          v_exp_f32 v32, v32
          v_mul_f32 v33, v32, v33""")
    for r in range(4): a(f"v_mul_f32 v{36 + r}, v32, v{36 + r}")
    a(f"""v_add_f32_dpp v33, v33, v33 row_ror:8 {DPPF}
          v_add_f32_dpp v44, v36, v36 row_ror:8 row_mask:0xf bank_mask:0x3
          v_add_f32_dpp v45, v37, v37 row_ror:8 row_mask:0xf bank_mask:0x3
          v_mov_b32 v34, v33
          v_add_f32_dpp v44, v38, v38 row_ror:8 row_mask:0xf bank_mask:0xc
          v_add_f32_dpp v45, v39, v39 row_ror:8 row_mask:0xf bank_mask:0xc
          v_permlane16_swap_b32 v34, v33
          v_permlane16_swap_b32 v44, v45
          v_add_f32 v33, v33, v34
          v_add_f32 v44, v44, v45
          v_mov_b32 v34, v33
          v_mov_b32 v45, v44
          v_permlane32_swap_b32 v34, v33
          v_permlane32_swap_b32 v45, v44
          v_add_f32 v33, v33, v34
          v_add_f32 v44, v44, v45
          v_rcp_f32 v33, v33
          v_mul_f32 v44, v44, v33
          v_mov_b32_dpp v45, v44 quad_perm:[1,0,3,2] {DPPF}
          v_cvt_pk_bf16_f32 v45, v44, v45""")
    for r in range(4): a(f"v_mov_b32_dpp v{48 + r}, v45 row_newbcast:{2 * r} row_mask:0x3 bank_mask:0xf")
    for r in range(4): a(f"v_mov_b32_dpp v{48 + r}, v45 row_newbcast:{8 + 2 * r} row_mask:0xc bank_mask:0xf")
    a("s_waitcnt lgkmcnt(0)")
    D = [56, 64, 68, 72]
    for nt in range(4):
        a(f"v_mfma_f32_16x16x32_bf16 v[{D[nt]}:{D[nt] + 3}], v[48:51], v[{16 + 4 * nt}:{19 + 4 * nt}], 0")
    a(f"""s_mov_b32 s54, 0xffff0000
          s_mov_b32 s55, 0xffff0000
          s_mov_b32 s56, 0
          s_mov_b32 s57, -1
          v_cndmask_b32 v56, v56, v64, s[54:55]
          v_cndmask_b32 v68, v68, v72, s[54:55]
          v_cndmask_b32 v56, v56, v68, s[56:57]
          ds_write_b32 v13, v56 offset:{L_A}
          s_waitcnt lgkmcnt(0)
          s_barrier
          s_branch L_exit""")

    sec("FFN gate / up: 16 + 16 columns, 64 rows per wave")
    a(f"""L_T_ffn:
          s_lshl_b32 s52, s3, 6
          v_add_u32 v10, s52, v9
          v_mul_u32_u24 v10, 2752, v10
          v_and_b32 v14, 1, v0
          v_lshl_add_u32 v10, v14, 4, v10
          s_lshl_b32 s52, s62, 5
          v_add_u32 v10, s52, v10
          v_mov_b32 v72, s16
          v_mov_b32 v73, s17
          v_mov_b32 v14, s18
          v_mov_b32 v15, s19
          v_cndmask_b32 v72, v72, v14, s[54:55]
          v_cndmask_b32 v73, v73, v15, s[54:55]
          v_add_co_u32 v72, vcc, v72, v10
          v_addc_co_u32 v73, vcc, 0, v73, vcc
          v_and_b32 v14, 15, v0
          v_lshl_add_u32 v14, v14, 2, v3
          v_lshlrev_b32 v14, 1, v14
          s_lshl_b32 s52, s3, 7
          v_add_u32 v14, s52, v14""")
    srd(40, "s4", "s5", "1024")
    a(f"""buffer_load_ushort v68, v14, s[40:43], 0 offen
          v_lshlrev_b32 v70, 4, v5
          v_mul_u32_u24 v10, {A_STRIDE}, v4
          v_add_u32 v70, v70, v10
          s_lshl_b32 s52, s3, 8
          v_add_u32 v70, s52, v70
          v_mul_u32_u24 v71, 40, v0
          s_lshl_b32 s52, s3, 2
          v_add_u32 v71, s52, v71
          v_bfe_u32 v74, v0, 3, 1
          v_mul_u32_u24 v74, 40, v74
          v_add_u32 v74, s52, v74""")
    c("rows 8..15 of the A operand hold ones: they deliver the column sums and sum(h)")
    for r in range(8): a(f"v_mov_b32 v{48 + r}, 0x3f803f80")
    b12(pf=True)
    c("the narrow gate / up slices are staged once this workgroup's share of the prefetch has landed")
    a(f"""s_cmp_eq_u32 s3, 3
          s_cbranch_scc0 L_ffn_go
          s_waitcnt vmcnt(0)
          L_ffn_go:
          s_barrier""")
    stamp(8)
    for t in range(4):
        a(f"s_add_u32 m0, s61, {t * 1024}\nglobal_load_lds_dwordx4 v[72:73], off")
        if t < 3: a("v_add_co_u32 v72, vcc, 44032, v72\nv_addc_co_u32 v73, vcc, 0, v73, vcc")
    a(f"s_mov_b32 s58, {hex(WS_A)}\ns_mov_b32 s59, {hex(WS_A + 8 * A_STRIDE)}")
    def tr_ffn(n):
        a(f"s_waitcnt vmcnt({n})")
        for s_ in range(2):
            for nt in range(2):
                for hf in range(2):
                    r = 16 + 8 * s_ + 4 * nt + 2 * hf
                    a(f"ds_read_b64_tr_b16 v[{r}:{r + 1}], v7 offset:{s_ * 2048 + nt * 32 + hf * 1024}")
        stamp(9)
    poll("L_ffn_poll", [("buffer_load_dwordx4 v[36:39], v70, s[36:39], s58 offen sc1", 36),
                        ("buffer_load_dwordx4 v[40:43], v70, s[36:39], s58 offen offset:128 sc1", 40),
                        ("buffer_load_dwordx4 v[80:83], v70, s[36:39], s59 offen sc1", 80),
                        ("buffer_load_dwordx4 v[84:87], v70, s[36:39], s59 offen offset:128 sc1", 84)], first=tr_ffn)
    c("h = bf16(x + bf16(sum of the 16 partials)), one column per lane")
    a("v_lshlrev_b32 v68, 16, v68")
    for r in range(4): a(f"v_pk_add_f32 v[{36 + 2 * r}:{37 + 2 * r}], v[{36 + 2 * r}:{37 + 2 * r}], v[{80 + 2 * r}:{81 + 2 * r}]")
    stamp(10)
    note(1, "s60")
    for u in range(4): a(f"v_add_f32_dpp v{44 + u}, v{36 + u}, v{36 + u} row_ror:8 row_mask:0xf bank_mask:0x3")
    for u in range(4): a(f"v_add_f32_dpp v{44 + u}, v{40 + u}, v{40 + u} row_ror:8 row_mask:0xf bank_mask:0xc")
    a("""v_permlane16_swap_b32 v44, v45
         v_permlane16_swap_b32 v46, v47
         v_add_f32 v44, v44, v45
         v_add_f32 v46, v46, v47
         v_permlane32_swap_b32 v44, v46
         v_add_f32 v44, v44, v46""")
    rbf(44)
    a(f"""v_add_f32 v44, v44, v68
          v_mov_b32_dpp v45, v44 quad_perm:[1,0,3,2] {DPPF}
          v_cvt_pk_bf16_f32 v45, v44, v45""")
    for s_ in range(2):
        for r in range(4): a(f"v_mov_b32_dpp v{48 + 4 * s_ + r}, v45 row_newbcast:{8 * s_ + 2 * r} row_mask:0xf bank_mask:0x3")
    a(f"""s_waitcnt lgkmcnt(0)
          v_mfma_f32_16x16x32_bf16 v[56:59], v[48:51], v[16:19], 0
          v_mfma_f32_16x16x32_bf16 v[64:67], v[48:51], v[20:23], 0
          v_mfma_f32_16x16x32_bf16 v[76:79], v[48:51], v[48:51], 0
          v_mfma_f32_16x16x32_bf16 v[56:59], v[52:55], v[24:27], v[56:59]
          v_mfma_f32_16x16x32_bf16 v[64:67], v[52:55], v[28:31], v[64:67]
          v_mfma_f32_16x16x32_bf16 v[76:79], v[52:55], v[52:55], v[76:79]
          s_mov_b32 s54, 0xffff0000
          s_mov_b32 s55, 0xffff0000
          v_cndmask_b32 v56, v56, v64, s[54:55]
          ds_write_b32 v71, v56 offset:{L_G}""")
    setexec(0x101)
    a(f"""ds_write_b32 v74, v76 offset:{L_G + 64 * 40}
          s_waitcnt lgkmcnt(0)
          s_barrier
          s_branch L_exit""")

    sec("final reduction: 8 output columns per wave")
    a(f"""L_T_fin:
          s_lshr_b32 s53, s28, 1
          s_lshl_b32 s53, s53, 3
          s_add_u32 s52, s52, s53
          s_lshl_b32 s52, s52, 1
          s_add_u32 s64, s52, s3
          v_and_b32 v4, 1, v0
          v_lshlrev_b32 v5, 3, v4
          s_lshl_b32 s52, s64, 4
          v_add_u32 v5, s52, v5""")
    srd(40, "s4", "s5", "1024")
    a(f"""buffer_load_dwordx2 v[8:9], v5, s[40:43], 0 offen
          v_lshlrev_b32 v6, 1, v5
          v_bfe_u32 v7, v0, 1, 3
          v_mul_u32_u24 v7, {A_STRIDE}, v7
          v_add_u32 v10, v7, v6
          v_lshrrev_b32 v7, 1, v0
          v_mul_u32_u24 v7, {F_STRIDE}, v7
          v_add_u32 v11, v7, v6
          v_lshl_add_u32 v5, v3, 1, v5
          v_mov_b32 v44, 0
          v_mov_b32 v45, 0
          v_mov_b32 v46, 0
          v_mov_b32 v47, 0""")
    if P["tlb"] & 2:
        srd(40, "s22", "s23", "1024")
        a("buffer_load_ushort v48, v5, s[40:43], 0 offen")
    b12()
    a(f"s_mov_b32 s58, {hex(WS_A)}\ns_mov_b32 s59, {hex(WS_A + 8 * A_STRIDE)}\ns_waitcnt vmcnt(0)")
    unpack(16, 17, 8); unpack(18, 19, 9)
    srd(40, "s22", "s23", "1024")
    poll("L_fin_poll1", [("buffer_load_dwordx4 v[20:23], v10, s[36:39], s58 offen sc1", 20),
                         ("buffer_load_dwordx4 v[24:27], v10, s[36:39], s59 offen sc1", 24)], sleep=2)
    for r in range(4): a(f"v_add_f32 v{20 + r}, v{20 + r}, v{24 + r}")
    stamp(8)
    def fin_dpp(rs):
        for mode in ("quad_perm:[2,3,0,1]", "row_ror:4", "row_ror:8"):
            for r in rs: a(f"v_add_f32_dpp v{r}, v{r}, v{r} {mode} {DPPF}")
    fin_dpp([20, 21, 22, 23])
    a("v_cvt_pk_bf16_f32 v24, v20, v21\nv_cvt_pk_bf16_f32 v25, v22, v23")
    unpack(20, 21, 24); unpack(22, 23, 25)
    for r in range(4): a(f"v_add_f32 v{20 + r}, v{20 + r}, v{16 + r}")
    a(f"""v_cmp_eq_u32 vcc, 1, v3
          v_cndmask_b32 v20, v20, v21, vcc
          v_cmp_eq_u32 vcc, 2, v3
          v_cndmask_b32 v20, v20, v22, vcc
          v_cmp_eq_u32 vcc, 3, v3
          v_cndmask_b32 v20, v20, v23, vcc""")
    rbf(20)
    a(f"""s_mov_b32 s58, {hex(WS_F)}
          s_mov_b32 s59, {hex(WS_F + 32 * F_STRIDE)}
          s_mov_b32 s53, {hex(WS_F + 64 * F_STRIDE)}
          v_mov_b32 v63, 0
          s_mov_b32 s60, 0
          s_mov_b32 s54, -1
          s_mov_b32 s55, 0xfff""")
    c("back-off for the length of the FFN stage: a poll that races the producers' stores slows both down")
    if P["fin_sleep"]: a(f"s_sleep {P['fin_sleep']}")
    a(f"""L_fin_poll2:
          buffer_load_dwordx4 v[36:39], v11, s[36:39], s58 offen sc1
          buffer_load_dwordx4 v[40:43], v11, s[36:39], s59 offen sc1
          s_mov_b64 s[56:57], exec
          s_and_b64 exec, exec, s[54:55]
          s_cbranch_scc0 L_fin_no3
          buffer_load_dwordx4 v[44:47], v11, s[36:39], s53 offen sc1
          L_fin_no3:
          s_waitcnt vmcnt(0)
          s_mov_b64 exec, s[56:57]""")
    chk_tags(62, 36, True); chk_tags(62, 40, False)
    a("s_and_b64 exec, exec, s[54:55]")
    chk_tags(62, 44, False)
    a(f"""s_mov_b64 exec, s[56:57]
          v_cmp_ne_u32_sdwa vcc, v62, v63 src0_sel:BYTE_0 src1_sel:DWORD
          s_and_b64 exec, vcc, vcc
          s_cbranch_scc0 L_fin_got2
          s_add_u32 s60, s60, 1
          s_cmp_lt_u32 s60, {POLL_CAP}
          s_cbranch_scc1 L_fin_poll2
          L_fin_got2:
          s_mov_b64 exec, -1""")
    stamp(9)
    for r in range(4): a(f"v_add_f32 v{36 + r}, v{36 + r}, v{40 + r}")
    for r in range(4): a(f"v_add_f32 v{36 + r}, v{36 + r}, v{44 + r}")
    fin_dpp([36, 37, 38, 39])
    a(f"""v_permlane16_swap_b32 v36, v37
          v_permlane16_swap_b32 v38, v39
          v_add_f32 v36, v36, v37
          v_add_f32 v38, v38, v39
          v_permlane32_swap_b32 v36, v38
          v_add_f32 v36, v36, v38""")
    rbf(36)
    a(f"""v_add_f32 v36, v36, v20
          v_cvt_pk_bf16_f32 v36, v36, v36""")
    setexec(0x0003000300030003)
    a(f"""buffer_store_short v36, v5, s[40:43], 0 offen
          s_cmp_lg_u32 s64, 0
          s_cbranch_scc1 L_fin_done""")
    c("every wave of the grid has read d_ws[0] by now: leave this launch's tag there")
    a(f"""s_mov_b64 exec, 1
          v_mov_b32 v4, s44
          v_mov_b32 v6, 0
          buffer_store_dword v4, v6, s[36:39], 0 offen
          L_fin_done:""")
    if P["pad_to"]:
        a(f"""s_mov_b32 s60, 0
              L_pad:
              s_memrealtime s[66:67]
              s_waitcnt lgkmcnt(0)
              s_sub_u32 s66, s66, s98
              s_add_u32 s60, s60, 1
              s_cmp_gt_u32 s60, 100000
              s_cbranch_scc1 L_padd
              s_cmp_lt_u32 s66, {P['pad_to']}
              s_cbranch_scc1 L_pad
              L_padd:""")
    stamp(10, True)

    a("L_exit:")
    if P["stamps"]:
        a(f"""s_mov_b64 exec, 1
              s_mul_i32 s52, s2, 12
              s_add_u32 s52, s52, s3
              s_lshl_b32 s52, s52, 6
              s_add_u32 s52, s52, {hex(WS_STAMP)}
              v_mov_b32 v3, 0
              s_waitcnt lgkmcnt(0)""")
        for q in range(3):
            for k in range(4): a(f"v_mov_b32 v{4 + 4 * q + k}, s{70 + 2 * (4 * q + k)}")
            a(f"buffer_store_dwordx4 v[{4 + 4 * q}:{7 + 4 * q}], v3, s[36:39], s52 offen offset:{16 * q}")
    a("L_end:\ns_endpgm")

    if P["jitter"]:
        src, a.lines = a.lines, []
        for l in src:
            t = l.strip()
            if t.startswith(("s_barrier", "buffer_store", "ds_write")) or t in ("L_H:", "L_V:", "L_T:"):
                if t.endswith(":"): a(t); jit(); continue
                jit(); a(t)
                if t.startswith("s_barrier"): jit()
            else: a.lines.append(l)
    lines, nops = fix_hazards(a.lines)
    hdr = HEADER + f"""; @launch grid=(256,1,1) block=(768,1,1) lds={P['lds']}
.amdgcn_target "amdgcn-amd-amdhsa--gfx950"
.text
.globl {NAME}
.p2align 8
.type {NAME},@function
{NAME}:
"""
    ftr = f"""
    .fill 32, 4, 0xbf800000
.section .rodata,"a"
.p2align 6
.amdhsa_kernel {NAME}
  .amdhsa_next_free_vgpr 168
  .amdhsa_next_free_sgpr {100 if P['jitter'] or P['pad_to'] else (96 if P['stamps'] else 72)}
  .amdhsa_accum_offset 168
  .amdhsa_group_segment_fixed_size 0
  .amdhsa_kernarg_size 96
  .amdhsa_user_sgpr_count 2
  .amdhsa_user_sgpr_kernarg_segment_ptr 1
  .amdhsa_system_sgpr_workgroup_id_x 1
  .amdhsa_float_denorm_mode_32 3
.end_amdhsa_kernel
"""
    return hdr + "\n".join(lines) + ftr, nops

if __name__ == "__main__":
    out = sys.argv[1]
    kw = {}
    for x in sys.argv[2:]:
        k, v = x.split("="); kw[k] = int(v)
    s, n = build(**kw)
    open(out, "w").write(s)
    print("wrote", out, "lines", s.count("\n"), "nop states inserted", n)
```
